```python
import torch

def _softmax(x, axis=-1):
    return torch.softmax(x, dim=axis)
def _gelu(x):
    return torch.nn.functional.gelu(x, approximate="tanh")
def _silu(x):
    return torch.nn.functional.silu(x)
def _sigmoid(x):
    return torch.sigmoid(x)
def _layernorm(x, axis=-1, eps=1e-5):
    m = x.mean(dim=axis, keepdim=True)
    v = x.var(dim=axis, keepdim=True, unbiased=False)
    return (x - m) / torch.sqrt(v + eps)
def _scatter_add(tgt, idx, src, axis=0):
    return tgt.clone().index_add_(axis, idx, src)
def _segment_sum(src, seg, n):
    out = torch.zeros((n,) + src.shape[1:], dtype=src.dtype)
    return out.index_add_(0, seg, src)
def _pad(x, pw):
    flat = tuple(v for pair in reversed(pw) for v in pair)
    return torch.nn.functional.pad(x, flat)

kernel_name = 'recurrent_scan__ssm_conv_h3__glu_gated_swiglu__prompt'

def setup_inputs():

    _w = (lambda a: (lambda t: t.to(torch.bfloat16) if t.is_floating_point() else t)(torch.as_tensor(a)))
    def _A_setup():
        B, S, D = 1, 2048, 512
        ks = 4
        return {
            "q": _w((lambda *s: torch.randn(*s, dtype=torch.bfloat16) * 0.05)(B, S, D)),
            "k": _w((lambda *s: torch.randn(*s, dtype=torch.bfloat16) * 0.8)(B, S, D)),
            "v": _w((lambda *s: torch.randn(*s, dtype=torch.bfloat16) * 0.8)(B, S, D)),
            "shift_k": _w((lambda *s: torch.randn(*s, dtype=torch.bfloat16) * 0.8)(D, ks) * 0.5),
            "ssm_k": _w((lambda *s: torch.randn(*s, dtype=torch.bfloat16) * 0.8)(D, S) * (1.0 / S ** 0.5)),
            "ssm_D": _w((lambda *s: torch.randn(*s, dtype=torch.bfloat16) * 0.8)(D)),
        }
    _A_in = _A_setup()

    def _B_setup():
        B, S, D, F = 1, 2048, 512, 1792
        return {
            "x": _w((lambda *s: torch.randn(*s, dtype=torch.bfloat16) * 0.05)(B, S, D)),
            "w1": _w((lambda *s: torch.randn(*s, dtype=torch.bfloat16) * 0.2)(D, F) * (2.0 / D) ** 0.5),
            "w3": _w((lambda *s: torch.randn(*s, dtype=torch.bfloat16) * 0.2)(D, F) * (2.0 / D) ** 0.5),
            "w2": _w((lambda *s: torch.randn(*s, dtype=torch.bfloat16) * 0.2)(F, D) * (2.0 / F) ** 0.5),
        }
    _B_in = _B_setup()

    return {
        "A_q": _A_in["q"],
        "A_k": _A_in["k"],
        "A_v": _A_in["v"],
        "A_shift_k": _A_in["shift_k"],
        "A_ssm_k": _A_in["ssm_k"],
        "A_ssm_D": _A_in["ssm_D"],
        "B_x": _B_in["x"],
        "B_w1": _B_in["w1"],
        "B_w3": _B_in["w3"],
        "B_w2": _B_in["w2"],
    }

def reference(A_q, A_k, A_v, A_shift_k, A_ssm_k, A_ssm_D, B_x, B_w1, B_w3, B_w2):
    def _A_ref(q, k, v, shift_k, ssm_k, ssm_D):
        B, S, D = q.shape
        ks = shift_k.shape[-1]
        k_pad = _pad(k, ((0, 0), (ks - 1, 0), (0, 0)))
        k_shift = torch.zeros_like(k)
        for t in range(ks):
            k_shift = k_shift + k_pad[:, t:t + S, :] * shift_k[:, ks - 1 - t][None, None, :]
        kv = k_shift * v
        L = 2 * S
        kv_pad = _pad(kv, ((0, 0), (0, S), (0, 0)))
        kf_pad = _pad(ssm_k, ((0, 0), (0, S)))
        kv_f = (lambda x, axes=(-2,-1): torch.fft.rfft2(x.float(), dim=axes))(kv_pad[:, None, :, :], axes=(1, 2))
        kf_f = (lambda x, axes=(-2,-1): torch.fft.rfft2(x.float(), dim=axes))(kf_pad[:, None, :], axes=(1, 2))
        kf_f = (lambda x, *d: x.permute(*d))(kf_f, 1, 2, 0)
        y_f = kv_f * kf_f[None, :, :, :]
        y = (lambda x, s, axes=(-2,-1): torch.fft.irfft2(x, s=s, dim=axes).to(torch.bfloat16))(y_f, (1, L), axes=(1, 2))[:, 0, :S, :]
        y = y + kv * ssm_D[None, None, :]
        return q * y

    def _B_ref(x, w1, w3, w2):
        gate = torch.einsum("bsd,df->bsf", x, w1)
        up = torch.einsum("bsd,df->bsf", x, w3)
        h = _silu(gate) * up
        out = torch.einsum("bsf,fd->bsd", h, w2)
        return out

    x = A_q
    xn = _layernorm(x, axis=-1)
    s = _A_ref(xn, A_k, A_v, A_shift_k, A_ssm_k, A_ssm_D)
    g = _silu(_B_ref(xn, B_w1, B_w3, B_w2))
    return x + s * g
```

```python
class Asm:
    def __init__(self):
        self.L = []
        self.nlab = 0
    def __call__(self, s):
        for ln in s.split("\n"):
            ln = ln.strip()
            if ln:
                self.L.append(ln)
    def c(self, s):
        self.L.append("; " + s)
    def label(self, name):
        self.L.append(name + ":")
    def newlabel(self, base="L"):
        self.nlab += 1
        return f"{base}_{self.nlab}"
    def text(self):
        out = []
        for ln in self.L:
            if ln.endswith(":") or ln.startswith(";") or ln.startswith("."):
                out.append(ln)
            else:
                out.append("    " + ln)
        return "\n".join(out)

class VM:
    def __init__(self, a):
        self.a = a
        self.q = []
    def issue(self, tag, text):
        self.a(text)
        self.q.append(tag)
        assert len(self.q) <= 63, "too many outstanding vm ops"
    def wait(self, tag, extra=""):
        idx = [i for i, t in enumerate(self.q) if t == tag]
        if not idx:
            if extra: self.a(f"s_waitcnt {extra}")
            return
        n = len(self.q) - 1 - idx[-1]
        self.a(f"s_waitcnt vmcnt({n}) {extra}".strip())
        self.q = self.q[idx[-1] + 1:]
    def waitall(self, extra=""):
        self.a(f"s_waitcnt vmcnt(0) {extra}".strip())
        self.q = []
    def done(self, tag):
        return tag not in self.q

def vr(a, n=1):
    return f"v{a}" if n == 1 else f"v[{a}:{a+n-1}]"
def sr(a, n=1):
    return f"s{a}" if n == 1 else f"s[{a}:{a+n-1}]"
```

```python
import sys
from asmlib import Asm, VM, vr, sr

NAME = "recurrent_scan__ssm_conv_h3__glu_gated_swiglu__prompt_kernel"

class Opt:
    prof = False
    x_bst = False
    nt_k = ""
    nt_v = ""
    nt_s = ""
    nt_w = ""
    code_pf = True
    prio = True
    kvtouch = True
    rot1 = 1
    rot2 = True
    x_g2st = False
    x_hmode = 0
    x_hst = "sc1"
    x_mid = False
    h_ld = "sc1"
    nbk = 6
OPT = Opt()

WS_UT = 0
WS_Y = 2 << 20
WS_H = 4 << 20
WS_CS = 12 << 20
WS_ST = WS_CS + (256 << 10)
WS_FU = WS_ST + (16 << 10)
WS_FCS = WS_FU + (16 << 10)
WS_FST = WS_FCS + (16 << 10)
WS_FH = WS_FST + (16 << 10)
WS_FY = WS_FH + (16 << 10)
WS_PROF = 13 << 20
WS_SIZE = 16 << 20

SLOT = 49152
L_HB = 98304
HCOPY = 4160
HCH = 4 * HCOPY
L_UB = L_HB + 2 * HCH
L_YT = L_UB + 2 * 4608
L_YS = L_YT + 64 * 144
L_SCR = 147456
L_CSP = L_SCR + 8320
L_TAPS = L_CSP + 4096
L_STAT = L_TAPS + 1024
L_CS = L_STAT + 1024
L_NONCE = L_CS + 1024
L_YCNT = L_NONCE + 8
L_STP = L_NONCE + 64
LDS_BYTES = 163840
assert L_YS + 8192 <= L_TAPS and L_STP + 64 <= LDS_BYTES

S_WAVE, S_XCD, S_J, S_RB, S_I = 3, 4, 5, 6, 7
STAMP0 = 8
S_ROT, S_SPIN = 32, 33
S_B, S_CB = 34, 35
R_X, R_WS, R_OUT, R_W1, R_W3, R_K, R_V, R_SH, R_SSM, R_W2, R_DBG = 36, 40, 44, 48, 52, 56, 60, 64, 68, 72, 76
S_PB = 48
S_PC = 56
S_TB, S_LW = 80, 81
S_NONCE = 82
S_D = 84
T0, T1, T2, T3, T4, T5 = 85, 86, 87, 88, 89, 90
S_LW1K = 91
S_OX, S_OW = 92, 93
S_CH = 94
S_ONES = 95
S_R1 = 95
S_EX = 96
S_ST0 = 98
S_RT0 = 100
SPIN_MAX = 0x40000
NLOG2E = 0xbfb8aa3b
NLN2 = 0xbf317218

a = Asm()
nstamp = {}

class capture:
    def __enter__(self):
        self.saved = a.L; a.L = []; return a.L
    def __exit__(self, *e):
        a.L = self.saved

stamp_on = [True]
def stamp(role, name):
    if not OPT.prof or not stamp_on[0]: return
    if role == "L" and OPT.x_bst != name.startswith("B"): return
    if role == "L" and name.startswith("m_") and not OPT.x_mid: return
    if role == "L" and OPT.x_mid and name in ("first_dma", "c0", "y_flag", "y_seen", "pre_final", "conv_end"): return
    if role == "C" and OPT.x_g2st and not name.startswith(("k", "h_", "g2", "E")): return
    if role == "C" and not OPT.x_g2st and name.startswith("k"): return
    k = nstamp.setdefault(role, [])
    idx = len(k)
    assert idx < 12, "too many stamps"
    k.append(name)
    a(f"s_memtime {sr(STAMP0 + 2 * idx, 2)}")

def barrier():
    a("s_barrier")

def read_nonce(vtmp):
    a(f"v_mov_b32 v{vtmp+2}, {L_NONCE}")
    a(f"ds_read_b64 {vr(vtmp,2)}, v{vtmp+2}")
    a("s_waitcnt lgkmcnt(0)")
    a(f"v_readfirstlane_b32 s{S_NONCE}, v{vtmp}")
    a(f"v_readfirstlane_b32 s{S_NONCE+1}, v{vtmp+1}")

def flag_store(vm, vtmp, s_off, tag="flag"):
    a(f"v_mov_b32 v{vtmp}, s{S_NONCE}")
    a(f"v_mov_b32 v{vtmp+1}, s{S_NONCE+1}")
    a("s_mov_b64 exec, 1")
    vm.issue(tag, f"buffer_store_dwordx2 {vr(vtmp,2)}, off, {sr(R_WS,4)}, s{s_off} sc1")
    a("s_mov_b64 exec, -1")

def poll_issue(vm, vdst, voff, tag):
    vm.issue(tag, f"buffer_load_dwordx2 {vr(vdst,2)}, v{voff}, {sr(R_WS,4)}, 0 offen sc1")

def poll_check(vm, vdst, voff, tag, sleep=2):
    ok = a.newlabel("L_pok"); again = a.newlabel("L_pagain")
    vm.wait(tag)
    a(f"v_cmp_ne_u64 vcc, {sr(S_NONCE,2)}, {vr(vdst,2)}")
    a(f"s_cbranch_vccz {ok}")
    a(f"s_mov_b32 s{S_SPIN}, {SPIN_MAX}")
    a.label(again)
    a(f"s_sub_u32 s{S_SPIN}, s{S_SPIN}, 1")
    a(f"s_cbranch_scc1 {ok}")
    a(f"s_sleep {sleep}")
    a(f"buffer_load_dwordx2 {vr(vdst,2)}, v{voff}, {sr(R_WS,4)}, 0 offen sc1")
    a("s_waitcnt vmcnt(0)")
    a(f"v_cmp_ne_u64 vcc, {sr(S_NONCE,2)}, {vr(vdst,2)}")
    a(f"s_cbranch_vccnz {again}")
    a.label(ok)

def spoll(pb, s_off, n, words):
    ok = a.newlabel("L_sok"); again = a.newlabel("L_sagain")
    nd = n * words
    a(f"s_mov_b32 s{S_SPIN}, {SPIN_MAX}")
    a.label(again)
    a(f"s_load_dwordx16 {sr(pb,16)}, {sr(R_WS,2)}, s{s_off} glc")
    if nd > 16:
        a(f"s_add_u32 s{T0}, s{s_off}, 64")
        a(f"s_load_dwordx16 {sr(pb+16,16)}, {sr(R_WS,2)}, s{T0} glc")
    a(f"s_sub_u32 s{S_SPIN}, s{S_SPIN}, 1")
    a(f"s_cbranch_scc1 {ok}")
    a("s_waitcnt lgkmcnt(0)")
    ref = S_NONCE if words == 2 else S_EX
    for p in range(nd // 2):
        a(f"s_xor_b64 {sr(pb+2*p,2)}, {sr(pb+2*p,2)}, {sr(ref,2)}")
        if p: a(f"s_or_b64 {sr(pb,2)}, {sr(pb,2)}, {sr(pb+2*p,2)}")
    a(f"s_cbranch_scc1 {again}")
    a.label(ok)

def unpack(dst, src):
    a(f"v_lshlrev_b32 v{dst}, 16, v{src}")
    a(f"v_and_b32 v{dst+1}, 0xffff0000, v{src}")

def prologue():
    a("s_cmp_ge_u32 s2, 256")
    a("s_cbranch_scc1 L_end")
    for r, off in ((R_X, 0), (R_W1, 56), (R_W3, 64), (R_DBG, 88), (R_WS, 96), (R_W2, 72), (R_OUT, 80)):
        a(f"s_load_dwordx2 {sr(r,2)}, s[0:1], {off}")
    if OPT.prof:
        a(f"s_memtime {sr(S_ST0,2)}")
        a(f"s_memrealtime {sr(S_RT0,2)}")
    a("v_lshrrev_b32 v2, 6, v0")
    a("v_and_b32 v1, 63, v0")
    a(f"s_and_b32 s{S_XCD}, s2, 7")
    a(f"v_readfirstlane_b32 s{S_WAVE}, v2")
    a(f"s_lshr_b32 s{S_J}, s2, 3")
    a(f"s_and_b32 s{S_I}, s{S_J}, 7")
    if OPT.code_pf:
        skip = a.newlabel("L_nopf")
        a(f"s_cmp_lg_u32 s{S_WAVE}, 1")
        a(f"s_cbranch_scc1 {skip}")
        a(f"s_getpc_b64 {sr(T3,2)}")
        a.label("L_pcref")
        a("v_and_b32 v2, 31, v0")
        a(f"v_lshl_add_u32 v2, s{S_I}, 5, v2")
        a("v_lshlrev_b32 v2, 7, v2")
        a("v_min_u32 v2, L_code_end-L_pcref-4, v2")
        a(f"global_load_dword v24, v2, {sr(T3,2)}")
        a.label(skip)
    a(f"s_lshr_b32 s{T0}, s{S_XCD}, 1")
    a(f"s_and_b32 s{S_B}, s{S_XCD}, 1")
    a(f"s_lshr_b32 s{T1}, s{S_J}, 3")
    a(f"s_lshl_b32 s{S_RB}, s{T0}, 2")
    a(f"s_add_u32 s{S_RB}, s{S_RB}, s{T1}")
    a(f"s_mul_i32 s{S_CB}, s{S_B}, 7")
    a(f"s_add_u32 s{S_CB}, s{S_CB}, s{S_I}")
    a(f"s_lshl_b32 s{S_TB}, s{S_RB}, 1")
    a(f"s_add_u32 s{S_TB}, s{S_TB}, s{S_B}")
    a(f"s_and_b32 s{S_LW}, s{S_WAVE}, 3")
    a(f"s_lshl_b32 s{S_LW1K}, s{S_LW}, 10")
    for r, size in ((R_X, 2 << 20), (R_W1, 512 * 3584), (R_W3, 512 * 3584), (R_WS, WS_SIZE), (R_DBG, 256), (R_K, 2 << 20),
                    (R_V, 2 << 20), (R_SH, 4096), (R_SSM, 4096), (R_W2, 1792 * 1024), (R_OUT, 2 << 20)):
        a(f"s_mov_b32 s{r+2}, {size}")
        a(f"s_mov_b32 s{r+3}, 0x20000")
    if OPT.rot2:
        a(f"s_mul_i32 s{S_ROT}, s{S_I}, 7")
        a(f"s_lshr_b32 s{S_ROT}, s{S_ROT}, 1")
        a(f"s_mul_i32 s{T1}, s{T1}, 7")
        a(f"s_add_u32 s{S_ROT}, s{S_ROT}, s{T1}")
        a(f"s_cmp_ge_u32 s{S_ROT}, 28")
        a(f"s_cselect_b32 s{T1}, 28, 0")
        a(f"s_sub_u32 s{S_ROT}, s{S_ROT}, s{T1}")
    else:
        a(f"s_mov_b32 s{S_ROT}, 0")
    a(f"s_cmp_eq_u32 s{S_I}, 7")
    a("s_cbranch_scc1 L_spare")
    a(f"s_cmp_ge_u32 s{S_WAVE}, 4")
    a("s_cbranch_scc1 L_lstart")

def nonce_code():
    skip = a.newlabel("L_nskip"); poll = a.newlabel("L_npoll"); have = a.newlabel("L_nhave")
    a(f"s_cmp_lg_u32 s{S_WAVE}, 0")
    a(f"s_cbranch_scc1 {skip}")
    a("s_cmp_lg_u32 s2, 0")
    a(f"s_cbranch_scc1 {poll}")
    a(f"s_memrealtime {sr(T1,2)}")
    a("s_waitcnt lgkmcnt(0)")
    a(f"s_or_b32 s{T2}, s{T2}, 0x80000000")
    a(f"v_mov_b32 v4, s{T1}")
    a(f"v_mov_b32 v5, s{T2}")
    a("s_mov_b64 exec, 1")
    a(f"buffer_store_dwordx2 v[4:5], off, {sr(R_DBG,4)}, 0 sc1")
    a("s_mov_b64 exec, -1")
    a(f"s_branch {have}")
    a.label(poll)
    a(f"s_mov_b32 s{S_SPIN}, {SPIN_MAX}")
    a.label(poll + "b")
    a(f"buffer_load_dwordx2 v[4:5], off, {sr(R_DBG,4)}, 0 sc1")
    a(f"s_sub_u32 s{S_SPIN}, s{S_SPIN}, 1")
    a(f"s_cbranch_scc1 {have}")
    a("s_waitcnt vmcnt(0)")
    a("v_cmp_gt_i32 vcc, 0, v5")
    a(f"s_cbranch_vccz {poll}b")
    a.label(have)
    a(f"v_mov_b32 v6, {L_NONCE}")
    a("ds_write_b64 v6, v[4:5]")
    a("v_mov_b32 v4, 0")
    a("ds_write_b32 v6, v4 offset:8")
    a.label(skip)
assert T1 % 2 == 0 and T3 % 2 == 0

ACC1 = 128
def acc1(gu, m, n): return ACC1 + 16 * (4 * n + 2 * m + gu)
def abuf(b, m, gu): return 64 + 16 * b + 4 * (2 * m + gu)
def bbuf(b, n): return 96 + 8 * b + 4 * n
VA = 10
VB = 12

def c_g1_reads(ks, b):
    tr = lambda m, gu, jj: f"ds_read_b64_tr_b16 {vr(abuf(b,m,gu)+2*jj,2)}, v{VA+m} offset:{16384+gu*16384+(16*ks+4*jj)*256}"
    bb = lambda n: f"ds_read_b128 {vr(bbuf(b,n),4)}, v{VB+ks} offset:{4096*n}"
    return [[bb(0), tr(0,0,0), tr(0,0,1)], [tr(0,1,0), tr(0,1,1), tr(1,0,0)], [tr(1,0,1), tr(1,1,0), tr(1,1,1)], [bb(1)]]

def c_start():
    a.c("==== C wave: set-up ====")
    a("v_lshrrev_b32 v3, 5, v1")
    a("v_and_b32 v2, 31, v1")
    a(f"s_and_b32 s{T0}, s{S_WAVE}, 1")
    a(f"s_lshr_b32 s{T4}, s{S_WAVE}, 1")
    a("v_bfe_u32 v4, v1, 1, 3")
    a(f"s_lshl_b32 s{T2}, s{T0}, 13")
    a(f"v_lshl_add_u32 v5, v2, 7, s{T2}")
    for ks in range(4):
        a(f"v_add_u32 v6, {2*ks}, v3")
        a("v_xor_b32 v6, v6, v4")
        a(f"v_lshl_add_u32 v{VB+ks}, v6, 4, v5")
    a("v_bfe_u32 v4, v1, 2, 2")
    a("v_lshl_add_u32 v5, v3, 3, v4")
    a("v_lshlrev_b32 v5, 8, v5")
    a("v_bfe_u32 v6, v1, 4, 1")
    a("v_lshl_add_u32 v5, v6, 5, v5")
    a("v_and_b32 v6, 3, v1")
    a("v_lshl_add_u32 v5, v6, 3, v5")
    a(f"s_lshl_b32 s{T2}, s{T4}, 1")
    for m in range(2):
        a(f"s_add_u32 s{T3}, s{T2}, {m}")
        a(f"v_xor_b32 v6, s{T3}, v4")
        a(f"v_lshl_add_u32 v{VA+m}, v6, 6, v5")
    a("s_waitcnt lgkmcnt(0)")
    nonce_code()
    for r in range(ACC1, 256, 2):
        a(f"v_pk_mov_b32 {vr(r,2)}, 0, 0")
    a(f"s_lshr_b32 s{T1}, s{S_WAVE}, 1")
    a(f"s_mov_b32 s{T4}, 0")
    a(f"s_mov_b32 s{T5}, 0")
    a(f"s_mov_b32 s{S_OX}, {(-2*SLOT) & 0xffffffff}")
    a(f"s_mov_b32 s{S_OW}, {SLOT}")
    a("s_waitcnt lgkmcnt(0)")
    stamp("C", "pre_b-1")
    barrier()

def c_g1():
    a.c("==== C wave: GEMM1 ====")
    stamp("C", "g1_start")
    for grp in c_g1_reads(0, 0):
        for r in grp: a(r)
    a(".p2align 3")
    a.label("L_cg1")
    for ks in range(4):
        b = ks & 1
        nxt = c_g1_reads((ks + 1) & 3, b ^ 1)
        a("s_waitcnt lgkmcnt(0)")
        i = 0
        for n in range(2):
            for m in range(2):
                for gu in range(2):
                    d = vr(acc1(gu, m, n), 16)
                    a(f"v_mfma_f32_32x32x16_bf16 {d}, {vr(abuf(b,m,gu),4)}, {vr(bbuf(b,n),4)}, {d}")
                    if ks == 3 and i == 0:
                        barrier()
                    if i < 4:
                        for r in nxt[i]: a(r)
                    if ks == 2 and i == 4:
                        a(f"s_add_u32 s{T5}, s{T5}, 1")
                        a(f"s_cmp_eq_u32 s{T5}, 3")
                        a(f"s_cselect_b32 s{T3}, s{S_OX}, s{S_OW}")
                        a(f"s_cselect_b32 s{T5}, 0, s{T5}")
                    if ks == 2 and i == 5:
                        for k in range(3): a(f"v_add_u32 v{VA+k}, s{T3}, v{VA+k}")
                    if ks == 2 and i == 6:
                        for k in range(3, 6): a(f"v_add_u32 v{VA+k}, s{T3}, v{VA+k}")
                    if ks == 3 and i == 6:
                        a(f"s_add_u32 s{T4}, s{T4}, 1")
                        a(f"s_cmp_lt_u32 s{T4}, 8")
                    i += 1
    a("s_cbranch_scc1 L_cg1")
    stamp("C", "g1_end")
    a.c("---- GEMM1 epilogue ----")
    if OPT.prio: a("s_setprio 3")
    CS = 32
    ST = 16
    a(f"s_lshl_b32 s{T2}, s{T0}, 9")
    a(f"s_add_u32 s{T2}, s{T2}, {L_STAT}")
    a(f"v_lshl_add_u32 v4, v2, 3, s{T2}")
    a(f"s_lshl_b32 s{T2}, s{T1}, 8")
    a(f"s_add_u32 s{T2}, s{T2}, {L_CS}")
    a(f"v_lshl_add_u32 v5, v3, 4, s{T2}")
    a("s_waitcnt vmcnt(0) lgkmcnt(0)")
    a(f"ds_read_b64 {vr(ST,2)}, v4")
    a(f"ds_read_b64 {vr(ST+2,2)}, v4 offset:256")
    for m in range(2):
        for gu in range(2):
            for j in range(4):
                a(f"ds_read_b128 {vr(CS+16*(2*m+gu)+4*j,4)}, v5 offset:{gu*512+m*128+j*32}")
    a(f"s_lshl_b32 s{T2}, s{S_RB}, 2")
    a(f"s_lshl_b32 s{T3}, s{T0}, 1")
    a(f"s_add_u32 s{T2}, s{T2}, s{T3}")
    a(f"s_mul_i32 s{T2}, s{T2}, 112")
    a(f"s_lshl_b32 s{T3}, s{S_CB}, 3")
    a(f"s_add_u32 s{T2}, s{T2}, s{T3}")
    a(f"s_lshl_b32 s{T3}, s{T1}, 2")
    a(f"s_add_u32 s{T2}, s{T2}, s{T3}")
    a(f"s_lshl_b32 s{T2}, s{T2}, 10")
    a(f"s_add_u32 s{T2}, s{T2}, {WS_H}")
    a(f"s_add_u32 s{T3}, s{T2}, {112*1024}")
    a("v_lshlrev_b32 v6, 4, v1")
    read_nonce(20)
    a(f"v_mul_f32 v24, 0x{NLOG2E:x}, v{ST+1}")
    a(f"v_mul_f32 v26, 0x{NLOG2E:x}, v{ST+3}")
    E = 96; O = 112
    blk = 0
    for n in range(2):
        st = vr(ST + 2 * n, 2)
        for m in range(2):
            for hb in range(2):
                A = acc1(0, m, n) + 8 * hb; B = acc1(1, m, n) + 8 * hb
                CG = CS + 16 * (2 * m) + 8 * hb; CU = CS + 16 * (2 * m + 1) + 8 * hb
                e = E + 8 * (blk & 1); o = O + 4 * (blk & 3)
                for p in range(4):
                    a(f"v_pk_fma_f32 {vr(A+2*p,2)}, {vr(CG+2*p,2)}, {st}, {vr(A+2*p,2)} op_sel_hi:[1,0,1] neg_lo:[0,1,0] neg_hi:[0,1,0]")
                for p in range(4):
                    a(f"v_pk_mul_f32 {vr(A+2*p,2)}, {vr(A+2*p,2)}, {vr(24+2*n,2)} op_sel_hi:[1,0]")
                for p in range(4):
                    a(f"v_exp_f32 v{e+2*p}, v{A+2*p}")
                    a(f"v_exp_f32 v{e+2*p+1}, v{A+2*p+1}")
                    a(f"v_pk_fma_f32 {vr(B+2*p,2)}, {vr(CU+2*p,2)}, {st}, {vr(B+2*p,2)} op_sel_hi:[1,0,1] neg_lo:[0,1,0] neg_hi:[0,1,0]")
                for p in range(4):
                    a(f"v_pk_add_f32 {vr(e+2*p,2)}, {vr(e+2*p,2)}, 1.0 op_sel_hi:[1,0]")
                for p in range(4):
                    a(f"v_rcp_f32 v{e+2*p}, v{e+2*p}")
                    a(f"v_rcp_f32 v{e+2*p+1}, v{e+2*p+1}")
                    a(f"v_pk_mul_f32 {vr(A+2*p,2)}, {vr(A+2*p,2)}, {vr(B+2*p,2)}")
                for p in range(4):
                    a(f"v_pk_mul_f32 {vr(A+2*p,2)}, {vr(A+2*p,2)}, {vr(e+2*p,2)}")
                for p in range(4):
                    a(f"v_cvt_pk_bf16_f32 v{o+p}, v{A+2*p}, v{A+2*p+1}")
                a(f"buffer_store_dwordx4 {vr(o,4)}, v6, {sr(R_WS,4)}, s{T2+n} offen offset:{(2*m+hb)*1024} {OPT.x_hst}")
                blk += 1
    if OPT.prio: a("s_setprio 0")

W2O = 15
S_KW = S_OX
S_KH = S_OW
def w2_setup():
    a("v_lshrrev_b32 v4, 3, v1")
    a("v_bfe_u32 v5, v1, 4, 1")
    a("v_lshlrev_b32 v5, 2, v5")
    a("v_and_b32 v6, 7, v1")
    a("v_xor_b32 v5, v5, v6")
    a("v_lshlrev_b32 v4, 10, v4")
    a(f"v_lshl_add_u32 v{W2O}, v5, 4, v4")
    a(f"s_mul_i32 s{T0}, s{S_LW}, {448*1024}")
    a(f"s_lshl_b32 s{T1}, s{S_I}, 7")
    a(f"s_add_u32 s{T0}, s{T0}, s{T1}")
    a(f"v_add_u32 v{W2O}, s{T0}, v{W2O}")

def kidx_init(reg, s0):
    a(f"s_add_u32 s{reg}, s{S_ROT}, {s0}")
    a(f"s_cmp_ge_u32 s{reg}, 28")
    a(f"s_cselect_b32 s{T0}, 28, 0")
    a(f"s_sub_u32 s{reg}, s{reg}, s{T0}")
def kidx_next(reg):
    a(f"s_add_u32 s{reg}, s{reg}, 1")
    a(f"s_cmp_eq_u32 s{reg}, 28")
    a(f"s_cselect_b32 s{reg}, 0, s{reg}")

def ring_off(slot):
    return (slot // 6) * SLOT + (slot % 6) * 2048

def w2_kstep(vm, s, tag):
    a(f"s_add_u32 m0, s{T5}, {ring_off(s % 12)}")
    a(f"s_lshl_b32 s{T1}, s{S_KW}, 14")
    vm.issue(tag, f"buffer_load_dwordx4 v{W2O}, {sr(R_W2,4)}, s{T1} offen {OPT.nt_w} lds")
    a(f"s_add_u32 m0, s{T5}, {ring_off(s % 12) + 1024}")
    a(f"s_add_u32 s{T1}, s{T1}, 8192")
    vm.issue(tag, f"buffer_load_dwordx4 v{W2O}, {sr(R_W2,4)}, s{T1} offen {OPT.nt_w} lds")
    kidx_next(S_KW)

ACC2 = 192
AR = 64
HR = 16
VX = 64
def c_g2():
    vm = VM(a)
    a.label("L_cE")
    a.c("==== C wave: GEMM2 ====")
    NBK = OPT.nbk
    assert HR + 8 * NBK <= AR
    VT = 10
    a("v_lshrrev_b32 v3, 5, v1")
    a("v_bfe_u32 v5, v1, 2, 2")
    a("v_lshl_add_u32 v7, v3, 2, v5")
    a("v_lshlrev_b32 v7, 7, v7")
    a("v_bfe_u32 v8, v1, 4, 1")
    a("v_lshl_add_u32 v7, v8, 5, v7")
    a("v_and_b32 v8, 3, v1")
    a("v_lshl_add_u32 v7, v8, 3, v7")
    a(f"s_mul_i32 s{T5}, s{S_LW}, 12288")
    a(f"v_add_u32 v7, s{T5}, v7")
    a("v_lshrrev_b32 v5, 1, v5")
    a(f"v_lshl_add_u32 v{VT}, v5, 6, v7")
    a("v_xor_b32 v5, 1, v5")
    a(f"v_lshl_add_u32 v{VT+1}, v5, 6, v7")
    barrier()
    stamp("C", "E")
    def treads(s, dst):
        return [f"ds_read_b64_tr_b16 {vr(dst+4*m+2*jj,2)}, v{VT+m} offset:{ring_off(s % 12) + 8*jj*128}" for m in range(2) for jj in range(2)]
    for s in range(12):
        for r in treads(s, AR + 8 * s): a(r)
    w2_setup()
    kidx_init(S_KW, 12)
    a(f"s_and_b32 s{T0}, s{S_WAVE}, 1")
    a(f"s_lshl_b32 s{T4}, s{S_RB}, 1")
    a(f"s_add_u32 s{T4}, s{T4}, s{T0}")
    a(f"s_lshl_b32 s{T4}, s{T4}, 1")
    a(f"s_add_u32 s{T4}, s{T4}, s{S_B}")
    a(f"s_lshl_b32 s{T4}, s{T4}, 4")
    a(f"s_lshl_b32 s{T3}, s{S_I}, 1")
    a(f"s_add_u32 s{T4}, s{T4}, s{T3}")
    a(f"s_lshr_b32 s{T3}, s{S_WAVE}, 1")
    a(f"s_add_u32 s{T4}, s{T4}, s{T3}")
    a(f"s_lshl_b32 s{T4}, s{T4}, 3")
    a(f"s_add_u32 s{T4}, s{T4}, {WS_FH}")
    a(f"s_lshl_b32 s{T2}, s{S_TB}, 1")
    a(f"s_add_u32 s{T2}, s{T2}, s{T3}")
    a(f"s_lshl_b32 s{T2}, s{T2}, 7")
    a(f"s_mul_i32 s{T3}, s{T0}, 56")
    a(f"s_add_u32 s{T2}, s{T2}, s{T3}")
    a(f"s_add_u32 s{S_CH}, s{T2}, {WS_FH}")
    a("s_waitcnt lgkmcnt(0)")
    vm.q.append("hst")
    for s in range(12, 16): w2_kstep(vm, s, "wa")
    vm.wait("hst")
    flag_store(vm, 12, T4)
    stamp("C", "h_flag")
    for s in range(16, 24): w2_kstep(vm, s, "wb")
    vm.wait("wa")
    for s in range(12, 16):
        for r in treads(s, AR + 8 * s): a(r)
    a(f"s_mul_i32 s{T2}, s{S_TB}, 224")
    a(f"s_mul_i32 s{T3}, s{S_LW}, 28")
    a(f"s_add_u32 s{T2}, s{T2}, s{T3}")
    a(f"s_lshl_b32 s{T2}, s{T2}, 10")
    a(f"s_add_u32 s{T2}, s{T2}, {WS_H}")
    a("v_lshlrev_b32 v6, 4, v1")
    a(f"v_add_u32 v7, {112*1024}, v6")
    a(f"s_mov_b32 s{S_KH}, s{S_ROT}")
    a("s_waitcnt lgkmcnt(0)")
    for s in range(24, 28): w2_kstep(vm, s, "wc")
    spoll(S_PC, S_CH, 7, 2)
    stamp("C", "h_seen")
    def hload(s):
        a(f"s_lshl_b32 s{T4}, s{S_KH}, 10")
        a(f"s_add_u32 s{T4}, s{T4}, s{T2}")
        if OPT.x_hmode == 1: a(f"s_and_b32 s{T4}, s{T4}, 0x43ffff")
        for n in range(2):
            vm.issue(f"h{s}", f"buffer_load_dwordx4 {vr(HR+8*(s%NBK)+4*n,4)}, v{6+n}, {sr(R_WS,4)}, s{T4} offen {OPT.h_ld}")
        kidx_next(S_KH)
    for s in range(NBK): hload(s)
    stamp("C", "g2_start")
    for s in range(28):
        A = AR + 8 * (s % 16)
        vm.wait(f"h{s}", "lgkmcnt(0)" if s >= 16 else "")
        i = 0
        for n in range(2):
            for m in range(2):
                d = vr(ACC2 + 16 * (2 * n + m), 16)
                a(f"v_mfma_f32_32x32x16_bf16 {d}, {vr(A+4*m,4)}, {vr(HR+8*(s%NBK)+4*n,4)}, {'0' if s == 0 else d}")
                if i == 0 and 15 <= s < 27:
                    for r in treads(s + 1, AR + 8 * ((s + 1) % 16)): a(r)
                if i == 1 and s >= 1 and s - 1 + NBK < 28: hload(s - 1 + NBK)
                i += 1
        if s == 21: final_x_load(vm)
        if s in (0, 1, 3, 7, 14, 21): stamp("C", f"k{s}")
    stamp("C", "g2_end")
    a("v_and_b32 v4, 31, v1")
    a("v_mul_u32_u24 v4, 272, v4")
    a("v_lshl_add_u32 v4, v3, 4, v4")
    a(f"v_add_u32 v4, s{T5}, v4")
    a("s_nop 7")
    for n in range(2):
        for m in range(2):
            for j in range(4):
                a(f"ds_write_b128 v4, {vr(ACC2+16*(2*n+m)+4*j,4)} offset:{n*SLOT+m*128+j*32}")
    vm.waitall("lgkmcnt(0)")
    a("s_branch L_final")

def final_x_load(vm):
    a("v_lshrrev_b32 v8, 3, v0")
    a(f"s_lshl_b32 s{T3}, s{S_TB}, 6")
    a(f"v_add_u32 v8, s{T3}, v8")
    a("v_lshlrev_b32 v8, 10, v8")
    a("v_and_b32 v9, 7, v0")
    a("v_lshl_add_u32 v9, v9, 4, v8")
    a(f"s_lshl_b32 s{T3}, s{S_I}, 7")
    a(f"v_add_u32 v9, s{T3}, v9")
    vm.issue("x", f"buffer_load_dwordx4 {vr(VX,4)}, v9, {sr(R_X,4)}, 0 offen")

def final():
    a.label("L_final")
    a.c("==== final epilogue (all waves) ====")
    P, Y, ST, XF, YF, XN = 16, 48, 52, 56, 72, 80
    a("v_lshrrev_b32 v4, 3, v0")
    a("v_and_b32 v5, 7, v0")
    a("v_and_b32 v6, 31, v4")
    a("v_mul_u32_u24 v6, 272, v6")
    a("v_lshl_add_u32 v6, v5, 5, v6")
    a("v_lshrrev_b32 v7, 5, v4")
    a(f"v_mul_u32_u24 v7, {SLOT}, v7")
    a("v_add_u32 v6, v6, v7")
    a("v_mul_u32_u24 v7, 144, v4")
    a("v_lshl_add_u32 v7, v5, 4, v7")
    a(f"v_add_u32 v7, {L_YT}, v7")
    a(f"s_lshl_b32 s{T0}, s{S_B}, 9")
    a(f"s_add_u32 s{T0}, s{T0}, {L_STAT}")
    a(f"v_lshl_add_u32 v8, v4, 3, s{T0}")
    a(f"ds_read_b64 {vr(ST,2)}, v8")
    for p in range(4): unpack(XF + 2 * p, VX + p)
    a("s_waitcnt lgkmcnt(0)")
    a(f"v_mul_f32 v{ST+2}, 0x{NLN2:x}, v{ST+1}")
    a(f"v_mov_b32 v90, v{ST+1}")
    a(f"v_mul_f32 v88, v{ST}, v{ST+2}")
    barrier()
    a(f"ds_read_b128 {vr(Y,4)}, v7")
    for w in range(4):
        a(f"ds_read_b128 {vr(P+8*w,4)}, v6 offset:{w*12288}")
        a(f"ds_read_b128 {vr(P+8*w+4,4)}, v6 offset:{w*12288+16}")
    for p in range(4):
        a(f"v_pk_fma_f32 {vr(XN+2*p,2)}, {vr(XF+2*p,2)}, {vr(ST+2,2)}, v[88:89] op_sel_hi:[1,0,0] neg_lo:[0,0,1] neg_hi:[0,0,1]")
    a("s_waitcnt lgkmcnt(8)")
    for p in range(4): unpack(YF + 2 * p, Y + p)
    for p in range(4):
        a(f"v_pk_mul_f32 {vr(XN+2*p,2)}, {vr(XN+2*p,2)}, {vr(YF+2*p,2)}")
    a("s_waitcnt lgkmcnt(4)")
    for p in range(4): a(f"v_pk_add_f32 {vr(P+2*p,2)}, {vr(P+2*p,2)}, {vr(P+8+2*p,2)}")
    a("s_waitcnt lgkmcnt(0)")
    for p in range(4): a(f"v_pk_add_f32 {vr(P+16+2*p,2)}, {vr(P+16+2*p,2)}, {vr(P+24+2*p,2)}")
    for p in range(4): a(f"v_pk_add_f32 {vr(P+2*p,2)}, {vr(P+2*p,2)}, {vr(P+16+2*p,2)}")
    for p in range(4): a(f"v_pk_mul_f32 {vr(P+2*p,2)}, {vr(P+2*p,2)}, v[90:91] op_sel_hi:[1,0]")
    P1 = P + 8
    for p in range(4):
        a(f"v_exp_f32 v{P1+2*p}, v{P+2*p}")
        a(f"v_exp_f32 v{P1+2*p+1}, v{P+2*p+1}")
        a(f"v_pk_mul_f32 {vr(XN+2*p,2)}, {vr(XN+2*p,2)}, {vr(P+2*p,2)}")
    for p in range(4): a(f"v_pk_add_f32 {vr(P1+2*p,2)}, {vr(P1+2*p,2)}, 1.0 op_sel_hi:[1,0]")
    for p in range(8): a(f"v_rcp_f32 v{P1+p}, v{P1+p}")
    for p in range(4):
        a(f"v_pk_fma_f32 {vr(XF+2*p,2)}, {vr(XN+2*p,2)}, {vr(P1+2*p,2)}, {vr(XF+2*p,2)}")
    for p in range(4):
        a(f"v_cvt_pk_bf16_f32 v{Y+p}, v{XF+2*p}, v{XF+2*p+1}")
    a(f"buffer_store_dwordx4 {vr(Y,4)}, v9, {sr(R_OUT,4)}, 0 offen")
    if OPT.prof:
        a(f"s_memtime {sr(R_K,2)}")
        a(f"s_memrealtime {sr(T1,2)}")
        a("s_waitcnt lgkmcnt(0)")
        a(f"s_lshl_b32 s{T3}, s2, 3")
        a(f"s_add_u32 s{T3}, s{T3}, s{S_WAVE}")
        a(f"s_lshl_b32 s{T3}, s{T3}, 7")
        a(f"s_add_u32 s{T3}, s{T3}, {WS_PROF}")
        for i in range(12):
            a(f"s_sub_u32 s{T4}, s{STAMP0+2*i}, s{S_ST0}")
            a(f"v_mov_b32 v{16+i}, s{T4}")
        a(f"s_sub_u32 s{T4}, s{R_K}, s{S_ST0}")
        a(f"v_mov_b32 v28, s{T4}")
        a(f"v_mov_b32 v29, s{S_RT0}")
        a(f"v_mov_b32 v30, s{T1}")
        a("v_mov_b32 v31, 0")
        a("s_mov_b64 exec, 1")
        for i in range(4):
            a(f"buffer_store_dwordx4 {vr(16+4*i,4)}, off, {sr(R_WS,4)}, s{T3} offset:{16*i}")
    a.label("L_end")
    a("s_endpgm")

VXO = 16
VWO = 20
VTO = 24
VTD = 25
VPO = 26
KR = 48
VR_ = 68
TP = 76
TF = 92
KF = 124
A0 = 132
A1 = 140
HL = 148
HS = 172
PF = 188
GA = 208

def prep_loads(vm):
    a("v_lshrrev_b32 v4, 3, v1")
    a(f"s_lshl_b32 s{T0}, s{S_J}, 6")
    a(f"s_lshl_b32 s{T1}, s{S_LW}, 4")
    a(f"s_add_u32 s{T0}, s{T0}, s{T1}")
    a(f"s_sub_u32 s{T0}, s{T0}, 3")
    a(f"v_lshl_add_u32 v4, v4, 1, s{T0}")
    a("v_lshlrev_b32 v4, 10, v4")
    a("v_and_b32 v5, 7, v1")
    a("v_lshl_add_u32 v4, v5, 4, v4")
    a(f"s_lshl_b32 s{T0}, s{S_XCD}, 7")
    a(f"v_add_u32 v4, s{T0}, v4")
    for i in range(5):
        vm.issue("P", f"buffer_load_dwordx4 {vr(KR+4*i,4)}, v4, {sr(R_K,4)}, 0 offen {OPT.nt_k}")
        if i >= 3:
            vm.issue("P", f"buffer_load_dwordx4 {vr(VR_+4*(i-3),4)}, v4, {sr(R_V,4)}, 0 offen {OPT.nt_v}")
        if i < 4: a("v_add_u32 v4, 1024, v4")
    a(f"s_mov_b32 m0, {L_TAPS}")
    a("v_lshlrev_b32 v4, 4, v1")
    a(f"s_lshl_b32 s{T0}, s{S_XCD}, 9")
    vm.issue("P", f"buffer_load_dwordx4 v4, {sr(R_SH,4)}, s{T0} offen lds")

def prep_compute():
    a("v_and_b32 v5, 7, v1")
    a("v_lshlrev_b32 v4, 6, v5")
    a(f"v_add_u32 v6, {L_TAPS}, v4")
    for q in range(4):
        a(f"ds_read_b128 {vr(TP+4*q,4)}, v6 offset:{16*q}")
    a("v_mul_u32_u24 v7, 1040, v5")
    a("v_lshrrev_b32 v4, 3, v1")
    a(f"s_lshl_b32 s{T0}, s{S_LW}, 5")
    a(f"s_sub_u32 s{T0}, {L_SCR + 124}, s{T0}")
    a("v_lshlrev_b32 v4, 2, v4")
    a("v_sub_u32 v7, v7, v4")
    a(f"v_add_u32 v7, s{T0}, v7")
    a("s_waitcnt lgkmcnt(0)")
    for dd in range(8):
        a(f"v_lshlrev_b32 v{TF+dd}, 16, v{TP+2*dd}")
        a(f"v_and_b32 v{TF+8+dd}, 0xffff0000, v{TP+2*dd}")
        a(f"v_lshlrev_b32 v{TF+16+dd}, 16, v{TP+2*dd+1}")
        a(f"v_and_b32 v{TF+24+dd}, 0xffff0000, v{TP+2*dd+1}")
    for i in range(5):
        for p in range(4): unpack(KF + 2 * p, KR + 4 * i + p)
        for tt, acc in ((0, A0), (1, A1)):
            j = 3 + tt - i
            if j < 0 or j > 3: continue
            for p in range(8):
                a(f"v_{'mul' if j == 3 else 'fmac'}_f32 v{acc+p}, v{KF+p}, v{TF+8*j+p}")
    for tt, acc in ((0, A0), (1, A1)):
        for p in range(4): unpack(KF + 2 * p, VR_ + 4 * tt + p)
        for p in range(8): a(f"v_mul_f32 v{acc+p}, v{acc+p}, v{KF+p}")
    for dd in range(8): a(f"v_cvt_pk_bf16_f32 v{KF+dd}, v{A1+dd}, v{A0+dd}")
    for dd in range(8): a(f"ds_write_b32 v7, v{KF+dd} offset:{128*dd}")

def prep_store(vm):
    a(f"s_mul_i32 s{T0}, s{S_LW}, {2*1040}")
    a(f"s_add_u32 s{T0}, s{T0}, {L_SCR}")
    a(f"v_lshl_add_u32 v4, v1, 4, s{T0}")
    a(f"ds_read_b128 {vr(KR,4)}, v4")
    a(f"ds_read_b128 {vr(KR+4,4)}, v4 offset:1040")
    a("v_lshrrev_b32 v4, 3, v1")
    a("v_lshlrev_b32 v4, 12, v4")
    a("v_and_b32 v5, 7, v1")
    a("v_lshl_add_u32 v4, v5, 4, v4")
    a(f"s_lshl_b32 s{T0}, s{S_XCD}, 18")
    a(f"s_lshl_b32 s{T1}, s{S_LW}, 16")
    a(f"s_add_u32 s{T0}, s{T0}, s{T1}")
    a(f"s_lshl_b32 s{T1}, s{S_J}, 7")
    a(f"s_sub_u32 s{T1}, {WS_UT + 4096 - 128}, s{T1}")
    a(f"s_add_u32 s{T0}, s{T0}, s{T1}")
    a(f"s_add_u32 s{T1}, s{T0}, 32768")
    a("s_waitcnt lgkmcnt(0)")
    vm.issue("S", f"buffer_store_dwordx4 {vr(KR,4)}, v4, {sr(R_WS,4)}, s{T0} offen sc1")
    vm.issue("S", f"buffer_store_dwordx4 {vr(KR+4,4)}, v4, {sr(R_WS,4)}, s{T1} offen sc1")

def fu_flag(vm):
    vm.wait("S")
    a(f"s_lshl_b32 s{T0}, s{S_XCD}, 2")
    a(f"s_add_u32 s{T0}, s{T0}, s{S_LW}")
    a(f"s_lshl_b32 s{T0}, s{T0}, 5")
    a(f"s_add_u32 s{T0}, s{T0}, s{S_J}")
    a(f"s_lshl_b32 s{T0}, s{T0}, 3")
    a(f"s_add_u32 s{T0}, s{T0}, {WS_FU}")
    flag_store(vm, PF, T0)

CSR = 28
def cs_read():
    a(f"s_lshr_b32 s{T0}, s{S_XCD}, 2")
    a(f"s_mul_i32 s{T0}, s{T0}, {SLOT}")
    a(f"s_bfe_u32 s{T1}, s{S_XCD}, 0x10001")
    a(f"s_lshl_b32 s{T1}, s{T1}, 13")
    a(f"s_add_u32 s{T0}, s{T0}, s{T1}")
    a(f"s_add_u32 s{T0}, s{T0}, s{S_LW1K}")
    a("v_lshrrev_b32 v5, 4, v1")
    a("v_lshlrev_b32 v6, 2, v5")
    a("v_and_b32 v7, 15, v1")
    a("v_xor_b32 v6, v6, v7")
    a("v_lshlrev_b32 v6, 4, v6")
    a("v_lshl_add_u32 v6, v5, 8, v6")
    a(f"v_add_u32 v6, s{T0}, v6")
    for mat in range(2):
        for ii in range(2):
            a(f"ds_read_b128 {vr(CSR+8*mat+4*ii,4)}, v6 offset:{16384*(mat+1)+4096*ii}")

def cs_sum():
    G, U, KT = GA, GA + 8, KF
    a("v_bfe_u32 v8, v1, 4, 1")
    a("v_lshlrev_b32 v8, 4, v8")
    a("v_lshl_add_u32 v8, v7, 5, v8")
    a("v_lshrrev_b32 v5, 5, v1")
    a("v_lshl_add_u32 v8, v5, 9, v8")
    a(f"s_add_u32 s{T0}, s{S_LW1K}, {L_CSP}")
    a(f"v_add_u32 v8, s{T0}, v8")
    for mat, acc in ((0, G), (1, U)):
        for p in range(4):
            unpack(acc + 2 * p, CSR + 8 * mat + p)
            unpack(KT + 2 * p, CSR + 8 * mat + 4 + p)
        for p in range(8): a(f"v_add_f32 v{acc+p}, v{acc+p}, v{KT+p}")
    a("s_nop 0")
    for j in range(8): a(f"v_permlane32_swap_b32 v{G+j}, v{U+j}")
    for p in range(8): a(f"v_add_f32 v{G+p}, v{G+p}, v{U+p}")
    a("s_nop 0")
    for j in range(4): a(f"v_permlane16_swap_b32 v{G+j}, v{G+4+j}")
    for p in range(4): a(f"v_add_f32 v{G+p}, v{G+p}, v{G+4+p}")
    a(f"ds_write_b128 v8, {vr(G,4)}")

def cs_publish(vm):
    a(f"s_lshl_b32 s{T0}, s{S_LW}, 8")
    a(f"s_add_u32 s{T0}, s{T0}, {L_CSP}")
    a(f"v_lshlrev_b32 v{PF+7}, 2, v1")
    a(f"v_add_u32 v4, s{T0}, v{PF+7}")
    for w in range(4): a(f"ds_read_b32 v{GA+w}, v4 offset:{1024*w}")
    a(f"s_lshl_b32 s{T2}, s{S_B}, 3")
    a(f"s_add_u32 s{T2}, s{T2}, s{S_I}")
    a(f"s_lshl_b32 s{T2}, s{T2}, 2")
    a(f"s_add_u32 s{T2}, s{T2}, s{S_LW}")
    a(f"s_lshl_b32 s{T2}, s{T2}, 4")
    a(f"s_add_u32 s{T2}, s{T2}, s{S_RB}")
    a(f"s_lshl_b32 s{T3}, s{T2}, 8")
    a(f"s_add_u32 s{T3}, s{T3}, {WS_CS}")
    a(f"s_lshl_b32 s{T4}, s{T2}, 3")
    a(f"s_add_u32 s{T4}, s{T4}, {WS_FCS}")
    a("s_waitcnt lgkmcnt(0)")
    a(f"v_add_f32 v{GA}, v{GA}, v{GA+1}")
    a(f"v_add_f32 v{GA+2}, v{GA+2}, v{GA+3}")
    a(f"v_add_f32 v{GA}, v{GA}, v{GA+2}")
    vm.issue("S1", f"buffer_store_dword v{GA}, v{PF+7}, {sr(R_WS,4)}, s{T3} offen sc1")

def cs_flag(vm):
    vm.wait("S1")
    flag_store(vm, PF, T4)

def cs_poll_addr():
    a(f"s_lshl_b32 s{T2}, s{S_B}, 3")
    a(f"s_add_u32 s{T2}, s{T2}, s{S_I}")
    a(f"s_lshl_b32 s{T2}, s{T2}, 2")
    a(f"s_add_u32 s{T2}, s{T2}, s{S_LW}")
    a(f"s_lshl_b32 s{T3}, s{T2}, 7")
    a(f"s_add_u32 s{T3}, s{T3}, {WS_FCS}")
    a(f"v_lshl_add_u32 v5, v1, 3, s{T3}")
    a(f"s_lshl_b32 s{T3}, s{S_RB}, 1")
    a(f"s_lshr_b32 s{T0}, s{S_LW}, 1")
    a(f"s_add_u32 s{T3}, s{T3}, s{T0}")
    a(f"s_lshl_b32 s{T3}, s{T3}, 7")
    a(f"s_add_u32 s{T3}, s{T3}, {WS_FST}")
    a(f"v_mov_b32 v4, s{T3}")
    a("v_cmp_gt_u32 vcc, 16, v1")
    a(f"s_lshl_b32 s{T2}, s{T2}, 12")
    a(f"s_add_u32 s{T2}, s{T2}, {WS_CS}")
    a(f"v_cndmask_b32 v{PF+6}, v4, v5, vcc")

def cs_gather(vm):
    a("v_lshlrev_b32 v4, 4, v1")
    for q in range(4):
        vm.issue("Cs", f"buffer_load_dwordx4 {vr(GA+4*q,4)}, v4, {sr(R_WS,4)}, s{T2} offen offset:{1024*q} sc1")
    a(f"s_lshl_b32 s{T0}, s{S_RB}, 10")
    a(f"s_lshl_b32 s{T1}, s{S_LW}, 8")
    a(f"s_add_u32 s{T0}, s{T0}, s{T1}")
    a(f"s_add_u32 s{T0}, s{T0}, {WS_ST}")
    a("v_and_b32 v2, 31, v1")
    a("v_lshlrev_b32 v2, 3, v2")
    vm.issue("Cs", f"buffer_load_dwordx2 {vr(PF+12,2)}, v2, {sr(R_WS,4)}, s{T0} offen sc1")

def cs_tables(vm):
    a(f"s_lshl_b32 s{T0}, s{S_LW}, 8")
    a(f"s_add_u32 s{T1}, s{T0}, {L_STAT}")
    a(f"v_add_u32 v2, s{T1}, v2")
    a("v_and_b32 v4, 15, v1")
    a("v_lshlrev_b32 v4, 4, v4")
    a("v_lshrrev_b32 v5, 4, v1")
    a("v_lshl_add_u32 v4, v5, 2, v4")
    a(f"s_add_u32 s{T1}, s{T0}, {L_CS}")
    a(f"v_add_u32 v4, s{T1}, v4")
    vm.wait("Cs")
    a(f"ds_write_b64 v2, {vr(PF+12,2)}")
    for j in range(4): a(f"v_add_f32 v{GA+j}, v{GA+j}, v{GA+4+j}")
    for j in range(4): a(f"v_add_f32 v{GA+8+j}, v{GA+8+j}, v{GA+12+j}")
    for j in range(4): a(f"v_add_f32 v{GA+j}, v{GA+j}, v{GA+8+j}")
    a("s_nop 1")
    a(f"v_permlane32_swap_b32 v{GA}, v{GA+2}")
    a(f"v_permlane32_swap_b32 v{GA+1}, v{GA+3}")
    a(f"v_add_f32 v{GA}, v{GA}, v{GA+2}")
    a(f"v_add_f32 v{GA+1}, v{GA+1}, v{GA+3}")
    a("s_nop 1")
    a(f"v_permlane16_swap_b32 v{GA}, v{GA+1}")
    a(f"v_add_f32 v{GA}, v{GA}, v{GA+1}")
    a(f"ds_write_b32 v4, v{GA}")

def ssm_loads(vm, rnd):
    if rnd == 0:
        a(f"s_and_b32 s{T0}, s{S_LW}, 1")
        a(f"s_lshl_b32 s{T0}, s{T0}, 11")
        a(f"v_lshl_add_u32 v{PF+2}, v1, 4, s{T0}")
    for q in range(3):
        vm.issue("H", f"buffer_load_dwordx4 {vr(HL+12*rnd+4*q,4)}, v{PF+2}, {sr(R_SSM,4)}, 0 offen offset:{1024*rnd+4*q} {OPT.nt_s}")

def h_shift(vm):
    vm.wait("H")
    for rnd in range(2):
        L0 = HL + 12 * rnd
        for i in range(4):
            a(f"v_alignbit_b32 v{HS+8*rnd+i}, v{L0+4+i}, v{L0+i}, 16")
            a(f"v_alignbit_b32 v{HS+8*rnd+4+i}, v{L0+8+i}, v{L0+4+i}, 16")

def h_write():
    a(f"s_lshr_b32 s{T0}, s{S_LW}, 1")
    a(f"s_mul_i32 s{T1}, s{T0}, {HCH}")
    a(f"s_add_u32 s{T1}, s{T1}, {L_HB + 32}")
    a(f"v_add_u32 v4, s{T1}, v{PF+2}")
    for rnd in range(2):
        L0 = HL + 12 * rnd
        src = [L0, HS + 8 * rnd, L0 + 4, HS + 8 * rnd + 4]
        for e in range(4):
            a(f"ds_write_b128 v4, {vr(src[e],4)} offset:{e*HCOPY+1024*rnd}")
    Z = TP
    for i in range(4): a(f"v_mov_b32 v{Z+i}, 0")
    a(f"s_mul_i32 s{T1}, s{T0}, 4608")
    a(f"s_add_u32 s{T1}, s{T1}, {L_UB + 4096}")
    a("v_and_b32 v5, 31, v1")
    a(f"v_lshl_add_u32 v5, v5, 4, s{T1}")
    a(f"ds_write_b128 v5, {vr(Z,4)}")
    skip = a.newlabel("L_hf")
    a(f"s_bitcmp1_b32 s{S_LW}, 0")
    a(f"s_cbranch_scc1 {skip}")
    Q = Z + 4
    for i in range(12): a(f"v_mov_b32 v{Q+i}, 0")
    a(f"v_lshlrev_b32 v{Q+3}, 16, v{HL}")
    a(f"v_mov_b32 v{Q+7}, v{HL}")
    a(f"v_lshlrev_b32 v{Q+10}, 16, v{HL}")
    a(f"v_mov_b32 v{Q+11}, v{HS}")
    a("v_subrev_u32 v4, 32, v4")
    a("s_mov_b64 exec, 1")
    for e in range(4):
        a(f"ds_write_b128 v4, {vr(Z,4)} offset:{e*HCOPY}")
        a(f"ds_write_b128 v4, {vr(Z if e == 0 else Q+4*(e-1),4)} offset:{e*HCOPY+16}")
    a("s_mov_b64 exec, -1")
    a.label(skip)

def fu_poll_addr():
    a(f"s_lshr_b32 s{T0}, s{S_CH}, 4")
    a(f"s_lshl_b32 s{T0}, s{T0}, 8")
    a(f"s_add_u32 s{T0}, s{T0}, {WS_FU}")
    a(f"v_and_b32 v{PF+3}, 31, v1")
    a(f"v_lshl_add_u32 v{PF+3}, v{PF+3}, 3, s{T0}")

UL = 48
def u_loads(vm):
    a(f"s_lshl_b32 s{T0}, s{S_CH}, 12")
    a("v_lshlrev_b32 v4, 4, v1")
    for q in range(4):
        vm.issue("U", f"buffer_load_dwordx4 {vr(UL+4*q,4)}, v4, {sr(R_WS,4)}, s{T0} offen offset:{1024*q} sc1")

def late_ptrs():
    for r, off in ((R_K, 8), (R_V, 16), (R_SH, 24), (R_SSM, 32), (S_EX, 40)):
        a(f"s_load_dwordx2 {sr(r,2)}, s[0:1], {off}")

def l_late_setup():
    a("s_waitcnt lgkmcnt(0)")
    a(f"s_lshl_b32 s{S_CH}, s{S_XCD}, 5")
    a(f"s_add_u32 s{S_CH}, s{S_CH}, s{S_J}")
    a(f"s_lshl_b32 s{T0}, s{S_CH}, 2")
    a(f"s_load_dword s{S_D}, {sr(S_EX,2)}, s{T0}")
    a(f"s_lshl_b32 s{S_CH}, s{S_CH}, 1")
    a(f"s_lshr_b32 s{T0}, s{S_LW}, 1")
    a(f"s_add_u32 s{S_CH}, s{S_CH}, s{T0}")
    a(f"s_lshl_b32 s{T0}, s{S_CH}, 12")
    a(f"s_add_u32 s{R_SSM}, s{R_SSM}, s{T0}")
    a(f"s_addc_u32 s{R_SSM+1}, s{R_SSM+1}, 0")
    w2_setup()
    a(f"s_mul_i32 s{T5}, s{S_LW}, 12288")

def l_main():
    vm = VM(a)
    a.label("L_lstart")
    a.c("==== L wave: GEMM1 loader ====")
    pol = OPT.nt_w
    a("v_lshrrev_b32 v4, 3, v1")
    a(f"s_lshl_b32 s{T0}, s{S_RB}, 7")
    a(f"s_lshl_b32 s{T1}, s{S_LW}, 3")
    a(f"s_add_u32 s{T0}, s{T0}, s{T1}")
    a(f"v_add_u32 v4, s{T0}, v4")
    a("v_lshlrev_b32 v4, 10, v4")
    a("v_lshrrev_b32 v5, 4, v1")
    a(f"s_and_b32 s{T1}, s{S_LW}, 1")
    a(f"s_lshl_b32 s{T1}, s{T1}, 2")
    a(f"v_add_u32 v6, s{T1}, v5")
    a("v_and_b32 v7, 7, v1")
    a("v_xor_b32 v6, v6, v7")
    a(f"v_lshl_add_u32 v{VXO}, v6, 4, v4")
    for ii in range(1, 4): a(f"v_add_u32 v{VXO+ii}, {32768*ii}, v{VXO}")
    a(f"s_lshl_b32 s{T1}, s{S_LW}, 2")
    a(f"v_add_u32 v4, s{T1}, v5")
    a("v_mul_u32_u24 v4, 3584, v4")
    a("v_lshlrev_b32 v6, 2, v5")
    a("v_and_b32 v7, 15, v1")
    a("v_xor_b32 v6, v6, v7")
    a("v_lshl_add_u32 v4, v6, 4, v4")
    a(f"s_lshl_b32 s{T1}, s{S_CB}, 8")
    a(f"v_add_u32 v{VWO}, s{T1}, v4")
    for ii in range(1, 4): a(f"v_add_u32 v{VWO+ii}, {16*3584*ii}, v{VWO}")
    if OPT.rot1 == 1:
        a(f"s_and_b32 s{S_R1}, s{S_RB}, 3")
        a(f"s_lshl_b32 s{S_R1}, s{S_R1}, 1")
        a(f"s_add_u32 s{S_R1}, s{S_R1}, s{S_I}")
    elif OPT.rot1 in (2, 4):
        a(f"s_add_u32 s{S_R1}, s{S_RB}, s{S_I}")
        a(f"s_and_b32 s{S_R1}, s{S_R1}, {OPT.rot1 - 1}")
        a(f"s_lshl_b32 s{S_R1}, s{S_R1}, {2 if OPT.rot1 == 2 else 1}")
    a("s_waitcnt lgkmcnt(0)")
    late_ptrs()
    def chunk(c, fill=()):
        fill = list(fill)
        per = -(-len(fill) // 12)
        sl = (c % 3) * SLOT
        if OPT.rot1:
            a(f"s_add_u32 s{S_OX}, s{S_R1}, {c}")
            a(f"s_and_b32 s{S_OX}, s{S_OX}, 7")
            a(f"s_mul_i32 s{S_OW}, s{S_OX}, {64*3584}")
            a(f"s_lshl_b32 s{S_OX}, s{S_OX}, 7")
        else:
            a(f"s_mov_b32 s{S_OX}, {c*128}")
            a(f"s_mov_b32 s{S_OW}, {c*64*3584}")
        for ii in range(4):
            for part, (voff, rs, so) in enumerate(((VXO, R_X, S_OX), (VWO, R_W1, S_OW), (VWO, R_W3, S_OW))):
                a(f"s_add_u32 m0, s{S_LW1K}, {sl + part*16384 + ii*4096}")
                a("s_nop 0")
                vm.issue(f"c{c}", f"buffer_load_dwordx4 v{voff+ii}, {sr(rs,4)}, s{so} offen {pol} lds")
                for ln in fill[:per]: a(ln)
                fill = fill[per:]
    def B(c):
        barrier(); stamp("L", f"B{c}")
    stamp("L", "first_dma")
    chunk(0)
    chunk(1)
    l_late_setup()
    vm.wait("c0"); stamp("L", "c0"); B(-1)
    read_nonce(PF + 4)
    chunk(2)
    vm.wait("c1"); B(0)
    cs_read()
    a("s_waitcnt lgkmcnt(0)")
    with capture() as pc: cs_sum()
    chunk(3, pc)
    vm.wait("c2", "lgkmcnt(0)"); B(1)
    cs_publish(vm)
    chunk(4); prep_loads(vm)
    vm.wait("c3"); B(2)
    vm.wait("P"); cs_flag(vm)
    with capture() as pc: prep_compute()
    chunk(5, pc)
    vm.wait("c4", "lgkmcnt(0)"); B(3)
    prep_store(vm); chunk(6)
    cs_poll_addr()
    vm.wait("c5"); B(4)
    poll_issue(vm, PF + 8, PF + 6, "P2")
    chunk(7)
    vm.wait("c6"); fu_flag(vm); stamp("L", "fu_flag"); B(5)
    poll_check(vm, PF + 8, PF + 6, "P2")
    stamp("L", "cs_seen")
    cs_gather(vm)
    ssm_loads(vm, 0); ssm_loads(vm, 1)
    fu_poll_addr()
    vm.wait("c7"); B(6)
    poll_issue(vm, PF + 8, PF + 3, "P3")
    a(f"s_mov_b32 s{S_KW}, s{S_ROT}")
    for s in range(6): w2_kstep(vm, s, "w0")
    cs_tables(vm)
    a("s_waitcnt lgkmcnt(0)")
    stamp("L", "pre_b7")
    B(7)
    poll_check(vm, PF + 8, PF + 3, "P3")
    stamp("L", "m_useen")
    u_loads(vm)
    for s in range(6, 12): w2_kstep(vm, s, "w0")
    h_shift(vm); h_write()
    a("v_lshlrev_b32 v4, 4, v1")
    vm.wait("U")
    stamp("L", "m_ugot")
    a("s_branch L_conv")

def spare():
    vm = VM(a)
    stamp_on[0] = False
    a.label("L_spare")
    a.c("==== spare work-group ====")
    XS, SU = 96, 28
    late_ptrs()
    a(f"s_and_b32 s{T0}, s{S_RB}, 3")
    a(f"s_lshl_b32 s{T0}, s{T0}, 19")
    a(f"s_lshl_b32 s{T1}, s{S_XCD}, 7")
    a(f"s_add_u32 s{T0}, s{T0}, s{T1}")
    a("v_lshlrev_b32 v6, 10, v0")
    a("v_lshrrev_b32 v4, 3, v0")
    a(f"s_lshl_b32 s{T1}, s{S_TB}, 6")
    a(f"v_add_u32 v4, s{T1}, v4")
    a("v_lshlrev_b32 v4, 10, v4")
    a("v_and_b32 v5, 7, v1")
    a("v_lshl_add_u32 v7, v5, 4, v4")
    a("s_waitcnt lgkmcnt(0)")
    if OPT.kvtouch:
        vm.issue("t", f"buffer_load_dword v25, v6, {sr(R_K,4)}, s{T0} offen {OPT.nt_k}")
        vm.issue("t", f"buffer_load_dword v26, v6, {sr(R_V,4)}, s{T0} offen {OPT.nt_k}")
    for kc in range(8):
        vm.issue("xs", f"buffer_load_dwordx4 {vr(XS+4*kc,4)}, v7, {sr(R_X,4)}, 0 offen offset:{128*kc}")
    nonce_code()
    a(f"s_mov_b32 s{S_ONES}, 0x3f803f80")
    for i in range(4): a(f"v_mov_b32 v{SU+i}, 0")
    a("v_lshrrev_b32 v8, 3, v0")
    a(f"s_lshl_b32 s{T0}, s{S_B}, 9")
    a(f"s_add_u32 s{T0}, s{T0}, {L_STAT}")
    a(f"v_lshl_add_u32 v8, v8, 3, s{T0}")
    vm.wait("xs")
    for i in range(32):
        a(f"v_dot2c_f32_bf16 v{SU+(i&1)}, s{S_ONES}, v{XS+i}")
        a(f"v_dot2c_f32_bf16 v{SU+2+(i&1)}, v{XS+i}, v{XS+i}")
    a("s_nop 2")
    a(f"v_add_f32 v{SU}, v{SU}, v{SU+1}")
    a(f"v_add_f32 v{SU+2}, v{SU+2}, v{SU+3}")
    for dpp in ("quad_perm:[1,0,3,2]", "quad_perm:[2,3,0,1]", "row_half_mirror"):
        a("s_nop 0")
        a(f"v_add_f32_dpp v{SU}, v{SU}, v{SU} {dpp} row_mask:0xf bank_mask:0xf")
        a("s_nop 0")
        a(f"v_add_f32_dpp v{SU+2}, v{SU+2}, v{SU+2} {dpp} row_mask:0xf bank_mask:0xf")
    a(f"v_mul_f32 v4, 0x3b000000, v{SU}")
    a(f"v_mul_f32 v6, 0x3b000000, v{SU+2}")
    a("v_fma_f32 v6, -v4, v4, v6")
    a("v_max_f32 v6, 0, v6")
    a("v_add_f32 v6, 0x3727c5ac, v6")
    a("v_rsq_f32 v5, v6")
    a(f"s_cmp_ge_u32 s{S_WAVE}, 4")
    a("ds_write_b64 v8, v[4:5]")
    a("s_waitcnt lgkmcnt(0)")
    barrier()
    a("s_cbranch_scc1 L_lspare")
    read_nonce(20)
    nojob = a.newlabel("L_nojob")
    a(f"s_cmp_lg_u32 s{S_WAVE}, 0")
    a(f"s_cbranch_scc1 {nojob}")
    a(f"v_lshl_add_u32 v5, v1, 3, s{T0}")
    a("ds_read_b64 v[6:7], v5")
    a(f"s_lshl_b32 s{T0}, s{S_TB}, 9")
    a(f"s_add_u32 s{T0}, s{T0}, {WS_ST}")
    a("v_lshlrev_b32 v5, 3, v1")
    a("s_waitcnt lgkmcnt(0)")
    a(f"buffer_store_dwordx2 v[6:7], v5, {sr(R_WS,4)}, s{T0} offen sc1")
    a(f"s_lshl_b32 s{T0}, s{S_TB}, 7")
    a(f"s_add_u32 s{T0}, s{T0}, {WS_FST}")
    a("s_waitcnt vmcnt(0)")
    flag_store(VM(a), 20, T0)
    a.label(nojob)
    barrier()
    a("s_branch L_cE")
    a.label("L_lspare")
    vm = VM(a)
    l_late_setup()
    prep_loads(vm)
    ssm_loads(vm, 0); ssm_loads(vm, 1)
    read_nonce(PF + 4)
    vm.wait("P")
    prep_compute()
    a("s_waitcnt lgkmcnt(0)")
    barrier()
    prep_store(vm)
    a(f"s_mov_b32 s{S_KW}, s{S_ROT}")
    for s in range(12): w2_kstep(vm, s, "w0")
    h_shift(vm); h_write()
    fu_flag(vm)
    fu_poll_addr()
    poll_issue(vm, PF + 8, PF + 3, "P3")
    poll_check(vm, PF + 8, PF + 3, "P3", sleep=16)
    u_loads(vm)
    vm.wait("U")
    stamp_on[0] = True

def l_conv():
    vm = VM(a)
    a.label("L_conv")
    a.c("==== L wave: long convolution ====")
    CA, CB, YA = 10, 11, 12
    FA = [64, 128]; FB = [96, 160]; ACC = 192
    a(f"s_lshr_b32 s{T0}, s{S_LW}, 1")
    a(f"s_mul_i32 s{T1}, s{T0}, 4608")
    a(f"s_add_u32 s{T1}, s{T1}, {L_UB}")
    a(f"v_add_u32 v5, s{T1}, v4")
    for q in range(4):
        a(f"ds_write_b128 v5, {vr(UL+4*q,4)} offset:{1024*q}")
    a("v_and_b32 v5, 15, v1")
    a("v_lshrrev_b32 v6, 4, v1")
    a("v_lshlrev_b32 v7, 1, v5")
    a("v_sub_u32 v7, v6, v7")
    a("v_add_u32 v7, 30, v7")
    a(f"v_lshl_add_u32 v{CB}, v7, 4, s{T1}")
    a("v_lshlrev_b32 v7, 2, v5")
    a("v_add_u32 v7, v7, v6")
    a("v_lshlrev_b32 v13, 3, v7")
    a(f"s_add_u32 s{T1}, s{T1}, 504")
    a(f"v_sub_u32 v{YA}, s{T1}, v13")
    a("v_add_u32 v5, 1, v5")
    a("v_and_b32 v7, 3, v5")
    a("v_sub_u32 v5, v5, v7")
    a("v_lshl_add_u32 v5, v6, 3, v5")
    a("v_lshlrev_b32 v5, 1, v5")
    a(f"v_mul_u32_u24 v7, {HCOPY}, v7")
    a(f"s_mul_i32 s{T1}, s{T0}, {HCH}")
    a(f"s_add_u32 s{T1}, s{T1}, {L_HB}")
    a(f"v_add3_u32 v{CA}, v5, v7, s{T1}")
    for r in range(ACC, ACC + 16): a(f"v_mov_b32 v{r}, 0")
    a(f"s_mov_b32 s{T2}, 0")
    a(f"s_bitcmp1_b32 s{S_LW}, 0")
    a("s_waitcnt vmcnt(0) lgkmcnt(0)")
    stamp("L", "pre_E")
    a("s_cbranch_scc1 L_convB")
    for cls, nset in ((0, (0, 3, 4, 7)), (1, (1, 2, 5, 6))):
        lab = "L_convA" if cls == 0 else "L_convB"
        if cls == 1: a.label(lab)
        nmax = max(nset)
        def reads(b, extra):
            R = []
            for k in range(nmax + 1):
                R.append(f"ds_read_b64 {vr(FA[b]+4*k,2)}, v{CA} offset:{512*k+extra}")
                R.append(f"ds_read_b64 {vr(FA[b]+4*k+2,2)}, v{CA} offset:{512*k+8+extra}")
                R.append(f"ds_read_b128 {vr(FB[b]+4*k,4)}, v{CB} offset:{512*(7-k)+extra}")
            return R
        barrier()
        for r in reads(0, 0): a(r)
        a(".p2align 3")
        a.label(lab + "_loop")
        for b in range(2):
            nxt = reads(b ^ 1, 64 * (b + 1))
            a("s_waitcnt lgkmcnt(0)")
            mf = [(ti, n, s1) for s1 in range(8) for ti, n in enumerate(nset) if s1 <= n]
            per = -(-len(nxt) // (len(mf) - 4))
            k = 0
            for idx, (ti, n, s1) in enumerate(mf):
                d = vr(ACC + 4 * ti, 4)
                a(f"v_mfma_f32_16x16x32_bf16 {d}, {vr(FA[b]+4*s1,4)}, {vr(FB[b]+4*(n-s1),4)}, {d}")
                for r in nxt[k:k + per]: a(r)
                k += per
                if b == 1 and idx == len(mf) - 2:
                    a(f"v_add_u32 v{CA}, 128, v{CA}")
                    a(f"v_add_u32 v{CB}, 128, v{CB}")
                    a(f"s_add_u32 s{T2}, s{T2}, 1")
                    a(f"s_cmp_lt_u32 s{T2}, 4")
        a(f"s_cbranch_scc1 {lab}_loop")
        a("s_waitcnt lgkmcnt(0)")
        for ti, n in enumerate(nset):
            a(f"ds_read_b64 {vr(32+2*ti,2)}, v{YA} offset:{512*(7-n)}")
        if cls == 0: a("s_branch L_convE")
    a.label("L_convE")
    stamp("L", "conv_end")
    a(f"s_bitcmp1_b32 s{S_CH}, 0")
    a(f"s_cselect_b32 s{T3}, 0, 16")
    a(f"s_lshl_b32 s{T3}, s{S_D}, s{T3}")
    a(f"s_and_b32 s{T3}, s{T3}, 0xffff0000")
    a(f"s_lshl_b32 s{T0}, s{S_LW}, 11")
    a(f"s_add_u32 s{T0}, s{T0}, {L_YS}")
    a(f"v_add_u32 v13, s{T0}, v13")
    a(f"v_lshl_add_u32 v14, v1, 4, s{T0}")
    a("s_waitcnt lgkmcnt(0)")
    for ti in range(4):
        u = 32 + 2 * ti; t = 40 + 4 * ti; y = ACC + 4 * ti
        a(f"v_and_b32 v{t}, 0xffff0000, v{u+1}")
        a(f"v_lshlrev_b32 v{t+1}, 16, v{u+1}")
        a(f"v_and_b32 v{t+2}, 0xffff0000, v{u}")
        a(f"v_lshlrev_b32 v{t+3}, 16, v{u}")
        for r in range(4): a(f"v_fmac_f32 v{y+r}, s{T3}, v{t+r}")
        a(f"v_cvt_pk_bf16_f32 v{u}, v{y}, v{y+1}")
        a(f"v_cvt_pk_bf16_f32 v{u+1}, v{y+2}, v{y+3}")
        a(f"ds_write_b64 v13, {vr(u,2)} offset:{512*ti}")
    a(f"s_and_b32 s{T1}, s{S_LW}, 1")
    a(f"s_lshl_b32 s{T2}, s{T1}, 1")
    a(f"s_sub_u32 s{T2}, 3, s{T2}")
    a("v_lshrrev_b32 v5, 5, v1")
    a(f"v_mul_u32_u24 v5, s{T2}, v5")
    a(f"v_add_u32 v5, s{T1}, v5")
    a("v_lshlrev_b32 v5, 9, v5")
    a("v_and_b32 v6, 31, v1")
    a("v_lshl_add_u32 v5, v6, 4, v5")
    a(f"s_lshl_b32 s{T0}, s{S_CH}, 12")
    a(f"s_add_u32 s{T0}, s{T0}, {WS_Y}")
    a("s_waitcnt lgkmcnt(0)")
    a("ds_read_b128 v[40:43], v14")
    a("ds_read_b128 v[44:47], v14 offset:1024")
    a("s_waitcnt lgkmcnt(0)")
    a(f"buffer_store_dwordx4 v[40:43], v5, {sr(R_WS,4)}, s{T0} offen sc1")
    a(f"buffer_store_dwordx4 v[44:47], v5, {sr(R_WS,4)}, s{T0} offen offset:2048 sc1")
    final_x_load(vm)
    a(f"s_lshl_b32 s{T0}, s{S_XCD}, 9")
    a(f"s_lshl_b32 s{T2}, s{S_J}, 2")
    a(f"s_add_u32 s{T0}, s{T0}, s{T2}")
    a(f"s_add_u32 s{T0}, s{T0}, {WS_FY}")
    a("v_lshlrev_b32 v17, 7, v1")
    a(f"v_mov_b32 v16, s{S_NONCE}")
    a(f"v_mov_b32 v18, {L_YCNT}")
    a("v_mov_b32 v19, 1")
    a(f"s_mov_b32 s{S_EX}, s{S_NONCE}")
    a(f"s_mov_b32 s{S_EX+1}, s{S_NONCE}")
    vm.waitall()
    a("s_mov_b64 exec, 1")
    a("ds_add_rtn_u32 v19, v18, v19")
    a("s_waitcnt lgkmcnt(0)")
    a(f"v_readfirstlane_b32 s{T2}, v19")
    a("s_mov_b64 exec, 15")
    a(f"s_cmp_lg_u32 s{T2}, 3")
    a("s_cbranch_scc1 L_ynopub")
    a(f"buffer_store_dword v16, v17, {sr(R_WS,4)}, s{T0} offen sc1")
    a.label("L_ynopub")
    a("s_mov_b64 exec, -1")
    stamp("L", "y_flag")
    a(f"s_lshl_b32 s{T4}, s{S_I}, 2")
    a(f"s_add_u32 s{T4}, s{T4}, s{S_LW}")
    a(f"s_lshl_b32 s{T4}, s{T4}, 7")
    a(f"s_add_u32 s{T4}, s{T4}, {WS_FY}")
    a("v_lshrrev_b32 v4, 3, v1")
    a("v_lshlrev_b32 v4, 12, v4")
    a("v_and_b32 v5, 7, v1")
    a("v_lshl_add_u32 v4, v5, 4, v4")
    a(f"s_lshl_b32 s{T2}, s{S_I}, 18")
    a(f"s_lshl_b32 s{T3}, s{S_LW}, 16")
    a(f"s_add_u32 s{T2}, s{T2}, s{T3}")
    a(f"s_lshl_b32 s{T3}, s{S_TB}, 7")
    a(f"s_add_u32 s{T2}, s{T2}, s{T3}")
    a(f"s_add_u32 s{T2}, s{T2}, {WS_Y}")
    a(f"s_add_u32 s{T3}, s{T2}, 32768")
    spoll(S_PB, T4, 32, 1)
    stamp("L", "y_seen")
    vm.issue("Y", f"buffer_load_dwordx4 v[40:43], v4, {sr(R_WS,4)}, s{T2} offen sc1")
    vm.issue("Y", f"buffer_load_dwordx4 v[44:47], v4, {sr(R_WS,4)}, s{T3} offen sc1")
    a("v_bfe_u32 v4, v1, 2, 2")
    a("v_lshlrev_b32 v4, 7, v4")
    a("v_lshrrev_b32 v5, 4, v1")
    a("v_lshl_add_u32 v4, v5, 5, v4")
    a("v_and_b32 v5, 3, v1")
    a("v_lshl_add_u32 v4, v5, 3, v4")
    a(f"s_lshl_b32 s{T0}, s{S_LW}, 11")
    a(f"s_add_u32 s{T0}, s{T0}, {L_YS}")
    a(f"v_add_u32 v4, s{T0}, v4")
    a("v_mul_u32_u24 v5, 144, v1")
    a(f"s_lshl_b32 s{T0}, s{S_LW}, 5")
    a(f"s_add_u32 s{T0}, s{T0}, {L_YT}")
    a(f"v_add_u32 v5, s{T0}, v5")
    vm.waitall()
    a("ds_write_b128 v14, v[40:43]")
    a("ds_write_b128 v14, v[44:47] offset:1024")
    a("s_waitcnt lgkmcnt(0)")
    for dd in range(4):
        a(f"ds_read_b64_tr_b16 {vr(48+2*dd,2)}, v4 offset:{512*dd}")
    a("s_waitcnt lgkmcnt(0)")
    a("ds_write_b128 v5, v[48:51]")
    a("ds_write_b128 v5, v[52:55] offset:16")
    stamp("L", "pre_final")

def build():
    prologue()
    c_start()
    c_g1()
    c_g2()
    l_main()
    spare()
    l_conv()
    final()
    a.label("L_code_end")
    hdr = open("recurrent_scan__ssm_conv_h3__glu_gated_swiglu__prompt.s.ref").read().split("; Override launch")[0]
    return f"""{hdr}; Generated by gen/gen.py (hand-written generator; one fused persistent kernel).
; @launch grid=(256,1,1) block=(512,1,1) lds={LDS_BYTES}
.amdgcn_target "amdgcn-amd-amdhsa--gfx950"
.text
.globl {NAME}
.p2align 8
.type {NAME},@function
{NAME}:
{a.text()}
.section .rodata,"a"
.p2align 6
.amdhsa_kernel {NAME}
  .amdhsa_next_free_vgpr 256
  .amdhsa_next_free_sgpr 102
  .amdhsa_accum_offset 256
  .amdhsa_group_segment_fixed_size 0
  .amdhsa_kernarg_size 104
  .amdhsa_user_sgpr_count 2
  .amdhsa_user_sgpr_kernarg_segment_ptr 1
  .amdhsa_system_sgpr_workgroup_id_x 1
  .amdhsa_float_denorm_mode_32 3
.end_amdhsa_kernel
"""

if __name__ == "__main__":
    out = sys.argv[1]
    for kv in sys.argv[2:]:
        k, v = kv.split("=")
        cur = getattr(OPT, k)
        setattr(OPT, k, type(cur)(int(v)) if isinstance(cur, (bool, int)) else v)
    s = build()
    open(out, "w").write(s)
    if OPT.prof:
        import json
        json.dump(nstamp, open(out + ".stamps.json", "w"))
```

```python
import sys
from asmlib import Asm, VM, vr, sr

NAME = "recurrent_scan__ssm_conv_h3__glu_gated_swiglu__prompt_kernel"

class Opt:
    prof = False
    x_bst = False
    nt_k = ""
    nt_v = ""
    nt_s = ""
    nt_w = ""
    code_pf = True
    prio = False
    cprio = 2
    pairswap = False
    sp_delay = True
    w2warm = False
    w2t_at = 4
    lprio = 0
    late_st = False
    kvtouch = False
    touch = True
    touch_at = 2
    w2touch = False
    ring_early = False
    sp_w2 = True
    rot1 = 8
    rot2 = 2
    x_g2st = False
    x_hmode = 0
    x_hst = "sc1"
    x_mid = False
    h_ld = "sc1"
    nbk = 6
OPT = Opt()

WS_UT = 0
WS_Y = 2 << 20
WS_H = 4 << 20
WS_CS = 12 << 20
WS_ST = WS_CS + (256 << 10)
WS_FU = WS_ST + (16 << 10)
WS_FCS = WS_FU + (16 << 10)
WS_FST = WS_FCS + (16 << 10)
WS_FH = WS_FST + (16 << 10)
WS_FY = WS_FH + (16 << 10)
WS_PROF = 13 << 20
WS_SIZE = 16 << 20

SLOT = 49152
L_HB = 98304
HCOPY = 4160
HCH = 4 * HCOPY
L_UB = L_HB + 2 * HCH
L_YT = L_UB + 2 * 4608
L_XCH = L_YT
L_YS = L_HB
L_SCR = 147456
L_CSP = L_SCR + 8320
L_TAPS = L_CSP + 4096
L_STAT = L_TAPS + 1024
L_CS = L_STAT + 1024
L_NONCE = L_CS + 1024
L_YCNT = L_NONCE + 8
L_ECNT = L_NONCE + 12
L_RING = L_NONCE + 16
L_PAIR = L_NONCE + 32
L_YOK = L_NONCE + 40
L_SP1 = L_NONCE + 44
L_SP2 = L_NONCE + 48
L_STP = L_NONCE + 64
LDS_BYTES = 163840
assert L_XCH + 16384 <= L_TAPS and L_STP + 64 <= LDS_BYTES

S_WAVE, S_XCD, S_J, S_RB, S_I = 3, 4, 5, 6, 7
STAMP0 = 8
NSTAMP = 10
S_ROT, S_SPIN = 32, 33
S_B, S_CB = 34, 35
R_X, R_WS, R_OUT, R_W1, R_W3, R_K, R_V, R_SH, R_SSM, R_DBG, R_WT, R_W2 = 36, 40, 44, 48, 52, 56, 60, 64, 68, 72, 76, 28
S_PB = 48
S_PC = 56
S_TB, S_LW = 80, 81
S_NONCE = 82
S_D = 84
T0, T1, T2, T3, T4, T5 = 85, 86, 87, 88, 89, 90
S_LW1K = 91
S_OX, S_OW = 92, 93
S_CH = 94
S_ONES = 95
S_R1 = 95
S_G = 76
S_EX = 96
S_ST0 = 98
S_RT0 = 100
SPIN_MAX = 0x40000
NLOG2E = 0xbfb8aa3b
NLN2 = 0xbf317218

a = Asm()
nstamp = {}

class capture:
    def __enter__(self):
        self.saved = a.L; a.L = []; return a.L
    def __exit__(self, *e):
        a.L = self.saved

stamp_on = [True]
def stamp(role, name):
    if not OPT.prof or not stamp_on[0]: return
    if role == "L" and OPT.x_bst != name.startswith("B"): return
    if role == "L" and name.startswith("m_") and not OPT.x_mid: return
    if role == "L" and OPT.x_mid and name in ("first_dma", "c0", "fu_flag", "m_csseen", "m_b6", "m_w2iss", "m_useen"): return
    if role == "C" and OPT.x_g2st and not name.startswith(("k", "h_", "g2", "E")): return
    if role == "C" and not OPT.x_g2st and name.startswith("k"): return
    k = nstamp.setdefault(role, [])
    idx = len(k)
    assert idx < NSTAMP, "too many stamps"
    k.append(name)
    a(f"s_memtime {sr(STAMP0 + 2 * idx, 2)}")

def barrier():
    a("s_barrier")

def read_nonce(vtmp):
    a(f"v_mov_b32 v{vtmp+2}, {L_NONCE}")
    a(f"ds_read_b64 {vr(vtmp,2)}, v{vtmp+2}")
    a("s_waitcnt lgkmcnt(0)")
    a(f"v_readfirstlane_b32 s{S_NONCE}, v{vtmp}")
    a(f"v_readfirstlane_b32 s{S_NONCE+1}, v{vtmp+1}")

def flag_store(vm, vtmp, s_off, tag="flag"):
    a(f"v_mov_b32 v{vtmp}, s{S_NONCE}")
    a(f"v_mov_b32 v{vtmp+1}, s{S_NONCE+1}")
    a("s_mov_b64 exec, 1")
    vm.issue(tag, f"buffer_store_dwordx2 {vr(vtmp,2)}, off, {sr(R_WS,4)}, s{s_off} sc1")
    a("s_mov_b64 exec, -1")

def poll_issue(vm, vdst, voff, tag):
    vm.issue(tag, f"buffer_load_dwordx2 {vr(vdst,2)}, v{voff}, {sr(R_WS,4)}, 0 offen sc1")

def poll_check(vm, vdst, voff, tag, sleep=2):
    ok = a.newlabel("L_pok"); again = a.newlabel("L_pagain")
    vm.wait(tag)
    a(f"v_cmp_ne_u64 vcc, {sr(S_NONCE,2)}, {vr(vdst,2)}")
    a(f"s_cbranch_vccz {ok}")
    a(f"s_mov_b32 s{S_SPIN}, {SPIN_MAX}")
    a.label(again)
    a(f"s_sub_u32 s{S_SPIN}, s{S_SPIN}, 1")
    a(f"s_cbranch_scc1 {ok}")
    a(f"s_sleep {sleep}")
    a(f"buffer_load_dwordx2 {vr(vdst,2)}, v{voff}, {sr(R_WS,4)}, 0 offen sc1")
    a("s_waitcnt vmcnt(0)")
    a(f"v_cmp_ne_u64 vcc, {sr(S_NONCE,2)}, {vr(vdst,2)}")
    a(f"s_cbranch_vccnz {again}")
    a.label(ok)

def spoll_issue(pb, s_off, nd):
    a(f"s_load_dwordx16 {sr(pb,16)}, {sr(R_WS,2)}, s{s_off} glc")
    if nd > 16:
        a(f"s_add_u32 s{T0}, s{s_off}, 64")
        a(f"s_load_dwordx16 {sr(pb+16,16)}, {sr(R_WS,2)}, s{T0} glc")

def spoll_test(pb, nd, words):
    ref = S_NONCE if words == 2 else S_EX
    for p in range(nd // 2):
        a(f"s_xor_b64 {sr(pb+2*p,2)}, {sr(pb+2*p,2)}, {sr(ref,2)}")
        if p: a(f"s_or_b64 {sr(pb,2)}, {sr(pb,2)}, {sr(pb+2*p,2)}")

def spoll(pb, s_off, n, words, sleep=4):
    ok = a.newlabel("L_sok"); again = a.newlabel("L_sagain")
    nd = n * words
    a(f"s_mov_b32 s{S_SPIN}, {SPIN_MAX}")
    a.label(again)
    spoll_issue(pb, s_off, nd)
    a(f"s_sub_u32 s{S_SPIN}, s{S_SPIN}, 1")
    a(f"s_cbranch_scc1 {ok}")
    a("s_waitcnt lgkmcnt(0)")
    spoll_test(pb, nd, words)
    a(f"s_cbranch_scc0 {ok}")
    a(f"s_sleep {sleep}")
    a(f"s_branch {again}")
    a.label(ok)

def lds_add(addr, v0_, v1_):
    a(f"v_mov_b32 v{v0_}, {addr}" if isinstance(addr, int) else f"v_mov_b32 v{v0_}, s{addr[0]}")
    a(f"v_mov_b32 v{v1_}, 1")
    a("s_mov_b64 exec, 1")
    a(f"ds_add_u32 v{v0_}, v{v1_}")
    a("s_mov_b64 exec, -1")

def lds_wait(addr, val, v0_, v1_):
    ok = a.newlabel("L_lok"); again = a.newlabel("L_lagain")
    a(f"v_mov_b32 v{v0_}, {addr}" if isinstance(addr, int) else f"v_mov_b32 v{v0_}, s{addr[0]}")
    a.label(again)
    a(f"ds_read_b32 v{v1_}, v{v0_}")
    a("s_waitcnt lgkmcnt(0)")
    a(f"v_cmp_eq_u32 vcc, {val}, v{v1_}")
    a(f"s_cbranch_vccnz {ok}")
    a("s_sleep 1")
    a(f"s_branch {again}")
    a.label(ok)

def unpack(dst, src):
    a(f"v_lshlrev_b32 v{dst}, 16, v{src}")
    a(f"v_and_b32 v{dst+1}, 0xffff0000, v{src}")

def prologue():
    a("s_cmp_ge_u32 s2, 256")
    a("s_cbranch_scc1 L_end")
    for r, off in ((R_X, 0), (R_W1, 56), (R_W3, 64), (R_DBG, 88), (R_WS, 96), (R_W2, 72), (R_OUT, 80)):
        a(f"s_load_dwordx2 {sr(r,2)}, s[0:1], {off}")
    if OPT.prof:
        a(f"s_memtime {sr(S_ST0,2)}")
        a(f"s_memrealtime {sr(S_RT0,2)}")
    a("v_lshrrev_b32 v2, 6, v0")
    a("v_and_b32 v1, 63, v0")
    a(f"s_and_b32 s{S_XCD}, s2, 7")
    a(f"v_readfirstlane_b32 s{S_WAVE}, v2")
    a(f"s_lshr_b32 s{S_J}, s2, 3")
    a(f"s_and_b32 s{S_I}, s{S_J}, 7")
    if OPT.code_pf:
        skip = a.newlabel("L_nopf")
        a(f"s_cmp_lg_u32 s{S_WAVE}, 1")
        a(f"s_cbranch_scc1 {skip}")
        a(f"s_getpc_b64 {sr(T3,2)}")
        a.label("L_pcref")
        a("v_and_b32 v2, 31, v0")
        a(f"v_lshl_add_u32 v2, s{S_I}, 5, v2")
        a("v_lshlrev_b32 v2, 7, v2")
        a("v_min_u32 v2, L_code_end-L_pcref-4, v2")
        a(f"global_load_dword v24, v2, {sr(T3,2)}")
        a.label(skip)
    a(f"s_lshr_b32 s{T0}, s{S_XCD}, 1")
    a(f"s_and_b32 s{S_B}, s{S_XCD}, 1")
    a(f"s_lshr_b32 s{T1}, s{S_J}, 3")
    a(f"s_lshl_b32 s{S_RB}, s{T0}, 2")
    a(f"s_add_u32 s{S_RB}, s{S_RB}, s{T1}")
    a(f"s_mul_i32 s{S_CB}, s{S_B}, 7")
    a(f"s_add_u32 s{S_CB}, s{S_CB}, s{S_I}")
    a(f"s_lshl_b32 s{S_TB}, s{S_RB}, 1")
    a(f"s_add_u32 s{S_TB}, s{S_TB}, s{S_B}")
    a(f"s_and_b32 s{S_LW}, s{S_WAVE}, 3")
    a(f"s_lshl_b32 s{S_LW1K}, s{S_LW}, 10")
    for r, size in ((R_X, 2 << 20), (R_W1, 512 * 3584), (R_W3, 512 * 3584), (R_WS, WS_SIZE), (R_DBG, 256), (R_K, 2 << 20),
                    (R_V, 2 << 20), (R_SH, 4096), (R_SSM, 4096), (R_W2, 1792 * 1024), (R_OUT, 2 << 20)):
        a(f"s_mov_b32 s{r+2}, {size}")
        a(f"s_mov_b32 s{r+3}, 0x20000")
    if OPT.rot2:
        a(f"s_mul_i32 s{S_ROT}, s{S_I}, 7")
        a(f"s_lshr_b32 s{S_ROT}, s{S_ROT}, 1")
        if OPT.rot2 == 2:
            a(f"s_mul_i32 s{T1}, s{T1}, 7")
            a(f"s_add_u32 s{S_ROT}, s{S_ROT}, s{T1}")
            a(f"s_mul_i32 s{T1}, s{S_XCD}, 3")
            a(f"s_add_u32 s{S_ROT}, s{S_ROT}, s{T1}")
            for _ in range(2):
                a(f"s_cmp_ge_u32 s{S_ROT}, 28")
                a(f"s_cselect_b32 s{T1}, 28, 0")
                a(f"s_sub_u32 s{S_ROT}, s{S_ROT}, s{T1}")
    else:
        a(f"s_mov_b32 s{S_ROT}, 0")
    a(f"s_cmp_eq_u32 s{S_I}, 7")
    a("s_cbranch_scc1 L_spare")
    a(f"s_cmp_ge_u32 s{S_WAVE}, 4")
    a("s_cbranch_scc1 L_lstart")

def nonce_code():
    skip = a.newlabel("L_nskip"); poll = a.newlabel("L_npoll"); have = a.newlabel("L_nhave")
    a(f"s_cmp_lg_u32 s{S_WAVE}, 0")
    a(f"s_cbranch_scc1 {skip}")
    a("s_cmp_lg_u32 s2, 0")
    a(f"s_cbranch_scc1 {poll}")
    a(f"s_memrealtime {sr(T1,2)}")
    a("s_waitcnt lgkmcnt(0)")
    a(f"s_or_b32 s{T2}, s{T2}, 0x80000000")
    a(f"v_mov_b32 v4, s{T1}")
    a(f"v_mov_b32 v5, s{T2}")
    a("s_mov_b64 exec, 1")
    a(f"buffer_store_dwordx2 v[4:5], off, {sr(R_DBG,4)}, 0 sc1")
    a("s_mov_b64 exec, -1")
    a(f"s_branch {have}")
    a.label(poll)
    a(f"s_mov_b32 s{S_SPIN}, {SPIN_MAX}")
    a.label(poll + "b")
    a(f"buffer_load_dwordx2 v[4:5], off, {sr(R_DBG,4)}, 0 sc1")
    a(f"s_sub_u32 s{S_SPIN}, s{S_SPIN}, 1")
    a(f"s_cbranch_scc1 {have}")
    a("s_waitcnt vmcnt(0)")
    a("v_cmp_gt_i32 vcc, 0, v5")
    a(f"s_cbranch_vccz {poll}b")
    a.label(have)
    a(f"v_mov_b32 v6, {L_NONCE}")
    a("ds_write_b64 v6, v[4:5]")
    a("v_mov_b32 v4, 0")
    a("v_mov_b32 v5, 0")
    for o in (8, 16, 24, 32, 40, 48): a(f"ds_write_b64 v6, v[4:5] offset:{o}")
    a.label(skip)
assert T1 % 2 == 0 and T3 % 2 == 0

ACC1 = 128
def acc1(gu, m, n): return ACC1 + 16 * (4 * n + 2 * m + gu)
def abuf(b, m, gu): return 64 + 16 * b + 4 * (2 * m + gu)
def bbuf(b, n): return 96 + 8 * b + 4 * n
VA = 10
VB = 12

def c_g1_reads(ks, b):
    tr = lambda m, gu, jj: f"ds_read_b64_tr_b16 {vr(abuf(b,m,gu)+2*jj,2)}, v{VA+m} offset:{16384+gu*16384+(16*ks+4*jj)*256}"
    bb = lambda n: f"ds_read_b128 {vr(bbuf(b,n),4)}, v{VB+ks} offset:{4096*n}"
    return [[bb(0), tr(0,0,0), tr(0,0,1)], [tr(0,1,0), tr(0,1,1), tr(1,0,0)], [tr(1,0,1), tr(1,1,0), tr(1,1,1)], [bb(1)]]

def c_start():
    a.c("==== C wave: set-up ====")
    a("v_lshrrev_b32 v3, 5, v1")
    a("v_and_b32 v2, 31, v1")
    a(f"s_and_b32 s{T0}, s{S_WAVE}, 1")
    a(f"s_lshr_b32 s{T4}, s{S_WAVE}, 1")
    a("v_bfe_u32 v4, v1, 1, 3")
    a(f"s_lshl_b32 s{T2}, s{T0}, 13")
    a(f"v_lshl_add_u32 v5, v2, 7, s{T2}")
    for ks in range(4):
        a(f"v_add_u32 v6, {2*ks}, v3")
        a("v_xor_b32 v6, v6, v4")
        a(f"v_lshl_add_u32 v{VB+ks}, v6, 4, v5")
    a("v_bfe_u32 v4, v1, 2, 2")
    a("v_lshl_add_u32 v5, v3, 3, v4")
    a("v_lshlrev_b32 v5, 8, v5")
    a("v_bfe_u32 v6, v1, 4, 1")
    a("v_lshl_add_u32 v5, v6, 5, v5")
    a("v_and_b32 v6, 3, v1")
    a("v_lshl_add_u32 v5, v6, 3, v5")
    a(f"s_lshl_b32 s{T2}, s{T4}, 1")
    for m in range(2):
        a(f"s_add_u32 s{T3}, s{T2}, {m}")
        a(f"v_xor_b32 v6, s{T3}, v4")
        a(f"v_lshl_add_u32 v{VA+m}, v6, 6, v5")
    a("s_waitcnt lgkmcnt(0)")
    nonce_code()
    for r in range(ACC1, 256, 2):
        a(f"v_pk_mov_b32 {vr(r,2)}, 0, 0")
    a(f"s_lshr_b32 s{T1}, s{S_WAVE}, 1")
    a(f"s_mov_b32 s{T4}, 0")
    a(f"s_mov_b32 s{T5}, 0")
    a(f"s_mov_b32 s{S_OX}, {(-2*SLOT) & 0xffffffff}")
    a(f"s_mov_b32 s{S_OW}, {SLOT}")
    a("s_waitcnt lgkmcnt(0)")
    stamp("C", "pre_b-1")
    barrier()

def c_g1():
    a.c("==== C wave: GEMM1 ====")
    stamp("C", "g1_start")
    for grp in c_g1_reads(0, 0):
        for r in grp: a(r)
    a(".p2align 3")
    a.label("L_cg1")
    for ks in range(4):
        b = ks & 1
        nxt = c_g1_reads((ks + 1) & 3, b ^ 1)
        a("s_waitcnt lgkmcnt(0)")
        i = 0
        for n in range(2):
            for m in range(2):
                for gu in range(2):
                    d = vr(acc1(gu, m, n), 16)
                    a(f"v_mfma_f32_32x32x16_bf16 {d}, {vr(abuf(b,m,gu),4)}, {vr(bbuf(b,n),4)}, {d}")
                    if ks == 3 and i == 0:
                        barrier()
                    if i < 4:
                        for r in nxt[i]: a(r)
                    if ks == 2 and i == 4:
                        a(f"s_add_u32 s{T5}, s{T5}, 1")
                        a(f"s_cmp_eq_u32 s{T5}, 3")
                        a(f"s_cselect_b32 s{T3}, s{S_OX}, s{S_OW}")
                        a(f"s_cselect_b32 s{T5}, 0, s{T5}")
                    if ks == 2 and i == 5:
                        for k in range(3): a(f"v_add_u32 v{VA+k}, s{T3}, v{VA+k}")
                    if ks == 2 and i == 6:
                        for k in range(3, 6): a(f"v_add_u32 v{VA+k}, s{T3}, v{VA+k}")
                    if ks == 3 and i == 6:
                        a(f"s_add_u32 s{T4}, s{T4}, 1")
                        a(f"s_cmp_lt_u32 s{T4}, 8")
                    i += 1
    a("s_cbranch_scc1 L_cg1")
    stamp("C", "g1_end")
    a.c("---- GEMM1 epilogue ----")
    if OPT.prio: a("s_setprio 3")
    CS = 32
    ST = 16
    a(f"s_lshl_b32 s{T2}, s{T0}, 9")
    a(f"s_add_u32 s{T2}, s{T2}, {L_STAT}")
    a(f"v_lshl_add_u32 v4, v2, 3, s{T2}")
    a(f"s_lshl_b32 s{T2}, s{T1}, 8")
    a(f"s_add_u32 s{T2}, s{T2}, {L_CS}")
    a(f"v_lshl_add_u32 v5, v3, 4, s{T2}")
    a("s_waitcnt vmcnt(0) lgkmcnt(0)")
    a(f"ds_read_b64 {vr(ST,2)}, v4")
    a(f"ds_read_b64 {vr(ST+2,2)}, v4 offset:256")
    for m in range(2):
        for gu in range(2):
            for j in range(4):
                a(f"ds_read_b128 {vr(CS+16*(2*m+gu)+4*j,4)}, v5 offset:{gu*512+m*128+j*32}")
    a(f"s_lshl_b32 s{T2}, s{S_RB}, 2")
    a(f"s_lshl_b32 s{T3}, s{T0}, 1")
    a(f"s_add_u32 s{T2}, s{T2}, s{T3}")
    a(f"s_mul_i32 s{T2}, s{T2}, 112")
    a(f"s_lshl_b32 s{T3}, s{S_CB}, 3")
    a(f"s_add_u32 s{T2}, s{T2}, s{T3}")
    a(f"s_lshl_b32 s{T3}, s{T1}, 2")
    a(f"s_add_u32 s{T2}, s{T2}, s{T3}")
    a(f"s_lshl_b32 s{T2}, s{T2}, 10")
    a(f"s_add_u32 s{T2}, s{T2}, {WS_H}")
    a(f"s_add_u32 s{T3}, s{T2}, {112*1024}")
    a("v_lshlrev_b32 v6, 4, v1")
    read_nonce(20)
    a(f"v_mul_f32 v24, 0x{NLOG2E:x}, v{ST+1}")
    a(f"v_mul_f32 v26, 0x{NLOG2E:x}, v{ST+3}")
    E = 96; O = 112
    blk = 0
    late = []
    for n in range(2):
        st = vr(ST + 2 * n, 2)
        for m in range(2):
            for hb in range(2):
                A = acc1(0, m, n) + 8 * hb; B = acc1(1, m, n) + 8 * hb
                CG = CS + 16 * (2 * m) + 8 * hb; CU = CS + 16 * (2 * m + 1) + 8 * hb
                e = E + 8 * (blk & 1); o = O + 4 * (blk & 3)
                if OPT.late_st: o = B
                for p in range(4):
                    a(f"v_pk_fma_f32 {vr(A+2*p,2)}, {vr(CG+2*p,2)}, {st}, {vr(A+2*p,2)} op_sel_hi:[1,0,1] neg_lo:[0,1,0] neg_hi:[0,1,0]")
                for p in range(4):
                    a(f"v_pk_mul_f32 {vr(A+2*p,2)}, {vr(A+2*p,2)}, {vr(24+2*n,2)} op_sel_hi:[1,0]")
                for p in range(4):
                    a(f"v_exp_f32 v{e+2*p}, v{A+2*p}")
                    a(f"v_exp_f32 v{e+2*p+1}, v{A+2*p+1}")
                    a(f"v_pk_fma_f32 {vr(B+2*p,2)}, {vr(CU+2*p,2)}, {st}, {vr(B+2*p,2)} op_sel_hi:[1,0,1] neg_lo:[0,1,0] neg_hi:[0,1,0]")
                for p in range(4):
                    a(f"v_pk_add_f32 {vr(e+2*p,2)}, {vr(e+2*p,2)}, 1.0 op_sel_hi:[1,0]")
                for p in range(4):
                    a(f"v_rcp_f32 v{e+2*p}, v{e+2*p}")
                    a(f"v_rcp_f32 v{e+2*p+1}, v{e+2*p+1}")
                    a(f"v_pk_mul_f32 {vr(A+2*p,2)}, {vr(A+2*p,2)}, {vr(B+2*p,2)}")
                for p in range(4):
                    a(f"v_pk_mul_f32 {vr(A+2*p,2)}, {vr(A+2*p,2)}, {vr(e+2*p,2)}")
                for p in range(4):
                    a(f"v_cvt_pk_bf16_f32 v{o+p}, v{A+2*p}, v{A+2*p+1}")
                st_ = f"buffer_store_dwordx4 {vr(o,4)}, v6, {sr(R_WS,4)}, s{T2+n} offen offset:{(2*m+hb)*1024} {OPT.x_hst}"
                if OPT.late_st: late.append(st_)
                else: a(st_)
                blk += 1
    for st_ in late: a(st_)
    if OPT.prio: a("s_setprio 0")

W2O = 15
S_KW = S_OX
S_KH = S_OW
def w2_setup():
    a("v_lshrrev_b32 v4, 3, v1")
    a("v_bfe_u32 v5, v1, 4, 1")
    a("v_lshlrev_b32 v5, 2, v5")
    a("v_and_b32 v6, 7, v1")
    a("v_xor_b32 v5, v5, v6")
    a("v_lshlrev_b32 v4, 10, v4")
    a(f"v_lshl_add_u32 v{W2O}, v5, 4, v4")
    a(f"s_mul_i32 s{T0}, s{S_LW}, {448*1024}")
    a(f"s_lshl_b32 s{T1}, s{S_I}, 7")
    a(f"s_add_u32 s{T0}, s{T0}, s{T1}")
    a(f"v_add_u32 v{W2O}, s{T0}, v{W2O}")

def kidx_init(reg, s0):
    a(f"s_add_u32 s{reg}, s{S_ROT}, {s0}")
    a(f"s_cmp_ge_u32 s{reg}, 28")
    a(f"s_cselect_b32 s{T0}, 28, 0")
    a(f"s_sub_u32 s{reg}, s{reg}, s{T0}")
def kidx_next(reg):
    a(f"s_add_u32 s{reg}, s{reg}, 1")
    a(f"s_cmp_eq_u32 s{reg}, 28")
    a(f"s_cselect_b32 s{reg}, 0, s{reg}")

def ring_off(slot):
    return (slot // 6) * SLOT + (slot % 6) * 2048

def w2_kstep(vm, s, tag):
    a(f"s_add_u32 m0, s{T5}, {ring_off(s % 12)}")
    a(f"s_lshl_b32 s{T1}, s{S_KW}, 14")
    vm.issue(tag, f"buffer_load_dwordx4 v{W2O}, {sr(R_W2,4)}, s{T1} offen {OPT.nt_w} lds")
    a(f"s_add_u32 m0, s{T5}, {ring_off(s % 12) + 1024}")
    a(f"s_add_u32 s{T1}, s{T1}, 8192")
    vm.issue(tag, f"buffer_load_dwordx4 v{W2O}, {sr(R_W2,4)}, s{T1} offen {OPT.nt_w} lds")
    kidx_next(S_KW)

ACC2 = 192
AR = 64
HR = 16
VX = 64
def c_g2():
    vm = VM(a)
    a.label("L_cE")
    a.c("==== C wave: GEMM2 ====")
    NBK = OPT.nbk
    assert HR + 8 * NBK <= AR
    VT = 10
    a("v_lshrrev_b32 v3, 5, v1")
    a("v_bfe_u32 v5, v1, 2, 2")
    a("v_lshl_add_u32 v7, v3, 2, v5")
    a("v_lshlrev_b32 v7, 7, v7")
    a("v_bfe_u32 v8, v1, 4, 1")
    a("v_lshl_add_u32 v7, v8, 5, v7")
    a("v_and_b32 v8, 3, v1")
    a("v_lshl_add_u32 v7, v8, 3, v7")
    a(f"s_mul_i32 s{T5}, s{S_LW}, 12288")
    a(f"v_add_u32 v7, s{T5}, v7")
    a("v_lshrrev_b32 v5, 1, v5")
    a(f"v_lshl_add_u32 v{VT}, v5, 6, v7")
    a("v_xor_b32 v5, 1, v5")
    a(f"v_lshl_add_u32 v{VT+1}, v5, 6, v7")
    lds_add(L_ECNT, 12, 13)
    stamp("C", "E")
    def treads(s, dst):
        return [f"ds_read_b64_tr_b16 {vr(dst+4*m+2*jj,2)}, v{VT+m} offset:{ring_off(s % 12) + 8*jj*128}" for m in range(2) for jj in range(2)]
    w2_setup()
    kidx_init(S_KW, 12)
    a(f"s_and_b32 s{T0}, s{S_WAVE}, 1")
    a(f"s_lshl_b32 s{T4}, s{S_RB}, 1")
    a(f"s_add_u32 s{T4}, s{T4}, s{T0}")
    a(f"s_lshl_b32 s{T4}, s{T4}, 1")
    a(f"s_add_u32 s{T4}, s{T4}, s{S_B}")
    a(f"s_lshl_b32 s{T4}, s{T4}, 4")
    a(f"s_lshl_b32 s{T3}, s{S_I}, 1")
    a(f"s_add_u32 s{T4}, s{T4}, s{T3}")
    a(f"s_lshr_b32 s{T3}, s{S_WAVE}, 1")
    a(f"s_add_u32 s{T4}, s{T4}, s{T3}")
    a(f"s_lshl_b32 s{T4}, s{T4}, 3")
    a(f"s_add_u32 s{T4}, s{T4}, {WS_FH}")
    a(f"s_lshl_b32 s{T2}, s{S_TB}, 1")
    a(f"s_add_u32 s{T2}, s{T2}, s{T3}")
    a(f"s_lshl_b32 s{T2}, s{T2}, 7")
    a(f"s_mul_i32 s{T3}, s{T0}, 56")
    a(f"s_add_u32 s{T2}, s{T2}, s{T3}")
    a(f"s_add_u32 s{S_CH}, s{T2}, {WS_FH}")
    a(f"s_lshl_b32 s{T3}, s{S_LW}, 2")
    a(f"s_add_u32 s{T3}, s{T3}, {L_RING}")
    slow = a.newlabel("L_cslow"); join = a.newlabel("L_cjoin")
    a(f"v_mov_b32 v12, s{T3}")
    a("ds_read_b32 v13, v12")
    a("s_waitcnt lgkmcnt(0)")
    a("v_cmp_eq_u32 vcc, 1, v13")
    a(f"s_cbranch_vccz {slow}")
    for s in range(12):
        for r in treads(s, AR + 8 * s): a(r)
    a("s_waitcnt lgkmcnt(0)")
    for s in range(12, 16): w2_kstep(VM(a), s, "wa")
    a("s_waitcnt vmcnt(8)")
    flag_store(VM(a), 12, T4)
    a(f"s_branch {join}")
    a.label(slow)
    a("s_waitcnt vmcnt(0)")
    flag_store(VM(a), 12, T4)
    lds_wait((T3,), 1, 14, 4)
    for s in range(12):
        for r in treads(s, AR + 8 * s): a(r)
    a("s_waitcnt lgkmcnt(0)")
    for s in range(12, 16): w2_kstep(VM(a), s, "wa")
    a.label(join)
    vm.q.extend(["wa"] * 8)
    stamp("C", "h_flag")
    for s in range(16, 24): w2_kstep(vm, s, "wb")
    vm.wait("wa")
    for s in range(12, 16):
        for r in treads(s, AR + 8 * s): a(r)
    a(f"s_mul_i32 s{T2}, s{S_TB}, 224")
    a(f"s_mul_i32 s{T3}, s{S_LW}, 28")
    a(f"s_add_u32 s{T2}, s{T2}, s{T3}")
    a(f"s_lshl_b32 s{T2}, s{T2}, 10")
    a(f"s_add_u32 s{T2}, s{T2}, {WS_H}")
    a("v_lshlrev_b32 v6, 4, v1")
    a(f"v_add_u32 v7, {112*1024}, v6")
    a(f"s_mov_b32 s{S_KH}, s{S_ROT}")
    a("s_waitcnt lgkmcnt(0)")
    for s in range(24, 28): w2_kstep(vm, s, "wc")
    spoll(S_PC, S_CH, 7, 2)
    stamp("C", "h_seen")
    def hload(s):
        a(f"s_lshl_b32 s{T4}, s{S_KH}, 10")
        a(f"s_add_u32 s{T4}, s{T4}, s{T2}")
        if OPT.x_hmode == 1: a(f"s_and_b32 s{T4}, s{T4}, 0x43ffff")
        for n in range(2):
            vm.issue(f"h{s}", f"buffer_load_dwordx4 {vr(HR+8*(s%NBK)+4*n,4)}, v{6+n}, {sr(R_WS,4)}, s{T4} offen {OPT.h_ld}")
        kidx_next(S_KH)
    for s in range(NBK): hload(s)
    stamp("C", "g2_start")
    for s in range(28):
        A = AR + 8 * (s % 16)
        vm.wait(f"h{s}", "lgkmcnt(0)" if s >= 16 else "")
        i = 0
        for n in range(2):
            for m in range(2):
                d = vr(ACC2 + 16 * (2 * n + m), 16)
                a(f"v_mfma_f32_32x32x16_bf16 {d}, {vr(A+4*m,4)}, {vr(HR+8*(s%NBK)+4*n,4)}, {'0' if s == 0 else d}")
                if i == 0 and 15 <= s < 27:
                    for r in treads(s + 1, AR + 8 * ((s + 1) % 16)): a(r)
                if i == 1 and s >= 1 and s - 1 + NBK < 28: hload(s - 1 + NBK)
                i += 1
        if s == 21: final_x_load(vm)
        if s in (0, 3, 7, 14, 21): stamp("C", f"k{s}")
    stamp("C", "g2_end")
    a("v_and_b32 v4, 31, v1")
    a("v_mul_u32_u24 v4, 272, v4")
    a("v_lshl_add_u32 v4, v3, 4, v4")
    a(f"v_add_u32 v4, s{T5}, v4")
    a("s_nop 7")
    for n in range(2):
        for m in range(2):
            for j in range(4):
                a(f"ds_write_b128 v4, {vr(ACC2+16*(2*n+m)+4*j,4)} offset:{n*SLOT+m*128+j*32}")
    vm.waitall("lgkmcnt(0)")
    a("s_branch L_final")

def final_x_load(vm):
    a("v_lshrrev_b32 v8, 3, v0")
    a(f"s_lshl_b32 s{T3}, s{S_TB}, 6")
    a(f"v_add_u32 v8, s{T3}, v8")
    a("v_lshlrev_b32 v8, 10, v8")
    a("v_and_b32 v9, 7, v0")
    a("v_lshl_add_u32 v9, v9, 4, v8")
    a(f"s_lshl_b32 s{T3}, s{S_I}, 7")
    a(f"v_add_u32 v9, s{T3}, v9")
    vm.issue("x", f"buffer_load_dwordx4 {vr(VX,4)}, v9, {sr(R_X,4)}, 0 offen")

def final():
    a.label("L_final")
    a.c("==== final epilogue (all waves) ====")
    P, Y, ST, XF, YF, XN = 16, 48, 52, 56, 72, 80
    a("v_lshrrev_b32 v4, 3, v0")
    a("v_and_b32 v5, 7, v0")
    a("v_and_b32 v6, 31, v4")
    a("v_mul_u32_u24 v6, 272, v6")
    a("v_lshl_add_u32 v6, v5, 5, v6")
    a("v_lshrrev_b32 v7, 5, v4")
    a(f"v_mul_u32_u24 v7, {SLOT}, v7")
    a("v_add_u32 v6, v6, v7")
    a("v_mul_u32_u24 v7, 144, v4")
    a("v_lshl_add_u32 v7, v5, 4, v7")
    a(f"v_add_u32 v7, {L_YT}, v7")
    a(f"s_lshl_b32 s{T0}, s{S_B}, 9")
    a(f"s_add_u32 s{T0}, s{T0}, {L_STAT}")
    a(f"v_lshl_add_u32 v8, v4, 3, s{T0}")
    a(f"ds_read_b64 {vr(ST,2)}, v8")
    for p in range(4): unpack(XF + 2 * p, VX + p)
    a("s_waitcnt lgkmcnt(0)")
    a(f"v_mul_f32 v{ST+2}, 0x{NLN2:x}, v{ST+1}")
    a(f"v_mov_b32 v90, v{ST+1}")
    a(f"v_mul_f32 v88, v{ST}, v{ST+2}")
    barrier()
    a(f"ds_read_b128 {vr(Y,4)}, v7")
    for w in range(4):
        a(f"ds_read_b128 {vr(P+8*w,4)}, v6 offset:{w*12288}")
        a(f"ds_read_b128 {vr(P+8*w+4,4)}, v6 offset:{w*12288+16}")
    for p in range(4):
        a(f"v_pk_fma_f32 {vr(XN+2*p,2)}, {vr(XF+2*p,2)}, {vr(ST+2,2)}, v[88:89] op_sel_hi:[1,0,0] neg_lo:[0,0,1] neg_hi:[0,0,1]")
    a("s_waitcnt lgkmcnt(8)")
    for p in range(4): unpack(YF + 2 * p, Y + p)
    for p in range(4):
        a(f"v_pk_mul_f32 {vr(XN+2*p,2)}, {vr(XN+2*p,2)}, {vr(YF+2*p,2)}")
    a("s_waitcnt lgkmcnt(4)")
    for p in range(4): a(f"v_pk_add_f32 {vr(P+2*p,2)}, {vr(P+2*p,2)}, {vr(P+8+2*p,2)}")
    a("s_waitcnt lgkmcnt(0)")
    for p in range(4): a(f"v_pk_add_f32 {vr(P+16+2*p,2)}, {vr(P+16+2*p,2)}, {vr(P+24+2*p,2)}")
    for p in range(4): a(f"v_pk_add_f32 {vr(P+2*p,2)}, {vr(P+2*p,2)}, {vr(P+16+2*p,2)}")
    for p in range(4): a(f"v_pk_mul_f32 {vr(P+2*p,2)}, {vr(P+2*p,2)}, v[90:91] op_sel_hi:[1,0]")
    P1 = P + 8
    for p in range(4):
        a(f"v_exp_f32 v{P1+2*p}, v{P+2*p}")
        a(f"v_exp_f32 v{P1+2*p+1}, v{P+2*p+1}")
        a(f"v_pk_mul_f32 {vr(XN+2*p,2)}, {vr(XN+2*p,2)}, {vr(P+2*p,2)}")
    for p in range(4): a(f"v_pk_add_f32 {vr(P1+2*p,2)}, {vr(P1+2*p,2)}, 1.0 op_sel_hi:[1,0]")
    for p in range(8): a(f"v_rcp_f32 v{P1+p}, v{P1+p}")
    for p in range(4):
        a(f"v_pk_fma_f32 {vr(XF+2*p,2)}, {vr(XN+2*p,2)}, {vr(P1+2*p,2)}, {vr(XF+2*p,2)}")
    for p in range(4):
        a(f"v_cvt_pk_bf16_f32 v{Y+p}, v{XF+2*p}, v{XF+2*p+1}")
    a(f"buffer_store_dwordx4 {vr(Y,4)}, v9, {sr(R_OUT,4)}, 0 offen")
    if OPT.prof:
        a(f"s_memtime {sr(R_K,2)}")
        a(f"s_memrealtime {sr(T1,2)}")
        a("s_waitcnt lgkmcnt(0)")
        a(f"s_lshl_b32 s{T3}, s2, 3")
        a(f"s_add_u32 s{T3}, s{T3}, s{S_WAVE}")
        a(f"s_lshl_b32 s{T3}, s{T3}, 7")
        a(f"s_add_u32 s{T3}, s{T3}, {WS_PROF}")
        for i in range(NSTAMP):
            a(f"s_sub_u32 s{T4}, s{STAMP0+2*i}, s{S_ST0}")
            a(f"v_mov_b32 v{16+i}, s{T4}")
        a(f"s_sub_u32 s{T4}, s{R_K}, s{S_ST0}")
        a(f"v_mov_b32 v28, s{T4}")
        a(f"v_mov_b32 v29, s{S_RT0}")
        a(f"v_mov_b32 v30, s{T1}")
        a("v_mov_b32 v31, 0")
        a("s_mov_b64 exec, 1")
        for i in range(4):
            a(f"buffer_store_dwordx4 {vr(16+4*i,4)}, off, {sr(R_WS,4)}, s{T3} offset:{16*i}")
    a.label("L_end")
    a("s_endpgm")

VXO = 16
VWO = 20
VTO = 24
VTD = 25
VPO = 26
KR = 48
VR_ = 68
TP = 76
TF = 92
KF = 124
A0 = 132
A1 = 140
HL = 148
HS = 172
PF = 188
GA = 208

def prep_loads(vm):
    a("v_lshrrev_b32 v4, 3, v1")
    a(f"s_lshl_b32 s{T0}, s{S_J}, 6")
    a(f"s_lshl_b32 s{T1}, s{S_LW}, 4")
    a(f"s_add_u32 s{T0}, s{T0}, s{T1}")
    a(f"s_sub_u32 s{T0}, s{T0}, 3")
    a(f"v_lshl_add_u32 v4, v4, 1, s{T0}")
    a("v_lshlrev_b32 v4, 10, v4")
    a("v_and_b32 v5, 7, v1")
    a("v_lshl_add_u32 v4, v5, 4, v4")
    a(f"s_lshl_b32 s{T0}, s{S_XCD}, 7")
    a(f"v_add_u32 v4, s{T0}, v4")
    for i in range(5):
        vm.issue("P", f"buffer_load_dwordx4 {vr(KR+4*i,4)}, v4, {sr(R_K,4)}, 0 offen {OPT.nt_k}")
        if i >= 3:
            vm.issue("P", f"buffer_load_dwordx4 {vr(VR_+4*(i-3),4)}, v4, {sr(R_V,4)}, 0 offen {OPT.nt_v}")
        if i < 4: a("v_add_u32 v4, 1024, v4")
    a(f"s_mov_b32 m0, {L_TAPS}")
    a("v_lshlrev_b32 v4, 4, v1")
    a(f"s_lshl_b32 s{T0}, s{S_XCD}, 9")
    vm.issue("P", f"buffer_load_dwordx4 v4, {sr(R_SH,4)}, s{T0} offen lds")

def prep_compute():
    a("v_and_b32 v5, 7, v1")
    a("v_lshlrev_b32 v4, 6, v5")
    a(f"v_add_u32 v6, {L_TAPS}, v4")
    for q in range(4):
        a(f"ds_read_b128 {vr(TP+4*q,4)}, v6 offset:{16*q}")
    a("v_mul_u32_u24 v7, 1040, v5")
    a("v_lshrrev_b32 v4, 3, v1")
    a(f"s_lshl_b32 s{T0}, s{S_LW}, 5")
    a(f"s_sub_u32 s{T0}, {L_SCR + 124}, s{T0}")
    a("v_lshlrev_b32 v4, 2, v4")
    a("v_sub_u32 v7, v7, v4")
    a(f"v_add_u32 v7, s{T0}, v7")
    a("s_waitcnt lgkmcnt(0)")
    for dd in range(8):
        a(f"v_lshlrev_b32 v{TF+dd}, 16, v{TP+2*dd}")
        a(f"v_and_b32 v{TF+8+dd}, 0xffff0000, v{TP+2*dd}")
        a(f"v_lshlrev_b32 v{TF+16+dd}, 16, v{TP+2*dd+1}")
        a(f"v_and_b32 v{TF+24+dd}, 0xffff0000, v{TP+2*dd+1}")
    for i in range(5):
        for p in range(4): unpack(KF + 2 * p, KR + 4 * i + p)
        for tt, acc in ((0, A0), (1, A1)):
            j = 3 + tt - i
            if j < 0 or j > 3: continue
            for p in range(8):
                a(f"v_{'mul' if j == 3 else 'fmac'}_f32 v{acc+p}, v{KF+p}, v{TF+8*j+p}")
    for tt, acc in ((0, A0), (1, A1)):
        for p in range(4): unpack(KF + 2 * p, VR_ + 4 * tt + p)
        for p in range(8): a(f"v_mul_f32 v{acc+p}, v{acc+p}, v{KF+p}")
    for dd in range(8): a(f"v_cvt_pk_bf16_f32 v{KF+dd}, v{A1+dd}, v{A0+dd}")
    for dd in range(8): a(f"ds_write_b32 v7, v{KF+dd} offset:{128*dd}")

def prep_store(vm):
    a(f"s_mul_i32 s{T0}, s{S_LW}, {2*1040}")
    a(f"s_add_u32 s{T0}, s{T0}, {L_SCR}")
    a(f"v_lshl_add_u32 v4, v1, 4, s{T0}")
    a(f"ds_read_b128 {vr(KR,4)}, v4")
    a(f"ds_read_b128 {vr(KR+4,4)}, v4 offset:1040")
    a("v_lshrrev_b32 v4, 3, v1")
    a("v_lshlrev_b32 v4, 12, v4")
    a("v_and_b32 v5, 7, v1")
    a("v_lshl_add_u32 v4, v5, 4, v4")
    a(f"s_lshl_b32 s{T0}, s{S_XCD}, 18")
    a(f"s_lshl_b32 s{T1}, s{S_LW}, 16")
    a(f"s_add_u32 s{T0}, s{T0}, s{T1}")
    a(f"s_lshl_b32 s{T1}, s{S_J}, 7")
    a(f"s_sub_u32 s{T1}, {WS_UT + 4096 - 128}, s{T1}")
    a(f"s_add_u32 s{T0}, s{T0}, s{T1}")
    a(f"s_add_u32 s{T1}, s{T0}, 32768")
    a("s_waitcnt lgkmcnt(0)")
    vm.issue("S", f"buffer_store_dwordx4 {vr(KR,4)}, v4, {sr(R_WS,4)}, s{T0} offen sc1")
    vm.issue("S", f"buffer_store_dwordx4 {vr(KR+4,4)}, v4, {sr(R_WS,4)}, s{T1} offen sc1")

def fu_flag(vm):
    a(f"s_lshl_b32 s{T0}, s{S_XCD}, 2")
    a(f"s_add_u32 s{T0}, s{T0}, s{S_LW}")
    a(f"s_lshl_b32 s{T0}, s{T0}, 5")
    a(f"s_add_u32 s{T0}, s{T0}, s{S_J}")
    a(f"s_lshl_b32 s{T0}, s{T0}, 2")
    a(f"s_add_u32 s{T0}, s{T0}, {WS_FU}")
    a(f"v_mov_b32 v{PF}, s{S_NONCE}")
    a("s_mov_b64 exec, 1")
    vm.issue("F", f"buffer_store_dword v{PF}, off, {sr(R_WS,4)}, s{T0} sc1")
    a("s_mov_b64 exec, -1")

def fu_addr():
    a(f"s_lshl_b32 s{T4}, s{S_XCD}, 2")
    a(f"s_add_u32 s{T4}, s{T4}, s{S_LW}")
    a(f"s_lshl_b32 s{T4}, s{T4}, 7")
    a(f"s_add_u32 s{T4}, s{T4}, {WS_FU}")
    a(f"s_mov_b32 s{S_EX}, s{S_NONCE}")
    a(f"s_mov_b32 s{S_EX+1}, s{S_NONCE}")

CSR = 28
def cs_read():
    if OPT.rot1 == 8:
        a(f"s_bfe_u32 s{T0}, s{S_RB}, 0x10001")
        if OPT.pairswap: a(f"s_xor_b32 s{T0}, s{T0}, s{S_G}")
        a(f"s_and_b32 s{T1}, s{S_RB}, 1")
    else:
        a(f"s_lshr_b32 s{T0}, s{S_XCD}, 2")
        a(f"s_bfe_u32 s{T1}, s{S_XCD}, 0x10001")
    a(f"s_mul_i32 s{T0}, s{T0}, {SLOT}")
    a(f"s_lshl_b32 s{T1}, s{T1}, 13")
    a(f"s_add_u32 s{T0}, s{T0}, s{T1}")
    a(f"s_add_u32 s{T0}, s{T0}, s{S_LW1K}")
    a("v_lshrrev_b32 v5, 4, v1")
    a("v_lshlrev_b32 v6, 2, v5")
    a("v_and_b32 v7, 15, v1")
    a("v_xor_b32 v6, v6, v7")
    a("v_lshlrev_b32 v6, 4, v6")
    a("v_lshl_add_u32 v6, v5, 8, v6")
    a(f"v_add_u32 v6, s{T0}, v6")
    for mat in range(2):
        for ii in range(2):
            a(f"ds_read_b128 {vr(CSR+8*mat+4*ii,4)}, v6 offset:{16384*(mat+1)+4096*ii}")

def cs_sum():
    G, U, KT = GA, GA + 8, KF
    a("v_bfe_u32 v8, v1, 4, 1")
    a("v_lshlrev_b32 v8, 4, v8")
    a("v_lshl_add_u32 v8, v7, 5, v8")
    a("v_lshrrev_b32 v5, 5, v1")
    a("v_lshl_add_u32 v8, v5, 9, v8")
    a(f"s_add_u32 s{T0}, s{S_LW1K}, {L_CSP}")
    a(f"v_add_u32 v8, s{T0}, v8")
    for mat, acc in ((0, G), (1, U)):
        for p in range(4):
            unpack(acc + 2 * p, CSR + 8 * mat + p)
            unpack(KT + 2 * p, CSR + 8 * mat + 4 + p)
        for p in range(8): a(f"v_add_f32 v{acc+p}, v{acc+p}, v{KT+p}")
    a("s_nop 0")
    for j in range(8): a(f"v_permlane32_swap_b32 v{G+j}, v{U+j}")
    for p in range(8): a(f"v_add_f32 v{G+p}, v{G+p}, v{U+p}")
    a("s_nop 0")
    for j in range(4): a(f"v_permlane16_swap_b32 v{G+j}, v{G+4+j}")
    for p in range(4): a(f"v_add_f32 v{G+p}, v{G+p}, v{G+4+p}")
    a(f"ds_write_b128 v8, {vr(G,4)}")

def cs_publish(vm):
    a(f"s_lshl_b32 s{T0}, s{S_LW}, 8")
    a(f"s_add_u32 s{T0}, s{T0}, {L_CSP}")
    a(f"v_lshlrev_b32 v{PF+7}, 2, v1")
    a(f"v_add_u32 v4, s{T0}, v{PF+7}")
    for w in range(4): a(f"ds_read_b32 v{GA+w}, v4 offset:{1024*w}")
    a(f"s_lshl_b32 s{T2}, s{S_B}, 3")
    a(f"s_add_u32 s{T2}, s{T2}, s{S_I}")
    a(f"s_lshl_b32 s{T2}, s{T2}, 2")
    a(f"s_add_u32 s{T2}, s{T2}, s{S_LW}")
    a(f"s_lshl_b32 s{T2}, s{T2}, 4")
    a(f"s_add_u32 s{T2}, s{T2}, s{S_RB}")
    a(f"s_lshl_b32 s{T3}, s{T2}, 8")
    a(f"s_add_u32 s{T3}, s{T3}, {WS_CS}")
    a(f"s_lshl_b32 s{T4}, s{T2}, 3")
    a(f"s_add_u32 s{T4}, s{T4}, {WS_FCS}")
    a("s_waitcnt lgkmcnt(0)")
    a(f"v_add_f32 v{GA}, v{GA}, v{GA+1}")
    a(f"v_add_f32 v{GA+2}, v{GA+2}, v{GA+3}")
    a(f"v_add_f32 v{GA}, v{GA}, v{GA+2}")
    vm.issue("S1", f"buffer_store_dword v{GA}, v{PF+7}, {sr(R_WS,4)}, s{T3} offen sc1")

def cs_flag(vm):
    vm.wait("S1")
    flag_store(vm, PF, T4)

def cs_poll_addr():
    a(f"s_lshl_b32 s{T2}, s{S_B}, 3")
    a(f"s_add_u32 s{T2}, s{T2}, s{S_I}")
    a(f"s_lshl_b32 s{T2}, s{T2}, 2")
    a(f"s_add_u32 s{T2}, s{T2}, s{S_LW}")
    a(f"s_lshl_b32 s{T3}, s{T2}, 7")
    a(f"s_add_u32 s{T3}, s{T3}, {WS_FCS}")
    a(f"v_lshl_add_u32 v5, v1, 3, s{T3}")
    a(f"s_lshl_b32 s{T3}, s{S_RB}, 1")
    a(f"s_lshr_b32 s{T0}, s{S_LW}, 1")
    a(f"s_add_u32 s{T3}, s{T3}, s{T0}")
    a(f"s_lshl_b32 s{T3}, s{T3}, 7")
    a(f"s_add_u32 s{T3}, s{T3}, {WS_FST}")
    a(f"v_mov_b32 v4, s{T3}")
    a("v_cmp_gt_u32 vcc, 16, v1")
    a(f"s_lshl_b32 s{T2}, s{T2}, 12")
    a(f"s_add_u32 s{T2}, s{T2}, {WS_CS}")
    a(f"v_cndmask_b32 v{PF+6}, v4, v5, vcc")

def cs_gather(vm):
    a("v_lshlrev_b32 v4, 4, v1")
    for q in range(4):
        vm.issue("Cs", f"buffer_load_dwordx4 {vr(GA+4*q,4)}, v4, {sr(R_WS,4)}, s{T2} offen offset:{1024*q} sc1")
    a(f"s_lshl_b32 s{T0}, s{S_RB}, 10")
    a(f"s_lshl_b32 s{T1}, s{S_LW}, 8")
    a(f"s_add_u32 s{T0}, s{T0}, s{T1}")
    a(f"s_add_u32 s{T0}, s{T0}, {WS_ST}")
    a("v_and_b32 v2, 31, v1")
    a("v_lshlrev_b32 v2, 3, v2")
    vm.issue("Cs", f"buffer_load_dwordx2 {vr(PF+12,2)}, v2, {sr(R_WS,4)}, s{T0} offen sc1")

def cs_tables(vm):
    a(f"s_lshl_b32 s{T0}, s{S_LW}, 8")
    a(f"s_add_u32 s{T1}, s{T0}, {L_STAT}")
    a(f"v_add_u32 v2, s{T1}, v2")
    a("v_and_b32 v4, 15, v1")
    a("v_lshlrev_b32 v4, 4, v4")
    a("v_lshrrev_b32 v5, 4, v1")
    a("v_lshl_add_u32 v4, v5, 2, v4")
    a(f"s_add_u32 s{T1}, s{T0}, {L_CS}")
    a(f"v_add_u32 v4, s{T1}, v4")
    vm.wait("Cs")
    a(f"ds_write_b64 v2, {vr(PF+12,2)}")
    for j in range(4): a(f"v_add_f32 v{GA+j}, v{GA+j}, v{GA+4+j}")
    for j in range(4): a(f"v_add_f32 v{GA+8+j}, v{GA+8+j}, v{GA+12+j}")
    for j in range(4): a(f"v_add_f32 v{GA+j}, v{GA+j}, v{GA+8+j}")
    a("s_nop 1")
    a(f"v_permlane32_swap_b32 v{GA}, v{GA+2}")
    a(f"v_permlane32_swap_b32 v{GA+1}, v{GA+3}")
    a(f"v_add_f32 v{GA}, v{GA}, v{GA+2}")
    a(f"v_add_f32 v{GA+1}, v{GA+1}, v{GA+3}")
    a("s_nop 1")
    a(f"v_permlane16_swap_b32 v{GA}, v{GA+1}")
    a(f"v_add_f32 v{GA}, v{GA}, v{GA+1}")
    a(f"ds_write_b32 v4, v{GA}")

def ssm_loads(vm, rnd):
    if rnd == 0:
        a(f"s_lshr_b32 s{T0}, s{S_LW}, 1")
        a(f"s_add_u32 s{S_CH}, s{S_CH}, s{T0}")
        a(f"s_lshl_b32 s{T0}, s{T0}, 12")
        a(f"s_add_u32 s{R_SSM}, s{R_SSM}, s{T0}")
        a(f"s_addc_u32 s{R_SSM+1}, s{R_SSM+1}, 0")
        a(f"s_and_b32 s{T0}, s{S_LW}, 1")
        a(f"s_lshl_b32 s{T0}, s{T0}, 11")
        a(f"v_lshl_add_u32 v{PF+2}, v1, 4, s{T0}")
    for q in range(3):
        vm.issue("H", f"buffer_load_dwordx4 {vr(HL+12*rnd+4*q,4)}, v{PF+2}, {sr(R_SSM,4)}, 0 offen offset:{1024*rnd+4*q} {OPT.nt_s}")

def h_shift(vm):
    vm.wait("H")
    for rnd in range(2):
        L0 = HL + 12 * rnd
        for i in range(4):
            a(f"v_alignbit_b32 v{HS+8*rnd+i}, v{L0+4+i}, v{L0+i}, 16")
            a(f"v_alignbit_b32 v{HS+8*rnd+4+i}, v{L0+8+i}, v{L0+4+i}, 16")

def h_write():
    a(f"s_lshr_b32 s{T0}, s{S_LW}, 1")
    a(f"s_mul_i32 s{T1}, s{T0}, {HCH}")
    a(f"s_add_u32 s{T1}, s{T1}, {L_HB + 32}")
    a(f"v_add_u32 v4, s{T1}, v{PF+2}")
    for rnd in range(2):
        L0 = HL + 12 * rnd
        src = [L0, HS + 8 * rnd, L0 + 4, HS + 8 * rnd + 4]
        for e in range(4):
            a(f"ds_write_b128 v4, {vr(src[e],4)} offset:{e*HCOPY+1024*rnd}")
    Z = TP
    for i in range(4): a(f"v_mov_b32 v{Z+i}, 0")
    a(f"s_mul_i32 s{T1}, s{T0}, 4608")
    a(f"s_add_u32 s{T1}, s{T1}, {L_UB + 4096}")
    a("v_and_b32 v5, 31, v1")
    a(f"v_lshl_add_u32 v5, v5, 4, s{T1}")
    a(f"ds_write_b128 v5, {vr(Z,4)}")
    skip = a.newlabel("L_hf")
    a(f"s_bitcmp1_b32 s{S_LW}, 0")
    a(f"s_cbranch_scc1 {skip}")
    Q = Z + 4
    for i in range(12): a(f"v_mov_b32 v{Q+i}, 0")
    a(f"v_lshlrev_b32 v{Q+3}, 16, v{HL}")
    a(f"v_mov_b32 v{Q+7}, v{HL}")
    a(f"v_lshlrev_b32 v{Q+10}, 16, v{HL}")
    a(f"v_mov_b32 v{Q+11}, v{HS}")
    a("v_subrev_u32 v4, 32, v4")
    a("s_mov_b64 exec, 1")
    for e in range(4):
        a(f"ds_write_b128 v4, {vr(Z,4)} offset:{e*HCOPY}")
        a(f"ds_write_b128 v4, {vr(Z if e == 0 else Q+4*(e-1),4)} offset:{e*HCOPY+16}")
    a("s_mov_b64 exec, -1")
    a.label(skip)

UL = 48
def u_loads(vm):
    a(f"s_lshl_b32 s{T0}, s{S_CH}, 12")
    a("v_lshlrev_b32 v4, 4, v1")
    for q in range(4):
        vm.issue("U", f"buffer_load_dwordx4 {vr(UL+4*q,4)}, v4, {sr(R_WS,4)}, s{T0} offen offset:{1024*q} sc1")

def cold_touch(vm):
    if not OPT.touch: return
    a(f"s_mov_b32 s{R_SSM+2}, 8192")
    a(f"s_lshl_b32 s{T0}, s{S_LW}, 11")
    a(f"v_lshlrev_b32 v{VTO}, 7, v1")
    a("s_mov_b64 exec, 0xffff")
    vm.issue("T", f"buffer_load_dword v{VTD}, v{VTO}, {sr(R_SSM,4)}, s{T0} offen")
    a("s_mov_b64 exec, -1")
    a(f"s_mov_b32 s{R_SSM+2}, 4096")
    if OPT.w2warm:
        a(f"s_mul_i32 s{T0}, s2, 7168")
        a(f"s_mul_i32 s{T1}, s{S_LW}, 1792")
        a(f"s_add_u32 s{T0}, s{T0}, s{T1}")
        a("s_mov_b64 exec, 0x3fff")
        vm.issue("T", f"buffer_load_dword v{VTD}, v{VTO}, {sr(R_W2,4)}, s{T0} offen")
        a("s_mov_b64 exec, -1")

def w2_touch(vm):
    if not OPT.w2touch: return
    a(f"v_lshlrev_b32 v{VTO}, 10, v1")
    a(f"s_mul_i32 s{T0}, s{S_LW}, {448*1024}")
    a(f"s_lshl_b32 s{T1}, s{S_I}, 7")
    a(f"s_add_u32 s{T0}, s{T0}, s{T1}")
    a(f"v_add_u32 v{VTO}, s{T0}, v{VTO}")
    a(f"v_lshrrev_b32 v4, 4, v1")
    for rr in range(2):
        a(f"s_add_u32 s{T1}, s{S_ROT}, {4*rr}")
        a(f"v_add_u32 v5, s{T1}, v4")
        a("v_cmp_le_u32 vcc, 28, v5")
        a(f"s_lshl_b32 s{T1}, s{T1}, 14")
        a(f"v_mov_b32 v6, {(-448*1024) & 0xffffffff}")
        a("v_cndmask_b32 v5, 0, v6, vcc")
        a(f"v_add3_u32 v5, v5, v{VTO}, s{T1}")
        if rr: a("s_mov_b32 exec_hi, 0xffff")
        vm.issue("T", f"buffer_load_dword v{VTD}, v5, {sr(R_W2,4)}, 0 offen")
    a("s_mov_b64 exec, -1")

def late_ptrs():
    for r, off in ((R_K, 8), (R_V, 16), (R_SH, 24), (R_SSM, 32), (S_EX, 40)):
        a(f"s_load_dwordx2 {sr(r,2)}, s[0:1], {off}")

def l_late_setup():
    a("s_waitcnt lgkmcnt(0)")
    a(f"s_lshl_b32 s{S_CH}, s{S_XCD}, 5")
    a(f"s_add_u32 s{S_CH}, s{S_CH}, s{S_J}")
    a(f"s_lshl_b32 s{T0}, s{S_CH}, 2")
    a(f"s_load_dword s{S_D}, {sr(S_EX,2)}, s{T0}")
    a(f"s_lshl_b32 s{S_CH}, s{S_CH}, 1")
    a(f"s_lshl_b32 s{T0}, s{S_CH}, 12")
    a(f"s_add_u32 s{R_SSM}, s{R_SSM}, s{T0}")
    a(f"s_addc_u32 s{R_SSM+1}, s{R_SSM+1}, 0")
    w2_setup()
    a(f"s_mul_i32 s{T5}, s{S_LW}, 12288")

def l_main():
    vm = VM(a)
    a.label("L_lstart")
    a.c("==== L wave: GEMM1 loader ====")
    pol = OPT.nt_w
    a("v_lshrrev_b32 v4, 3, v1")
    a(f"s_lshl_b32 s{T0}, s{S_RB}, 7")
    a(f"s_lshl_b32 s{T1}, s{S_LW}, 3")
    a(f"s_add_u32 s{T0}, s{T0}, s{T1}")
    a(f"v_add_u32 v4, s{T0}, v4")
    a("v_lshlrev_b32 v4, 10, v4")
    a("v_lshrrev_b32 v5, 4, v1")
    a(f"s_and_b32 s{T1}, s{S_LW}, 1")
    a(f"s_lshl_b32 s{T1}, s{T1}, 2")
    a(f"v_add_u32 v6, s{T1}, v5")
    a("v_and_b32 v7, 7, v1")
    a("v_xor_b32 v6, v6, v7")
    a(f"v_lshl_add_u32 v{VXO}, v6, 4, v4")
    for ii in range(1, 4): a(f"v_add_u32 v{VXO+ii}, {32768*ii}, v{VXO}")
    a(f"s_lshl_b32 s{T1}, s{S_LW}, 2")
    a(f"v_add_u32 v4, s{T1}, v5")
    a("v_mul_u32_u24 v4, 3584, v4")
    a("v_lshlrev_b32 v6, 2, v5")
    a("v_and_b32 v7, 15, v1")
    a("v_xor_b32 v6, v6, v7")
    a("v_lshl_add_u32 v4, v6, 4, v4")
    a(f"s_lshl_b32 s{T1}, s{S_CB}, 8")
    a(f"v_add_u32 v{VWO}, s{T1}, v4")
    for ii in range(1, 4): a(f"v_add_u32 v{VWO+ii}, {16*3584*ii}, v{VWO}")
    if OPT.rot1 == 8:
        a(f"s_and_b32 s{S_R1}, s{S_XCD}, 6")
        a(f"s_lshl_b32 s{T0}, s{S_B}, 2")
        a(f"s_add_u32 s{S_R1}, s{S_R1}, s{T0}")
        a(f"s_add_u32 s{S_G}, s{S_RB}, s{S_I}")
        a(f"s_and_b32 s{S_G}, s{S_G}, 1")
    elif OPT.rot1 == 1:
        a(f"s_and_b32 s{S_R1}, s{S_RB}, 3")
        a(f"s_lshl_b32 s{S_R1}, s{S_R1}, 1")
        a(f"s_add_u32 s{S_R1}, s{S_R1}, s{S_I}")
    elif OPT.rot1 in (2, 4):
        a(f"s_add_u32 s{S_R1}, s{S_RB}, s{S_I}")
        a(f"s_and_b32 s{S_R1}, s{S_R1}, {OPT.rot1 - 1}")
        a(f"s_lshl_b32 s{S_R1}, s{S_R1}, {2 if OPT.rot1 == 2 else 1}")
    a("s_waitcnt lgkmcnt(0)")
    late_ptrs()
    def chunk(c, fill=()):
        fill = list(fill)
        per = -(-len(fill) // 12)
        sl = (c % 3) * SLOT
        if OPT.rot1:
            if OPT.pairswap:
                a(f"s_xor_b32 s{S_OX}, s{S_G}, {c}")
                a(f"s_add_u32 s{S_OX}, s{S_R1}, s{S_OX}")
            else:
                a(f"s_add_u32 s{S_OX}, s{S_R1}, {c}")
            a(f"s_and_b32 s{S_OX}, s{S_OX}, 7")
            a(f"s_mul_i32 s{S_OW}, s{S_OX}, {64*3584}")
            a(f"s_lshl_b32 s{S_OX}, s{S_OX}, 7")
        else:
            a(f"s_mov_b32 s{S_OX}, {c*128}")
            a(f"s_mov_b32 s{S_OW}, {c*64*3584}")
        for ii in range(4):
            for part, (voff, rs, so) in enumerate(((VXO, R_X, S_OX), (VWO, R_W1, S_OW), (VWO, R_W3, S_OW))):
                a(f"s_add_u32 m0, s{S_LW1K}, {sl + part*16384 + ii*4096}")
                a("s_nop 0")
                vm.issue(f"c{c}", f"buffer_load_dwordx4 v{voff+ii}, {sr(rs,4)}, s{so} offen {pol} lds")
                for ln in fill[:per]: a(ln)
                fill = fill[per:]
    def B(c):
        barrier(); stamp("L", f"B{c}")
    if OPT.lprio: a(f"s_setprio {OPT.lprio}")
    stamp("L", "first_dma")
    chunk(0)
    chunk(1)
    l_late_setup()
    vm.wait("c0"); stamp("L", "c0"); B(-1)
    read_nonce(PF + 4)
    chunk(2); prep_loads(vm); cold_touch(vm)
    vm.wait("c1"); B(0)
    cs_read()
    a("s_waitcnt lgkmcnt(0)")
    with capture() as pc: cs_sum()
    chunk(3, pc)
    vm.wait("c2", "lgkmcnt(0)"); B(1)
    cs_publish(vm)
    vm.wait("P")
    with capture() as pc: prep_compute()
    half = len(pc) // 2
    chunk(4, pc[:half])
    vm.wait("c3"); B(2)
    chunk(5, pc[half:])
    vm.wait("c4", "lgkmcnt(0)"); cs_flag(vm); B(3)
    prep_store(vm); chunk(6)
    cs_poll_addr()
    vm.wait("S"); B(4)
    fu_flag(vm); stamp("L", "fu_flag")
    chunk(7)
    poll_issue(vm, PF + 8, PF + 6, "P2")
    ssm_loads(vm, 0); ssm_loads(vm, 1)
    if OPT.w2t_at == 4: w2_touch(vm)
    fu_addr()
    vm.wait("c6"); B(5)
    spoll_issue(S_PB, T4, 32)
    poll_check(vm, PF + 8, PF + 6, "P2")
    stamp("L", "m_csseen")
    cs_gather(vm)
    if OPT.w2t_at == 5: w2_touch(vm)
    h_shift(vm)
    vm.wait("c7"); B(6); stamp("L", "m_b6")
    cs_tables(vm)
    a(f"s_mov_b32 s{S_KW}, s{S_ROT}")
    a("s_waitcnt lgkmcnt(0)")
    spoll_test(S_PB, 32, 1)
    a(f"s_cselect_b32 s{T3}, 1, 0")
    a("s_cbranch_scc1 L_ulate")
    u_loads(VM(a))
    a.label("L_ulate")
    h_write()
    if OPT.ring_early:
        for s in range(6): w2_kstep(vm, s, "w0")
    stamp("L", "pre_b7")
    B(7)
    for s in range(6 if OPT.ring_early else 0, 12): w2_kstep(vm, s, "w0")
    stamp("L", "m_w2iss")
    a(f"s_cmp_eq_u32 s{T3}, 0")
    a("s_cbranch_scc1 L_uok")
    spoll(S_PB, T4, 32, 1)
    u_loads(VM(a))
    a.label("L_uok")
    a("v_lshlrev_b32 v4, 4, v1")
    stamp("L", "m_useen")
    a("s_branch L_conv")

def spare():
    vm = VM(a)
    stamp_on[0] = False
    a.label("L_spare")
    a.c("==== spare work-group ====")
    XS, SU = 96, 28
    late_ptrs()
    a(f"s_and_b32 s{T0}, s{S_RB}, 3")
    a(f"s_lshl_b32 s{T0}, s{T0}, 19")
    a(f"s_lshl_b32 s{T1}, s{S_XCD}, 7")
    a(f"s_add_u32 s{T0}, s{T0}, s{T1}")
    a("v_lshlrev_b32 v6, 10, v0")
    a("v_lshrrev_b32 v4, 3, v0")
    a(f"s_lshl_b32 s{T1}, s{S_TB}, 6")
    a(f"v_add_u32 v4, s{T1}, v4")
    a("v_lshlrev_b32 v4, 10, v4")
    a("v_and_b32 v5, 7, v1")
    a("v_lshl_add_u32 v7, v5, 4, v4")
    a("s_waitcnt lgkmcnt(0)")
    if OPT.kvtouch:
        vm.issue("t", f"buffer_load_dword v25, v6, {sr(R_K,4)}, s{T0} offen {OPT.nt_k}")
        vm.issue("t", f"buffer_load_dword v26, v6, {sr(R_V,4)}, s{T0} offen {OPT.nt_k}")
    for kc in range(8):
        vm.issue("xs", f"buffer_load_dwordx4 {vr(XS+4*kc,4)}, v7, {sr(R_X,4)}, 0 offen offset:{128*kc}")
    nonce_code()
    a(f"s_mov_b32 s{S_ONES}, 0x3f803f80")
    for i in range(4): a(f"v_mov_b32 v{SU+i}, 0")
    a("v_lshrrev_b32 v8, 3, v0")
    a(f"s_lshl_b32 s{T0}, s{S_B}, 9")
    a(f"s_add_u32 s{T0}, s{T0}, {L_STAT}")
    a(f"v_lshl_add_u32 v8, v8, 3, s{T0}")
    vm.wait("xs")
    for i in range(32):
        a(f"v_dot2c_f32_bf16 v{SU+(i&1)}, s{S_ONES}, v{XS+i}")
        a(f"v_dot2c_f32_bf16 v{SU+2+(i&1)}, v{XS+i}, v{XS+i}")
    a("s_nop 2")
    a(f"v_add_f32 v{SU}, v{SU}, v{SU+1}")
    a(f"v_add_f32 v{SU+2}, v{SU+2}, v{SU+3}")
    for dpp in ("quad_perm:[1,0,3,2]", "quad_perm:[2,3,0,1]", "row_half_mirror"):
        a("s_nop 0")
        a(f"v_add_f32_dpp v{SU}, v{SU}, v{SU} {dpp} row_mask:0xf bank_mask:0xf")
        a("s_nop 0")
        a(f"v_add_f32_dpp v{SU+2}, v{SU+2}, v{SU+2} {dpp} row_mask:0xf bank_mask:0xf")
    a(f"v_mul_f32 v4, 0x3b000000, v{SU}")
    a(f"v_mul_f32 v6, 0x3b000000, v{SU+2}")
    a("v_fma_f32 v6, -v4, v4, v6")
    a("v_max_f32 v6, 0, v6")
    a("v_add_f32 v6, 0x3727c5ac, v6")
    a("v_rsq_f32 v5, v6")
    a(f"s_cmp_ge_u32 s{S_WAVE}, 4")
    a("ds_write_b64 v8, v[4:5]")
    a("s_waitcnt lgkmcnt(0)")
    barrier()
    a("s_cbranch_scc1 L_lspare")
    read_nonce(20)
    nojob = a.newlabel("L_nojob")
    a(f"s_cmp_lg_u32 s{S_WAVE}, 0")
    a(f"s_cbranch_scc1 {nojob}")
    a(f"v_lshl_add_u32 v5, v1, 3, s{T0}")
    a("ds_read_b64 v[6:7], v5")
    a(f"s_lshl_b32 s{T0}, s{S_TB}, 9")
    a(f"s_add_u32 s{T0}, s{T0}, {WS_ST}")
    a("v_lshlrev_b32 v5, 3, v1")
    a("s_waitcnt lgkmcnt(0)")
    a(f"buffer_store_dwordx2 v[6:7], v5, {sr(R_WS,4)}, s{T0} offen sc1")
    a(f"s_lshl_b32 s{T0}, s{S_TB}, 7")
    a(f"s_add_u32 s{T0}, s{T0}, {WS_FST}")
    a("s_waitcnt vmcnt(0)")
    flag_store(VM(a), 20, T0)
    a.label(nojob)
    if OPT.sp_w2:
        if OPT.sp_delay: lds_wait(L_SP2, 4, 4, 5)
        a(f"s_and_b32 s{T0}, s{S_RB}, 3")
        a(f"s_mul_i32 s{T0}, s{T0}, {448*1024}")
        a("v_lshlrev_b32 v4, 7, v1")
        a(f"v_add_u32 v4, s{T0}, v4")
        a(f"s_mul_i32 s{T1}, s{S_XCD}, 7")
        a(f"s_add_u32 s{T1}, s{T1}, s{S_WAVE}")
        a(f"s_mov_b32 s{T2}, 14")
        a.label("L_spw2")
        a(f"s_cmp_ge_u32 s{T1}, 56")
        a(f"s_cselect_b32 s{T0}, 56, 0")
        a(f"s_sub_u32 s{T1}, s{T1}, s{T0}")
        a(f"s_lshl_b32 s{T0}, s{T1}, 13")
        a(f"buffer_load_dword v25, v4, {sr(R_W2,4)}, s{T0} offen")
        a(f"s_add_u32 s{T1}, s{T1}, 4")
        a(f"s_sub_u32 s{T2}, s{T2}, 1")
        a(f"s_cmp_lg_u32 s{T2}, 0")
        a("s_cbranch_scc1 L_spw2")
    a("s_branch L_cE")
    a.label("L_lspare")
    vm = VM(a)
    l_late_setup()
    prep_loads(vm)
    ssm_loads(vm, 0); ssm_loads(vm, 1)
    read_nonce(PF + 4)
    vm.wait("P")
    prep_compute()
    a("s_waitcnt lgkmcnt(0)")
    lds_add(L_SP1, 4, 5); lds_wait(L_SP1, 4, 4, 5)
    prep_store(vm)
    h_shift(vm); h_write()
    vm.wait("S")
    lds_add(L_SP2, 4, 5); lds_wait(L_SP2, 4, 4, 5)
    fu_flag(vm)
    a(f"s_mov_b32 s{S_KW}, s{S_ROT}")
    for s in range(12): w2_kstep(vm, s, "w0")
    fu_addr()
    spoll(S_PB, T4, 32, 1, sleep=16)
    u_loads(vm)
    stamp_on[0] = True

def l_conv():
    vm = VM(a)
    a.label("L_conv")
    a.c("==== L wave: long convolution ====")
    CA, CB, YA = 10, 11, 12
    FA = [64, 128]; FB = [96, 160]; ACC = 192
    a(f"s_lshr_b32 s{T0}, s{S_LW}, 1")
    a(f"s_mul_i32 s{T1}, s{T0}, 4608")
    a(f"s_add_u32 s{T1}, s{T1}, {L_UB}")
    a(f"v_add_u32 v14, s{T1}, v4")
    a("v_and_b32 v5, 15, v1")
    a("v_lshrrev_b32 v6, 4, v1")
    a("v_lshlrev_b32 v7, 1, v5")
    a("v_sub_u32 v7, v6, v7")
    a("v_add_u32 v7, 30, v7")
    a(f"v_lshl_add_u32 v{CB}, v7, 4, s{T1}")
    a("v_lshlrev_b32 v7, 2, v5")
    a("v_add_u32 v7, v7, v6")
    a("v_lshlrev_b32 v13, 3, v7")
    a(f"s_and_b32 s{T2}, s{S_LW}, 1")
    a(f"s_lshl_b32 s{T4}, s{T2}, 11")
    a(f"s_sub_u32 s{T1}, s{T1}, s{T4}")
    a(f"s_add_u32 s{T1}, s{T1}, {504 + 2048}")
    a(f"v_sub_u32 v{YA}, s{T1}, v13")
    a("v_add_u32 v5, 1, v5")
    a("v_and_b32 v7, 3, v5")
    a("v_sub_u32 v5, v5, v7")
    a("v_lshl_add_u32 v5, v6, 3, v5")
    a("v_lshlrev_b32 v5, 1, v5")
    a(f"v_mul_u32_u24 v7, {HCOPY}, v7")
    a(f"s_mul_i32 s{T1}, s{T0}, {HCH}")
    a(f"s_lshl_b32 s{T4}, s{T2}, 8")
    a(f"s_add_u32 s{T1}, s{T1}, s{T4}")
    a(f"s_add_u32 s{T1}, s{T1}, {L_HB}")
    a(f"v_add3_u32 v{CA}, v5, v7, s{T1}")
    a(f"v_add_u32 v{CB}, s{T4}, v{CB}")
    for r in range(ACC, ACC + 32): a(f"v_mov_b32 v{r}, 0")
    a(f"s_lshl_b32 s{T3}, s{S_LW}, 2")
    a(f"s_add_u32 s{T3}, s{T3}, {L_RING}")
    a("s_waitcnt vmcnt(0)")
    lds_add((T3,), 4, 5)
    for q in range(4):
        a(f"ds_write_b128 v14, {vr(UL+4*q,4)} offset:{1024*q}")
    a("s_waitcnt lgkmcnt(0)")
    lds_add(L_ECNT, 4, 5)
    stamp("L", "pre_E")
    lds_wait(L_ECNT, 8, 4, 5)
    stamp("L", "conv_go")
    if OPT.cprio: a(f"s_setprio {OPT.cprio}")
    a(f"s_mov_b32 s{T2}, 0")
    def reads(b, extra):
        R = []
        for k in range(8):
            R.append(f"ds_read_b64 {vr(FA[b]+4*k,2)}, v{CA} offset:{512*k+extra}")
            R.append(f"ds_read_b64 {vr(FA[b]+4*k+2,2)}, v{CA} offset:{512*k+8+extra}")
            R.append(f"ds_read_b128 {vr(FB[b]+4*k,4)}, v{CB} offset:{512*(7-k)+extra}")
        return R
    for r in reads(0, 0): a(r)
    a(".p2align 3")
    a.label("L_conv_loop")
    for b in range(2):
        nxt = reads(b ^ 1, 64 * (b + 1))
        a("s_waitcnt lgkmcnt(0)")
        mf = [(n, s1) for s1 in range(8) for n in range(s1, 8)]
        for idx, (n, s1) in enumerate(mf):
            d = vr(ACC + 4 * n, 4)
            a(f"v_mfma_f32_16x16x32_bf16 {d}, {vr(FA[b]+4*s1,4)}, {vr(FB[b]+4*(n-s1),4)}, {d}")
            if idx < len(nxt): a(nxt[idx])
            if b == 1 and idx == len(mf) - 3:
                a(f"v_add_u32 v{CA}, 128, v{CA}")
                a(f"v_add_u32 v{CB}, 128, v{CB}")
                a(f"s_add_u32 s{T2}, s{T2}, 1")
                a(f"s_cmp_lt_u32 s{T2}, 2")
    a("s_cbranch_scc1 L_conv_loop")
    stamp("L", "conv_end")
    a(f"s_lshl_b32 s{T0}, s{S_LW}, 12")
    a(f"s_add_u32 s{T0}, s{T0}, {L_XCH}")
    a(f"v_lshl_add_u32 v14, v1, 4, s{T0}")
    a(f"s_xor_b32 s{T1}, s{S_LW}, 1")
    a(f"s_lshl_b32 s{T1}, s{T1}, 12")
    a(f"s_add_u32 s{T1}, s{T1}, {L_XCH}")
    a(f"v_lshl_add_u32 v15, v1, 4, s{T1}")
    a(f"v_add_u32 v13, s{T1}, v13")
    a(f"s_lshr_b32 s{T4}, s{S_LW}, 1")
    a(f"s_lshl_b32 s{T4}, s{T4}, 2")
    a(f"s_add_u32 s{T4}, s{T4}, {L_PAIR}")
    a(f"s_bitcmp1_b32 s{S_LW}, 0")
    a("s_waitcnt lgkmcnt(0)")
    a("s_cbranch_scc1 L_xch1")
    for ti in range(4): a(f"ds_write_b128 v14, {vr(ACC+16+4*ti,4)} offset:{1024*ti}")
    a("s_branch L_xch2")
    a.label("L_xch1")
    for ti in range(4): a(f"ds_write_b128 v14, {vr(ACC+4*ti,4)} offset:{1024*ti}")
    a("s_nop 1")
    for r in range(16): a(f"v_mov_b32 v{ACC+r}, v{ACC+16+r}")
    a.label("L_xch2")
    for ti in range(4):
        a(f"ds_read_b64 {vr(32+2*ti,2)}, v{YA} offset:{512*(3-ti)}")
    a(f"s_bitcmp1_b32 s{S_CH}, 0")
    a(f"s_cselect_b32 s{T3}, 0, 16")
    a(f"s_lshl_b32 s{T3}, s{S_D}, s{T3}")
    a(f"s_and_b32 s{T3}, s{T3}, 0xffff0000")
    a("s_waitcnt lgkmcnt(0)")
    lds_add((T4,), 4, 5)
    for ti in range(4):
        u = 32 + 2 * ti; t = 40 + 4 * ti; y = ACC + 4 * ti
        a(f"v_and_b32 v{t}, 0xffff0000, v{u+1}")
        a(f"v_lshlrev_b32 v{t+1}, 16, v{u+1}")
        a(f"v_and_b32 v{t+2}, 0xffff0000, v{u}")
        a(f"v_lshlrev_b32 v{t+3}, 16, v{u}")
        for r in range(4): a(f"v_fmac_f32 v{y+r}, s{T3}, v{t+r}")
    lds_wait((T4,), 2, 4, 5)
    stamp("L", "m_xch")
    for ti in range(4): a(f"ds_read_b128 {vr(40+4*ti,4)}, v15 offset:{1024*ti}")
    a(f"s_and_b32 s{T1}, s{S_LW}, 1")
    a(f"s_lshl_b32 s{T1}, s{T1}, 11")
    a(f"s_lshl_b32 s{T0}, s{S_CH}, 12")
    a(f"s_add_u32 s{T0}, s{T0}, s{T1}")
    a(f"s_add_u32 s{T0}, s{T0}, {WS_Y}")
    a("v_lshlrev_b32 v5, 4, v1")
    a("s_waitcnt lgkmcnt(0)")
    for ti in range(4):
        u = 32 + 2 * ti; t = 40 + 4 * ti; y = ACC + 4 * ti
        for r in range(4): a(f"v_add_f32 v{y+r}, v{y+r}, v{t+r}")
        a(f"v_cvt_pk_bf16_f32 v{u}, v{y}, v{y+1}")
        a(f"v_cvt_pk_bf16_f32 v{u+1}, v{y+2}, v{y+3}")
        a(f"ds_write_b64 v13, {vr(u,2)} offset:{512*ti}")
    a("s_waitcnt lgkmcnt(0)")
    a("ds_read_b128 v[40:43], v15")
    a("ds_read_b128 v[44:47], v15 offset:1024")
    a("s_waitcnt lgkmcnt(0)")
    a(f"buffer_store_dwordx4 v[40:43], v5, {sr(R_WS,4)}, s{T0} offen sc1")
    a(f"buffer_store_dwordx4 v[44:47], v5, {sr(R_WS,4)}, s{T0} offen offset:1024 sc1")
    if OPT.cprio: a("s_setprio 0")
    stamp("L", "m_yst")
    a(f"s_lshl_b32 s{T0}, s{S_XCD}, 10")
    a(f"s_lshl_b32 s{T2}, s{S_J}, 2")
    a(f"s_add_u32 s{T0}, s{T0}, s{T2}")
    a(f"s_add_u32 s{T0}, s{T0}, {WS_FY}")
    a("v_lshlrev_b32 v17, 7, v1")
    a(f"v_mov_b32 v16, s{S_NONCE}")
    a(f"v_mov_b32 v18, {L_YCNT}")
    a("v_mov_b32 v19, 1")
    vm.waitall()
    a("s_mov_b64 exec, 1")
    a("ds_add_rtn_u32 v19, v18, v19")
    a("s_waitcnt lgkmcnt(0)")
    a(f"v_readfirstlane_b32 s{T2}, v19")
    a("s_mov_b64 exec, 0xff")
    a(f"s_cmp_lg_u32 s{T2}, 3")
    a("s_cbranch_scc1 L_ynopub")
    a(f"buffer_store_dword v16, v17, {sr(R_WS,4)}, s{T0} offen sc1")
    a.label("L_ynopub")
    a("s_mov_b64 exec, -1")
    stamp("L", "y_flag")
    final_x_load(vm)
    a(f"s_lshl_b32 s{T4}, s{S_I}, 3")
    a(f"s_add_u32 s{T4}, s{T4}, s{S_XCD}")
    a(f"s_lshl_b32 s{T4}, s{T4}, 7")
    a(f"s_add_u32 s{T4}, s{T4}, {WS_FY}")
    a("v_lshrrev_b32 v4, 3, v1")
    a("v_lshlrev_b32 v4, 12, v4")
    a("v_and_b32 v5, 7, v1")
    a("v_lshl_add_u32 v4, v5, 4, v4")
    a(f"s_lshl_b32 s{T2}, s{S_I}, 18")
    a(f"s_lshl_b32 s{T3}, s{S_LW}, 16")
    a(f"s_add_u32 s{T2}, s{T2}, s{T3}")
    a(f"s_lshl_b32 s{T3}, s{S_TB}, 7")
    a(f"s_add_u32 s{T2}, s{T2}, s{T3}")
    a(f"s_add_u32 s{T2}, s{T2}, {WS_Y}")
    a(f"s_add_u32 s{T3}, s{T2}, 32768")
    a(f"s_cmp_lg_u32 s{S_LW}, 0")
    a("s_cbranch_scc1 L_ywait")
    spoll(S_PB, T4, 32, 1)
    lds_wait(L_YCNT, 4, 6, 7)
    lds_add(L_YOK, 6, 7)
    a.label("L_ywait")
    lds_wait(L_YOK, 1, 6, 7)
    stamp("L", "y_seen")
    vm.issue("Y", f"buffer_load_dwordx4 v[40:43], v4, {sr(R_WS,4)}, s{T2} offen sc1")
    vm.issue("Y", f"buffer_load_dwordx4 v[44:47], v4, {sr(R_WS,4)}, s{T3} offen sc1")
    a("v_bfe_u32 v4, v1, 2, 2")
    a("v_lshlrev_b32 v4, 7, v4")
    a("v_lshrrev_b32 v5, 4, v1")
    a("v_lshl_add_u32 v4, v5, 5, v4")
    a("v_and_b32 v5, 3, v1")
    a("v_lshl_add_u32 v4, v5, 3, v4")
    a(f"s_lshl_b32 s{T0}, s{S_LW}, 11")
    a(f"s_add_u32 s{T0}, s{T0}, {L_YS}")
    a(f"v_add_u32 v4, s{T0}, v4")
    a("v_mul_u32_u24 v5, 144, v1")
    a(f"s_lshl_b32 s{T0}, s{S_LW}, 5")
    a(f"s_add_u32 s{T0}, s{T0}, {L_YT}")
    a(f"v_add_u32 v5, s{T0}, v5")
    a(f"s_lshl_b32 s{T0}, s{S_LW}, 11")
    a(f"s_add_u32 s{T0}, s{T0}, {L_YS}")
    a(f"v_lshl_add_u32 v14, v1, 4, s{T0}")
    vm.waitall()
    a("ds_write_b128 v14, v[40:43]")
    a("ds_write_b128 v14, v[44:47] offset:1024")
    a("s_waitcnt lgkmcnt(0)")
    for dd in range(4):
        a(f"ds_read_b64_tr_b16 {vr(48+2*dd,2)}, v4 offset:{512*dd}")
    a("s_waitcnt lgkmcnt(0)")
    a("ds_write_b128 v5, v[48:51]")
    a("ds_write_b128 v5, v[52:55] offset:16")
    stamp("L", "pre_final")

def build():
    prologue()
    c_start()
    c_g1()
    c_g2()
    l_main()
    spare()
    l_conv()
    final()
    a.label("L_code_end")
    hdr = open("recurrent_scan__ssm_conv_h3__glu_gated_swiglu__prompt.s.ref").read().split("; Override launch")[0]
    return f"""{hdr}; Generated by gen/gen.py (hand-written generator; one fused persistent kernel).
; @launch grid=(256,1,1) block=(512,1,1) lds={LDS_BYTES}
.amdgcn_target "amdgcn-amd-amdhsa--gfx950"
.text
.globl {NAME}
.p2align 8
.type {NAME},@function
{NAME}:
{a.text()}
.section .rodata,"a"
.p2align 6
.amdhsa_kernel {NAME}
  .amdhsa_next_free_vgpr 256
  .amdhsa_next_free_sgpr 102
  .amdhsa_accum_offset 256
  .amdhsa_group_segment_fixed_size 0
  .amdhsa_kernarg_size 104
  .amdhsa_user_sgpr_count 2
  .amdhsa_user_sgpr_kernarg_segment_ptr 1
  .amdhsa_system_sgpr_workgroup_id_x 1
  .amdhsa_float_denorm_mode_32 3
.end_amdhsa_kernel
"""

if __name__ == "__main__":
    out = sys.argv[1]
    for kv in sys.argv[2:]:
        k, v = kv.split("=")
        cur = getattr(OPT, k)
        setattr(OPT, k, type(cur)(int(v)) if isinstance(cur, (bool, int)) else v)
    s = build()
    open(out, "w").write(s)
    if OPT.prof:
        import json
        json.dump(nstamp, open(out + ".stamps.json", "w"))
```

```python
import sys
from asmlib import Asm, VM, vr, sr

NAME = "recurrent_scan__ssm_conv_h3__glu_gated_swiglu__prompt_kernel"

class Opt:
    prof = False
    x_bst = False
    nt_k = ""
    nt_v = ""
    nt_s = ""
    nt_w = ""
    code_pf = True
    prio = False
    cprio = 2
    gprio = 3
    x_st = False
    p_after = False
    tlb = False
    pairswap = False
    sp_delay = True
    w2warm = False
    w2t_at = 4
    lprio = 0
    late_st = False
    kvtouch = False
    touch = True
    touch_at = 2
    w2touch = False
    ring_early = False
    sp_w2 = True
    rot1 = 8
    rot2 = 2
    ticket = True
    x_g2st = False
    x_hmode = 0
    x_hst = "sc1"
    x_mid = False
    h_ld = "sc1"
    nbk = 6
OPT = Opt()

WS_UT = 0
WS_Y = 2 << 20
WS_H = 4 << 20
WS_CS = 12 << 20
WS_ST = WS_CS + (256 << 10)
WS_FU = WS_ST + (16 << 10)
WS_FCS = WS_FU + (16 << 10)
WS_FST = WS_FCS + (16 << 10)
WS_FH = WS_FST + (16 << 10)
WS_FY = WS_FH + (16 << 10)
WS_TK = WS_FY + (16 << 10)
WS_PROF = 13 << 20
WS_SIZE = 16 << 20

SLOT = 49152
L_HB = 98304
HCOPY = 4160
HCH = 4 * HCOPY
L_UB = L_HB + 2 * HCH
L_YT = L_UB + 2 * 4608
L_XCH = L_YT
L_YS = L_HB
L_SCR = 147456
L_CSP = L_SCR + 8320
L_TAPS = L_CSP + 4096
L_STAT = L_TAPS + 1024
L_CS = L_STAT + 1024
L_NONCE = L_CS + 1024
L_YCNT = L_NONCE + 8
L_ECNT = L_NONCE + 12
L_RING = L_NONCE + 16
L_PAIR = L_NONCE + 32
L_YOK = L_NONCE + 40
L_SP1 = L_NONCE + 44
L_SP2 = L_NONCE + 48
L_SP3 = L_NONCE + 52
L_VID = L_NONCE + 56
L_STP = L_NONCE + 64
LDS_BYTES = 163840
assert L_XCH + 16384 <= L_TAPS and L_STP + 64 <= LDS_BYTES

S_WAVE, S_XCD, S_J, S_RB, S_I = 3, 4, 5, 6, 7
STAMP0 = 8
NSTAMP = 10
S_ROT, S_SPIN = 32, 33
S_B, S_CB = 34, 35
R_X, R_WS, R_OUT, R_W1, R_W3, R_K, R_V, R_SH, R_SSM, R_DBG, R_WT, R_W2 = 36, 40, 44, 48, 52, 56, 60, 64, 68, 72, 76, 28
S_PB = 48
S_PC = 56
S_TB, S_LW = 80, 81
S_NONCE = 82
S_D = 84
T0, T1, T2, T3, T4, T5 = 85, 86, 87, 88, 89, 90
S_LW1K = 91
S_OX, S_OW = 92, 93
S_CH = 94
S_ONES = 95
S_R1 = 95
S_VX, S_VJ = 0, 1
S_XB, S_WB = 77, 78
S_G = 76
S_EX = 96
S_ST0 = 98
S_RT0 = 100
SPIN_MAX = 0x40000
NLOG2E = 0xbfb8aa3b
NLN2 = 0xbf317218

a = Asm()
nstamp = {}

class capture:
    def __enter__(self):
        self.saved = a.L; a.L = []; return a.L
    def __exit__(self, *e):
        a.L = self.saved

stamp_on = [True]
def stamp(role, name):
    if not OPT.prof or not stamp_on[0]: return
    if role == "L" and OPT.x_bst != name.startswith("B"): return
    if role == "L" and name.startswith("s_") and not OPT.x_st: return
    if role == "L" and OPT.x_st and not name.startswith(("s_", "first", "c0", "fu_")): return
    if role == "L" and name.startswith("m_") and not OPT.x_mid: return
    if role == "L" and OPT.x_mid and name in ("first_ld", "first_dma", "c0", "fu_flag", "m_csseen", "m_b6", "m_w2iss", "m_useen"): return
    if role == "C" and OPT.x_g2st and not name.startswith(("k", "h_", "g2", "E")): return
    if role == "C" and not OPT.x_g2st and name.startswith("k"): return
    k = nstamp.setdefault(role, [])
    idx = len(k)
    assert idx < NSTAMP, "too many stamps"
    k.append(name)
    a(f"s_memtime {sr(STAMP0 + 2 * idx, 2)}")

def barrier():
    a("s_barrier")

def read_nonce(vtmp):
    a(f"v_mov_b32 v{vtmp+2}, {L_NONCE}")
    a(f"ds_read_b64 {vr(vtmp,2)}, v{vtmp+2}")
    a("s_waitcnt lgkmcnt(0)")
    a(f"v_readfirstlane_b32 s{S_NONCE}, v{vtmp}")
    a(f"v_readfirstlane_b32 s{S_NONCE+1}, v{vtmp+1}")

def flag_store(vm, vtmp, s_off, tag="flag"):
    a(f"v_mov_b32 v{vtmp}, s{S_NONCE}")
    a(f"v_mov_b32 v{vtmp+1}, s{S_NONCE+1}")
    a("s_mov_b64 exec, 1")
    vm.issue(tag, f"buffer_store_dwordx2 {vr(vtmp,2)}, off, {sr(R_WS,4)}, s{s_off} sc1")
    a("s_mov_b64 exec, -1")

def poll_issue(vm, vdst, voff, tag):
    vm.issue(tag, f"buffer_load_dwordx2 {vr(vdst,2)}, v{voff}, {sr(R_WS,4)}, 0 offen sc1")

def poll_check(vm, vdst, voff, tag, sleep=2):
    ok = a.newlabel("L_pok"); again = a.newlabel("L_pagain")
    vm.wait(tag)
    a(f"v_cmp_ne_u64 vcc, {sr(S_NONCE,2)}, {vr(vdst,2)}")
    a(f"s_cbranch_vccz {ok}")
    a(f"s_mov_b32 s{S_SPIN}, {SPIN_MAX}")
    a.label(again)
    a(f"s_sub_u32 s{S_SPIN}, s{S_SPIN}, 1")
    a(f"s_cbranch_scc1 {ok}")
    a(f"s_sleep {sleep}")
    a(f"buffer_load_dwordx2 {vr(vdst,2)}, v{voff}, {sr(R_WS,4)}, 0 offen sc1")
    a("s_waitcnt vmcnt(0)")
    a(f"v_cmp_ne_u64 vcc, {sr(S_NONCE,2)}, {vr(vdst,2)}")
    a(f"s_cbranch_vccnz {again}")
    a.label(ok)

def spoll_issue(pb, s_off, nd):
    a(f"s_load_dwordx16 {sr(pb,16)}, {sr(R_WS,2)}, s{s_off} glc")
    if nd > 16:
        a(f"s_add_u32 s{T0}, s{s_off}, 64")
        a(f"s_load_dwordx16 {sr(pb+16,16)}, {sr(R_WS,2)}, s{T0} glc")

def spoll_test(pb, nd, words):
    ref = S_NONCE if words == 2 else S_EX
    for p in range(nd // 2):
        a(f"s_xor_b64 {sr(pb+2*p,2)}, {sr(pb+2*p,2)}, {sr(ref,2)}")
        if p: a(f"s_or_b64 {sr(pb,2)}, {sr(pb,2)}, {sr(pb+2*p,2)}")

def spoll(pb, s_off, n, words, sleep=4):
    ok = a.newlabel("L_sok"); again = a.newlabel("L_sagain")
    nd = n * words
    a(f"s_mov_b32 s{S_SPIN}, {SPIN_MAX}")
    a.label(again)
    spoll_issue(pb, s_off, nd)
    a(f"s_sub_u32 s{S_SPIN}, s{S_SPIN}, 1")
    a(f"s_cbranch_scc1 {ok}")
    a("s_waitcnt lgkmcnt(0)")
    spoll_test(pb, nd, words)
    a(f"s_cbranch_scc0 {ok}")
    a(f"s_sleep {sleep}")
    a(f"s_branch {again}")
    a.label(ok)

def lds_add(addr, v0_, v1_):
    a(f"v_mov_b32 v{v0_}, {addr}" if isinstance(addr, int) else f"v_mov_b32 v{v0_}, s{addr[0]}")
    a(f"v_mov_b32 v{v1_}, 1")
    a("s_mov_b64 exec, 1")
    a(f"ds_add_u32 v{v0_}, v{v1_}")
    a("s_mov_b64 exec, -1")

def lds_wait(addr, val, v0_, v1_):
    ok = a.newlabel("L_lok"); again = a.newlabel("L_lagain")
    a(f"v_mov_b32 v{v0_}, {addr}" if isinstance(addr, int) else f"v_mov_b32 v{v0_}, s{addr[0]}")
    a.label(again)
    a(f"ds_read_b32 v{v1_}, v{v0_}")
    a("s_waitcnt lgkmcnt(0)")
    a(f"v_cmp_eq_u32 vcc, {val}, v{v1_}")
    a(f"s_cbranch_vccnz {ok}")
    a("s_sleep 1")
    a(f"s_branch {again}")
    a.label(ok)

def unpack(dst, src):
    a(f"v_lshlrev_b32 v{dst}, 16, v{src}")
    a(f"v_and_b32 v{dst+1}, 0xffff0000, v{src}")

FIRST_A = ((R_WS, 96), (R_K, 8), (R_V, 16), (R_SH, 24), (R_SSM, 32), (R_DBG, 88), (S_EX, 40))
LATE_A = ((R_X, 0), (R_W1, 56), (R_W3, 64), (R_W2, 72), (R_OUT, 80))
FIRST_B = ((R_WS, 96), (R_X, 0), (R_W1, 56), (R_W3, 64), (R_SSM, 32), (R_DBG, 88), (S_EX, 40))
LATE_B = ((R_K, 8), (R_V, 16), (R_SH, 24), (R_W2, 72), (R_OUT, 80))
def prologue():
    a("s_cmp_ge_u32 s2, 256")
    a("s_cbranch_scc1 L_end")
    for r, off in (FIRST_B if OPT.p_after else FIRST_A):
        a(f"s_load_dwordx2 {sr(r,2)}, s[0:1], {off}")
    if OPT.prof:
        a(f"s_memtime {sr(S_ST0,2)}")
        a(f"s_memrealtime {sr(S_RT0,2)}")
    a("v_lshrrev_b32 v2, 6, v0")
    a("v_and_b32 v1, 63, v0")
    a(f"s_and_b32 s{S_XCD}, s2, 7")
    a(f"v_readfirstlane_b32 s{S_WAVE}, v2")
    a(f"s_lshr_b32 s{S_J}, s2, 3")
    if OPT.code_pf:
        skip = a.newlabel("L_nopf")
        a(f"s_cmp_lg_u32 s{S_WAVE}, 2")
        a(f"s_cbranch_scc1 {skip}")
        a(f"s_getpc_b64 {sr(T3,2)}")
        a.label("L_pcref")
        a(f"s_add_u32 s{T0}, s{S_J}, s2")
        a(f"s_and_b32 s{T0}, s{T0}, 3")
        a(f"v_lshl_add_u32 v2, s{T0}, 6, v1")
        a("v_lshlrev_b32 v2, 7, v2")
        a("v_min_u32 v2, L_code_end-L_pcref-4, v2")
        a(f"global_load_dword v24, v2, {sr(T3,2)}")
        a.label(skip)
    a(f"s_and_b32 s{S_LW}, s{S_WAVE}, 3")
    a(f"s_lshl_b32 s{S_LW1K}, s{S_LW}, 10")
    for r, size in ((R_WS, WS_SIZE), (R_K, 2 << 20), (R_V, 2 << 20), (R_SH, 4096), (R_SSM, 4096), (R_DBG, 256),
                    (R_X, 2 << 20), (R_W1, 512 * 3584), (R_W3, 512 * 3584), (R_W2, 1792 * 1024), (R_OUT, 2 << 20)):
        a(f"s_mov_b32 s{r+2}, {size}")
        a(f"s_mov_b32 s{r+3}, 0x20000")
    a(f"s_cmp_ge_u32 s{S_WAVE}, 4")
    a("s_cbranch_scc1 L_lstart")

def late_ptrs():
    for r, off in (LATE_B if OPT.p_after else LATE_A):
        a(f"s_load_dwordx2 {sr(r,2)}, s[0:1], {off}")

def decode(vt):
    a(f"v_mov_b32 v{vt}, {L_VID}")
    a(f"ds_read_b32 v{vt}, v{vt}")
    a("s_waitcnt lgkmcnt(0)")
    a(f"v_readfirstlane_b32 s{S_VJ}, v{vt}")
    a(f"s_and_b32 s{S_VX}, s{S_VJ}, 7")
    a(f"s_lshr_b32 s{S_VJ}, s{S_VJ}, 3")
    a(f"s_and_b32 s{S_I}, s{S_VJ}, 7")
    a(f"s_and_b32 s{S_B}, s{S_VX}, 1")
    a(f"s_lshr_b32 s{S_VJ}, s{S_VJ}, 3")
    a(f"s_and_b32 s{S_RB}, s{S_VX}, 6")
    a(f"s_lshl_b32 s{S_RB}, s{S_RB}, 1")
    a(f"s_add_u32 s{S_RB}, s{S_RB}, s{S_VJ}")
    a(f"s_mul_i32 s{S_CB}, s{S_B}, 7")
    a(f"s_add_u32 s{S_CB}, s{S_CB}, s{S_I}")

def decode2():
    a(f"s_lshl_b32 s{S_TB}, s{S_RB}, 1")
    a(f"s_add_u32 s{S_TB}, s{S_TB}, s{S_B}")
    a(f"s_mul_i32 s{S_ROT}, s{S_I}, 7")
    a(f"s_lshr_b32 s{S_ROT}, s{S_ROT}, 1")
    a(f"s_mul_i32 s{T2}, s{S_VJ}, 7")
    a(f"s_add_u32 s{S_ROT}, s{S_ROT}, s{T2}")
    a(f"s_mul_i32 s{T2}, s{S_VX}, 3")
    a(f"s_add_u32 s{S_ROT}, s{S_ROT}, s{T2}")
    for _ in range(2):
        a(f"s_cmp_ge_u32 s{S_ROT}, 28")
        a(f"s_cselect_b32 s{T2}, 28, 0")
        a(f"s_sub_u32 s{S_ROT}, s{S_ROT}, s{T2}")

def nonce_issue(vt):
    return f"buffer_load_dwordx2 {vr(vt,2)}, off, {sr(R_DBG,4)}, 0 sc1"

def nonce_check(vt):
    ok = a.newlabel("L_nok"); again = a.newlabel("L_nagain")
    a(f"s_mov_b32 s{S_SPIN}, {SPIN_MAX}")
    a.label(again)
    a(f"v_cmp_gt_i32 vcc, 0, v{vt+1}")
    a(f"s_cbranch_vccnz {ok}")
    a(nonce_issue(vt))
    a(f"s_sub_u32 s{S_SPIN}, s{S_SPIN}, 1")
    a("s_waitcnt vmcnt(0)")
    a(f"s_cbranch_scc0 {again}")
    a.label(ok)
    a(f"v_readfirstlane_b32 s{S_NONCE}, v{vt}")
    a(f"v_readfirstlane_b32 s{S_NONCE+1}, v{vt+1}")

def start_jobs():
    n1 = a.newlabel("L_sj1"); n2 = a.newlabel("L_sj2")
    a(f"s_cmp_lg_u32 s{S_WAVE}, 0")
    a(f"s_cbranch_scc1 {n1}")
    if OPT.ticket:
        a(f"s_getreg_b32 s{T1}, hwreg(HW_REG_XCC_ID)")
        a(f"s_and_b32 s{T1}, s{T1}, 7")
        a(f"s_lshl_b32 s{T2}, s{T1}, 7")
        a(f"s_add_u32 s{T2}, s{T2}, {WS_TK}")
        a("v_mov_b32 v7, 1")
        a("s_waitcnt lgkmcnt(0)")
        a("s_mov_b64 exec, 1")
        a(f"buffer_atomic_add v7, off, {sr(R_WS,4)}, s{T2} sc0 sc1")
        a("s_mov_b64 exec, -1")
    a(f"v_mov_b32 v6, {L_NONCE}")
    a("v_mov_b32 v4, 0")
    a("v_mov_b32 v5, 0")
    for o in (8, 16, 24, 32, 40, 48): a(f"ds_write_b64 v6, v[4:5] offset:{o}")
    a(f"s_branch {n2}")
    a.label(n1)
    a(f"s_cmp_lg_u32 s{S_WAVE}, 1")
    a(f"s_cbranch_scc1 {n2}")
    a("s_cmp_lg_u32 s2, 0")
    a(f"s_cbranch_scc1 {n2}")
    a(f"s_memrealtime {sr(T1,2)}")
    a("s_waitcnt lgkmcnt(0)")
    a(f"s_or_b32 s{T2}, s{T2}, 0x80000000")
    a(f"v_mov_b32 v4, s{T1}")
    a(f"v_mov_b32 v5, s{T2}")
    a("s_mov_b64 exec, 1")
    a(f"buffer_store_dwordx2 v[4:5], off, {sr(R_DBG,4)}, 0 sc1")
    a("s_mov_b64 exec, -1")
    a.label(n2)

def ticket_done():
    n1 = a.newlabel("L_td")
    a(f"s_cmp_lg_u32 s{S_WAVE}, 0")
    a(f"s_cbranch_scc1 {n1}")
    if OPT.ticket:
        a("s_waitcnt vmcnt(0)")
        a("v_and_b32 v7, 31, v7")
        a(f"v_lshl_add_u32 v7, v7, 3, s{T1}")
    else:
        a("v_mov_b32 v7, s2")
    a("s_mov_b64 exec, 1")
    a(f"ds_write_b32 v6, v7 offset:{L_VID - L_NONCE}")
    a("s_mov_b64 exec, -1")
    a.label(n1)
assert T1 % 2 == 0 and T3 % 2 == 0

ACC1 = 128
def acc1(gu, m, n): return ACC1 + 16 * (4 * n + 2 * m + gu)
def abuf(b, m, gu): return 64 + 16 * b + 4 * (2 * m + gu)
def bbuf(b, n): return 96 + 8 * b + 4 * n
VA = 10
VB = 12

def c_g1_reads(ks, b):
    tr = lambda m, gu, jj: f"ds_read_b64_tr_b16 {vr(abuf(b,m,gu)+2*jj,2)}, v{VA+m} offset:{16384+gu*16384+(16*ks+4*jj)*256}"
    bb = lambda n: f"ds_read_b128 {vr(bbuf(b,n),4)}, v{VB+ks} offset:{4096*n}"
    return [[bb(0), tr(0,0,0), tr(0,0,1)], [tr(0,1,0), tr(0,1,1), tr(1,0,0)], [tr(1,0,1), tr(1,1,0), tr(1,1,1)], [bb(1)]]

def c_start():
    a.c("==== C wave: set-up ====")
    start_jobs()
    late_ptrs()
    a("v_lshrrev_b32 v3, 5, v1")
    a("v_and_b32 v2, 31, v1")
    a(f"s_and_b32 s{T0}, s{S_WAVE}, 1")
    a(f"s_lshr_b32 s{T4}, s{S_WAVE}, 1")
    a("v_bfe_u32 v4, v1, 1, 3")
    a(f"s_lshl_b32 s{T2}, s{T0}, 13")
    a(f"v_lshl_add_u32 v5, v2, 7, s{T2}")
    for ks in range(4):
        a(f"v_add_u32 v8, {2*ks}, v3")
        a("v_xor_b32 v8, v8, v4")
        a(f"v_lshl_add_u32 v{VB+ks}, v8, 4, v5")
    a("v_bfe_u32 v4, v1, 2, 2")
    a("v_lshl_add_u32 v5, v3, 3, v4")
    a("v_lshlrev_b32 v5, 8, v5")
    a("v_bfe_u32 v8, v1, 4, 1")
    a("v_lshl_add_u32 v5, v8, 5, v5")
    a("v_and_b32 v8, 3, v1")
    a("v_lshl_add_u32 v5, v8, 3, v5")
    a(f"s_lshl_b32 s{T2}, s{T4}, 1")
    for m in range(2):
        a(f"s_add_u32 s{T3}, s{T2}, {m}")
        a(f"v_xor_b32 v8, s{T3}, v4")
        a(f"v_lshl_add_u32 v{VA+m}, v8, 6, v5")
    for r in range(ACC1, 256, 2):
        a(f"v_pk_mov_b32 {vr(r,2)}, 0, 0")
    ticket_done()
    a("s_waitcnt lgkmcnt(0)")
    barrier()
    stamp("C", "V")
    decode(4); decode2()
    a(f"s_cmp_eq_u32 s{S_I}, 7")
    a("s_cbranch_scc1 L_cspare")
    a(f"s_lshr_b32 s{T1}, s{S_WAVE}, 1")
    a(f"s_mov_b32 s{T4}, 0")
    a(f"s_mov_b32 s{T5}, 0")
    a(f"s_mov_b32 s{S_OX}, {(-2*SLOT) & 0xffffffff}")
    a(f"s_mov_b32 s{S_OW}, {SLOT}")
    barrier()

def c_g1():
    a.c("==== C wave: GEMM1 ====")
    stamp("C", "g1_start")
    for grp in c_g1_reads(0, 0):
        for r in grp: a(r)
    a(".p2align 3")
    a.label("L_cg1")
    for ks in range(4):
        b = ks & 1
        nxt = c_g1_reads((ks + 1) & 3, b ^ 1)
        a("s_waitcnt lgkmcnt(0)")
        i = 0
        for n in range(2):
            for m in range(2):
                for gu in range(2):
                    d = vr(acc1(gu, m, n), 16)
                    a(f"v_mfma_f32_32x32x16_bf16 {d}, {vr(abuf(b,m,gu),4)}, {vr(bbuf(b,n),4)}, {d}")
                    if ks == 3 and i == 0:
                        barrier()
                    if i < 4:
                        for r in nxt[i]: a(r)
                    if ks == 2 and i == 4:
                        a(f"s_add_u32 s{T5}, s{T5}, 1")
                        a(f"s_cmp_eq_u32 s{T5}, 3")
                        a(f"s_cselect_b32 s{T3}, s{S_OX}, s{S_OW}")
                        a(f"s_cselect_b32 s{T5}, 0, s{T5}")
                    if ks == 2 and i == 5:
                        for k in range(3): a(f"v_add_u32 v{VA+k}, s{T3}, v{VA+k}")
                    if ks == 2 and i == 6:
                        for k in range(3, 6): a(f"v_add_u32 v{VA+k}, s{T3}, v{VA+k}")
                    if ks == 3 and i == 6:
                        a(f"s_add_u32 s{T4}, s{T4}, 1")
                        a(f"s_cmp_lt_u32 s{T4}, 8")
                    i += 1
    a("s_cbranch_scc1 L_cg1")
    stamp("C", "g1_end")
    a.c("---- GEMM1 epilogue ----")
    if OPT.prio: a("s_setprio 3")
    CS = 32
    ST = 16
    a(f"s_lshl_b32 s{T2}, s{T0}, 9")
    a(f"s_add_u32 s{T2}, s{T2}, {L_STAT}")
    a(f"v_lshl_add_u32 v4, v2, 3, s{T2}")
    a(f"s_lshl_b32 s{T2}, s{T1}, 8")
    a(f"s_add_u32 s{T2}, s{T2}, {L_CS}")
    a(f"v_lshl_add_u32 v5, v3, 4, s{T2}")
    a("s_waitcnt vmcnt(0) lgkmcnt(0)")
    a(f"ds_read_b64 {vr(ST,2)}, v4")
    a(f"ds_read_b64 {vr(ST+2,2)}, v4 offset:256")
    for m in range(2):
        for gu in range(2):
            for j in range(4):
                a(f"ds_read_b128 {vr(CS+16*(2*m+gu)+4*j,4)}, v5 offset:{gu*512+m*128+j*32}")
    a(f"s_lshl_b32 s{T2}, s{S_RB}, 2")
    a(f"s_lshl_b32 s{T3}, s{T0}, 1")
    a(f"s_add_u32 s{T2}, s{T2}, s{T3}")
    a(f"s_mul_i32 s{T2}, s{T2}, 112")
    a(f"s_lshl_b32 s{T3}, s{S_CB}, 3")
    a(f"s_add_u32 s{T2}, s{T2}, s{T3}")
    a(f"s_lshl_b32 s{T3}, s{T1}, 2")
    a(f"s_add_u32 s{T2}, s{T2}, s{T3}")
    a(f"s_lshl_b32 s{T2}, s{T2}, 10")
    a(f"s_add_u32 s{T2}, s{T2}, {WS_H}")
    a(f"s_add_u32 s{T3}, s{T2}, {112*1024}")
    a("v_lshlrev_b32 v6, 4, v1")
    read_nonce(20)
    a(f"v_mul_f32 v24, 0x{NLOG2E:x}, v{ST+1}")
    a(f"v_mul_f32 v26, 0x{NLOG2E:x}, v{ST+3}")
    E = 96; O = 112
    blk = 0
    late = []
    for n in range(2):
        st = vr(ST + 2 * n, 2)
        for m in range(2):
            for hb in range(2):
                A = acc1(0, m, n) + 8 * hb; B = acc1(1, m, n) + 8 * hb
                CG = CS + 16 * (2 * m) + 8 * hb; CU = CS + 16 * (2 * m + 1) + 8 * hb
                e = E + 8 * (blk & 1); o = O + 4 * (blk & 3)
                if OPT.late_st: o = B
                for p in range(4):
                    a(f"v_pk_fma_f32 {vr(A+2*p,2)}, {vr(CG+2*p,2)}, {st}, {vr(A+2*p,2)} op_sel_hi:[1,0,1] neg_lo:[0,1,0] neg_hi:[0,1,0]")
                for p in range(4):
                    a(f"v_pk_mul_f32 {vr(A+2*p,2)}, {vr(A+2*p,2)}, {vr(24+2*n,2)} op_sel_hi:[1,0]")
                for p in range(4):
                    a(f"v_exp_f32 v{e+2*p}, v{A+2*p}")
                    a(f"v_exp_f32 v{e+2*p+1}, v{A+2*p+1}")
                    a(f"v_pk_fma_f32 {vr(B+2*p,2)}, {vr(CU+2*p,2)}, {st}, {vr(B+2*p,2)} op_sel_hi:[1,0,1] neg_lo:[0,1,0] neg_hi:[0,1,0]")
                for p in range(4):
                    a(f"v_pk_add_f32 {vr(e+2*p,2)}, {vr(e+2*p,2)}, 1.0 op_sel_hi:[1,0]")
                for p in range(4):
                    a(f"v_rcp_f32 v{e+2*p}, v{e+2*p}")
                    a(f"v_rcp_f32 v{e+2*p+1}, v{e+2*p+1}")
                    a(f"v_pk_mul_f32 {vr(A+2*p,2)}, {vr(A+2*p,2)}, {vr(B+2*p,2)}")
                for p in range(4):
                    a(f"v_pk_mul_f32 {vr(A+2*p,2)}, {vr(A+2*p,2)}, {vr(e+2*p,2)}")
                for p in range(4):
                    a(f"v_cvt_pk_bf16_f32 v{o+p}, v{A+2*p}, v{A+2*p+1}")
                st_ = f"buffer_store_dwordx4 {vr(o,4)}, v6, {sr(R_WS,4)}, s{T2+n} offen offset:{(2*m+hb)*1024} {OPT.x_hst}"
                if OPT.late_st: late.append(st_)
                else: a(st_)
                blk += 1
    for st_ in late: a(st_)
    if OPT.prio: a("s_setprio 0")

W2O = 15
S_KW = S_OX
S_KH = S_OW
def w2_setup():
    a("v_lshrrev_b32 v4, 3, v1")
    a("v_bfe_u32 v5, v1, 4, 1")
    a("v_lshlrev_b32 v5, 2, v5")
    a("v_and_b32 v6, 7, v1")
    a("v_xor_b32 v5, v5, v6")
    a("v_lshlrev_b32 v4, 10, v4")
    a(f"v_lshl_add_u32 v{W2O}, v5, 4, v4")
    a(f"s_mul_i32 s{T0}, s{S_LW}, {448*1024}")
    a(f"s_lshl_b32 s{T1}, s{S_I}, 7")
    a(f"s_add_u32 s{T0}, s{T0}, s{T1}")
    a(f"v_add_u32 v{W2O}, s{T0}, v{W2O}")

def kidx_init(reg, s0):
    a(f"s_add_u32 s{reg}, s{S_ROT}, {s0}")
    a(f"s_cmp_ge_u32 s{reg}, 28")
    a(f"s_cselect_b32 s{T0}, 28, 0")
    a(f"s_sub_u32 s{reg}, s{reg}, s{T0}")
def kidx_next(reg):
    a(f"s_add_u32 s{reg}, s{reg}, 1")
    a(f"s_cmp_eq_u32 s{reg}, 28")
    a(f"s_cselect_b32 s{reg}, 0, s{reg}")

def ring_off(slot):
    return (slot // 6) * SLOT + (slot % 6) * 2048

def w2_kstep(vm, s, tag):
    a(f"s_add_u32 m0, s{T5}, {ring_off(s % 12)}")
    a(f"s_lshl_b32 s{T1}, s{S_KW}, 14")
    vm.issue(tag, f"buffer_load_dwordx4 v{W2O}, {sr(R_W2,4)}, s{T1} offen {OPT.nt_w} lds")
    a(f"s_add_u32 m0, s{T5}, {ring_off(s % 12) + 1024}")
    a(f"s_add_u32 s{T1}, s{T1}, 8192")
    vm.issue(tag, f"buffer_load_dwordx4 v{W2O}, {sr(R_W2,4)}, s{T1} offen {OPT.nt_w} lds")
    kidx_next(S_KW)

ACC2 = 192
AR = 64
HR = 16
VX = 64
def c_g2():
    vm = VM(a)
    a.label("L_cE")
    a.c("==== C wave: GEMM2 ====")
    NBK = OPT.nbk
    assert HR + 8 * NBK <= AR
    VT = 10
    a("v_lshrrev_b32 v3, 5, v1")
    a("v_bfe_u32 v5, v1, 2, 2")
    a("v_lshl_add_u32 v7, v3, 2, v5")
    a("v_lshlrev_b32 v7, 7, v7")
    a("v_bfe_u32 v8, v1, 4, 1")
    a("v_lshl_add_u32 v7, v8, 5, v7")
    a("v_and_b32 v8, 3, v1")
    a("v_lshl_add_u32 v7, v8, 3, v7")
    a(f"s_mul_i32 s{T5}, s{S_LW}, 12288")
    a(f"v_add_u32 v7, s{T5}, v7")
    a("v_lshrrev_b32 v5, 1, v5")
    a(f"v_lshl_add_u32 v{VT}, v5, 6, v7")
    a("v_xor_b32 v5, 1, v5")
    a(f"v_lshl_add_u32 v{VT+1}, v5, 6, v7")
    if OPT.gprio: a(f"s_setprio {OPT.gprio}")
    lds_add(L_ECNT, 12, 13)
    stamp("C", "E")
    def treads(s, dst):
        return [f"ds_read_b64_tr_b16 {vr(dst+4*m+2*jj,2)}, v{VT+m} offset:{ring_off(s % 12) + 8*jj*128}" for m in range(2) for jj in range(2)]
    w2_setup()
    kidx_init(S_KW, 12)
    a(f"s_and_b32 s{T0}, s{S_WAVE}, 1")
    a(f"s_lshl_b32 s{T4}, s{S_RB}, 1")
    a(f"s_add_u32 s{T4}, s{T4}, s{T0}")
    a(f"s_lshl_b32 s{T4}, s{T4}, 1")
    a(f"s_add_u32 s{T4}, s{T4}, s{S_B}")
    a(f"s_lshl_b32 s{T4}, s{T4}, 4")
    a(f"s_lshl_b32 s{T3}, s{S_I}, 1")
    a(f"s_add_u32 s{T4}, s{T4}, s{T3}")
    a(f"s_lshr_b32 s{T3}, s{S_WAVE}, 1")
    a(f"s_add_u32 s{T4}, s{T4}, s{T3}")
    a(f"s_lshl_b32 s{T4}, s{T4}, 3")
    a(f"s_add_u32 s{T4}, s{T4}, {WS_FH}")
    a(f"s_lshl_b32 s{T2}, s{S_TB}, 1")
    a(f"s_add_u32 s{T2}, s{T2}, s{T3}")
    a(f"s_lshl_b32 s{T2}, s{T2}, 7")
    a(f"s_mul_i32 s{T3}, s{T0}, 56")
    a(f"s_add_u32 s{T2}, s{T2}, s{T3}")
    a(f"s_add_u32 s{S_CH}, s{T2}, {WS_FH}")
    a(f"s_lshl_b32 s{T3}, s{S_LW}, 2")
    a(f"s_add_u32 s{T3}, s{T3}, {L_RING}")
    slow = a.newlabel("L_cslow"); join = a.newlabel("L_cjoin")
    a(f"v_mov_b32 v12, s{T3}")
    a("ds_read_b32 v13, v12")
    a("s_waitcnt lgkmcnt(0)")
    a("v_cmp_eq_u32 vcc, 1, v13")
    a(f"s_cbranch_vccz {slow}")
    for s in range(12):
        for r in treads(s, AR + 8 * s): a(r)
    a("s_waitcnt lgkmcnt(0)")
    for s in range(12, 16): w2_kstep(VM(a), s, "wa")
    a("s_waitcnt vmcnt(8)")
    flag_store(VM(a), 12, T4)
    a(f"s_branch {join}")
    a.label(slow)
    a("s_waitcnt vmcnt(0)")
    flag_store(VM(a), 12, T4)
    lds_wait((T3,), 1, 14, 4)
    for s in range(12):
        for r in treads(s, AR + 8 * s): a(r)
    a("s_waitcnt lgkmcnt(0)")
    for s in range(12, 16): w2_kstep(VM(a), s, "wa")
    a.label(join)
    vm.q.extend(["wa"] * 8)
    stamp("C", "h_flag")
    for s in range(16, 24): w2_kstep(vm, s, "wb")
    vm.wait("wa")
    for s in range(12, 16):
        for r in treads(s, AR + 8 * s): a(r)
    a(f"s_mul_i32 s{T2}, s{S_TB}, 224")
    a(f"s_mul_i32 s{T3}, s{S_LW}, 28")
    a(f"s_add_u32 s{T2}, s{T2}, s{T3}")
    a(f"s_lshl_b32 s{T2}, s{T2}, 10")
    a(f"s_add_u32 s{T2}, s{T2}, {WS_H}")
    a("v_lshlrev_b32 v6, 4, v1")
    a(f"v_add_u32 v7, {112*1024}, v6")
    a(f"s_mov_b32 s{S_KH}, s{S_ROT}")
    a("s_waitcnt lgkmcnt(0)")
    for s in range(24, 28): w2_kstep(vm, s, "wc")
    spoll(S_PC, S_CH, 7, 2)
    stamp("C", "h_seen")
    def hload(s):
        a(f"s_lshl_b32 s{T4}, s{S_KH}, 10")
        a(f"s_add_u32 s{T4}, s{T4}, s{T2}")
        if OPT.x_hmode == 1: a(f"s_and_b32 s{T4}, s{T4}, 0x43ffff")
        for n in range(2):
            vm.issue(f"h{s}", f"buffer_load_dwordx4 {vr(HR+8*(s%NBK)+4*n,4)}, v{6+n}, {sr(R_WS,4)}, s{T4} offen {OPT.h_ld}")
        kidx_next(S_KH)
    for s in range(NBK): hload(s)
    if OPT.gprio: a("s_setprio 0")
    stamp("C", "g2_start")
    for s in range(28):
        A = AR + 8 * (s % 16)
        vm.wait(f"h{s}", "lgkmcnt(0)" if s >= 16 else "")
        i = 0
        for n in range(2):
            for m in range(2):
                d = vr(ACC2 + 16 * (2 * n + m), 16)
                a(f"v_mfma_f32_32x32x16_bf16 {d}, {vr(A+4*m,4)}, {vr(HR+8*(s%NBK)+4*n,4)}, {'0' if s == 0 else d}")
                if i == 0 and 15 <= s < 27:
                    for r in treads(s + 1, AR + 8 * ((s + 1) % 16)): a(r)
                if i == 1 and s >= 1 and s - 1 + NBK < 28: hload(s - 1 + NBK)
                i += 1
        if s == 21: final_x_load(vm)
        if s in (0, 3, 7, 14, 21): stamp("C", f"k{s}")
    stamp("C", "g2_end")
    a("v_and_b32 v4, 31, v1")
    a("v_mul_u32_u24 v4, 272, v4")
    a("v_lshl_add_u32 v4, v3, 4, v4")
    a(f"v_add_u32 v4, s{T5}, v4")
    a("s_nop 7")
    for n in range(2):
        for m in range(2):
            for j in range(4):
                a(f"ds_write_b128 v4, {vr(ACC2+16*(2*n+m)+4*j,4)} offset:{n*SLOT+m*128+j*32}")
    vm.waitall("lgkmcnt(0)")
    a("s_branch L_final")

def final_x_load(vm):
    a("v_lshrrev_b32 v8, 3, v0")
    a(f"s_lshl_b32 s{T3}, s{S_TB}, 6")
    a(f"v_add_u32 v8, s{T3}, v8")
    a("v_lshlrev_b32 v8, 10, v8")
    a("v_and_b32 v9, 7, v0")
    a("v_lshl_add_u32 v9, v9, 4, v8")
    a(f"s_lshl_b32 s{T3}, s{S_I}, 7")
    a(f"v_add_u32 v9, s{T3}, v9")
    vm.issue("x", f"buffer_load_dwordx4 {vr(VX,4)}, v9, {sr(R_X,4)}, 0 offen")

def final():
    a.label("L_final")
    a.c("==== final epilogue (all waves) ====")
    P, Y, ST, XF, YF, XN = 16, 48, 52, 56, 72, 80
    a("v_lshrrev_b32 v4, 3, v0")
    a("v_and_b32 v5, 7, v0")
    a("v_and_b32 v6, 31, v4")
    a("v_mul_u32_u24 v6, 272, v6")
    a("v_lshl_add_u32 v6, v5, 5, v6")
    a("v_lshrrev_b32 v7, 5, v4")
    a(f"v_mul_u32_u24 v7, {SLOT}, v7")
    a("v_add_u32 v6, v6, v7")
    a("v_mul_u32_u24 v7, 144, v4")
    a("v_lshl_add_u32 v7, v5, 4, v7")
    a(f"v_add_u32 v7, {L_YT}, v7")
    a(f"s_lshl_b32 s{T0}, s{S_B}, 9")
    a(f"s_add_u32 s{T0}, s{T0}, {L_STAT}")
    a(f"v_lshl_add_u32 v8, v4, 3, s{T0}")
    a(f"ds_read_b64 {vr(ST,2)}, v8")
    for p in range(4): unpack(XF + 2 * p, VX + p)
    a("s_waitcnt lgkmcnt(0)")
    a(f"v_mul_f32 v{ST+2}, 0x{NLN2:x}, v{ST+1}")
    a(f"v_mov_b32 v90, v{ST+1}")
    a(f"v_mul_f32 v88, v{ST}, v{ST+2}")
    barrier()
    a(f"ds_read_b128 {vr(Y,4)}, v7")
    for w in range(4):
        a(f"ds_read_b128 {vr(P+8*w,4)}, v6 offset:{w*12288}")
        a(f"ds_read_b128 {vr(P+8*w+4,4)}, v6 offset:{w*12288+16}")
    for p in range(4):
        a(f"v_pk_fma_f32 {vr(XN+2*p,2)}, {vr(XF+2*p,2)}, {vr(ST+2,2)}, v[88:89] op_sel_hi:[1,0,0] neg_lo:[0,0,1] neg_hi:[0,0,1]")
    a("s_waitcnt lgkmcnt(8)")
    for p in range(4): unpack(YF + 2 * p, Y + p)
    for p in range(4):
        a(f"v_pk_mul_f32 {vr(XN+2*p,2)}, {vr(XN+2*p,2)}, {vr(YF+2*p,2)}")
    a("s_waitcnt lgkmcnt(4)")
    for p in range(4): a(f"v_pk_add_f32 {vr(P+2*p,2)}, {vr(P+2*p,2)}, {vr(P+8+2*p,2)}")
    a("s_waitcnt lgkmcnt(0)")
    for p in range(4): a(f"v_pk_add_f32 {vr(P+16+2*p,2)}, {vr(P+16+2*p,2)}, {vr(P+24+2*p,2)}")
    for p in range(4): a(f"v_pk_add_f32 {vr(P+2*p,2)}, {vr(P+2*p,2)}, {vr(P+16+2*p,2)}")
    for p in range(4): a(f"v_pk_mul_f32 {vr(P+2*p,2)}, {vr(P+2*p,2)}, v[90:91] op_sel_hi:[1,0]")
    P1 = P + 8
    for p in range(4):
        a(f"v_exp_f32 v{P1+2*p}, v{P+2*p}")
        a(f"v_exp_f32 v{P1+2*p+1}, v{P+2*p+1}")
        a(f"v_pk_mul_f32 {vr(XN+2*p,2)}, {vr(XN+2*p,2)}, {vr(P+2*p,2)}")
    for p in range(4): a(f"v_pk_add_f32 {vr(P1+2*p,2)}, {vr(P1+2*p,2)}, 1.0 op_sel_hi:[1,0]")
    for p in range(8): a(f"v_rcp_f32 v{P1+p}, v{P1+p}")
    for p in range(4):
        a(f"v_pk_fma_f32 {vr(XF+2*p,2)}, {vr(XN+2*p,2)}, {vr(P1+2*p,2)}, {vr(XF+2*p,2)}")
    for p in range(4):
        a(f"v_cvt_pk_bf16_f32 v{Y+p}, v{XF+2*p}, v{XF+2*p+1}")
    a(f"buffer_store_dwordx4 {vr(Y,4)}, v9, {sr(R_OUT,4)}, 0 offen")
    if OPT.prof:
        a(f"s_memtime {sr(R_K,2)}")
        a(f"s_memrealtime {sr(T1,2)}")
        a("s_waitcnt lgkmcnt(0)")
        a(f"s_lshl_b32 s{T3}, s{S_VJ}, 3")
        a(f"s_add_u32 s{T3}, s{T3}, s{S_I}")
        a(f"s_lshl_b32 s{T3}, s{T3}, 3")
        a(f"s_add_u32 s{T3}, s{T3}, s{S_VX}")
        a(f"s_lshl_b32 s{T3}, s{T3}, 3")
        a(f"s_add_u32 s{T3}, s{T3}, s{S_WAVE}")
        a(f"s_lshl_b32 s{T3}, s{T3}, 7")
        a(f"s_add_u32 s{T3}, s{T3}, {WS_PROF}")
        for i in range(NSTAMP):
            a(f"s_sub_u32 s{T4}, s{STAMP0+2*i}, s{S_ST0}")
            a(f"v_mov_b32 v{16+i}, s{T4}")
        a(f"s_sub_u32 s{T4}, s{R_K}, s{S_ST0}")
        a(f"v_mov_b32 v28, s{T4}")
        a(f"v_mov_b32 v29, s{S_RT0}")
        a(f"v_mov_b32 v30, s{T1}")
        a("v_mov_b32 v31, 0")
        a("s_mov_b64 exec, 1")
        for i in range(4):
            a(f"buffer_store_dwordx4 {vr(16+4*i,4)}, off, {sr(R_WS,4)}, s{T3} offset:{16*i}")
    a.label("L_end")
    a("s_endpgm")

VXO = 16
VWO = 20
VTO = 24
VTD = 25
VPO = 26
KR = 48
VR_ = 68
TP = 76
TF = 92
KF = 124
A0 = 132
A1 = 140
HL = 148
HS = 172
PF = 188
GA = 208

def prep_loads(vm):
    a("v_lshrrev_b32 v4, 3, v1")
    a(f"s_lshl_b32 s{T0}, s{S_J}, 6")
    a(f"s_lshl_b32 s{T1}, s{S_LW}, 4")
    a(f"s_add_u32 s{T0}, s{T0}, s{T1}")
    a(f"s_sub_u32 s{T0}, s{T0}, 3")
    a(f"v_lshl_add_u32 v4, v4, 1, s{T0}")
    a("v_lshlrev_b32 v4, 10, v4")
    a("v_and_b32 v5, 7, v1")
    a("v_lshl_add_u32 v4, v5, 4, v4")
    a(f"s_lshl_b32 s{T0}, s{S_XCD}, 7")
    a(f"v_add_u32 v4, s{T0}, v4")
    for i in range(5):
        vm.issue("P", f"buffer_load_dwordx4 {vr(KR+4*i,4)}, v4, {sr(R_K,4)}, 0 offen {OPT.nt_k}")
        if i >= 3:
            vm.issue("P", f"buffer_load_dwordx4 {vr(VR_+4*(i-3),4)}, v4, {sr(R_V,4)}, 0 offen {OPT.nt_v}")
        if i < 4: a("v_add_u32 v4, 1024, v4")
    a(f"s_mov_b32 m0, {L_TAPS}")
    a("v_lshlrev_b32 v4, 4, v1")
    a(f"s_lshl_b32 s{T0}, s{S_XCD}, 9")
    vm.issue("P", f"buffer_load_dwordx4 v4, {sr(R_SH,4)}, s{T0} offen lds")

def prep_compute(pk=False):
    a("v_and_b32 v5, 7, v1")
    a("v_lshlrev_b32 v4, 6, v5")
    a(f"v_add_u32 v6, {L_TAPS}, v4")
    for q in range(4):
        a(f"ds_read_b128 {vr(TP+4*q,4)}, v6 offset:{16*q}")
    a("v_mul_u32_u24 v7, 1040, v5")
    a("v_lshrrev_b32 v4, 3, v1")
    a(f"s_lshl_b32 s{T0}, s{S_LW}, 5")
    a(f"s_sub_u32 s{T0}, {L_SCR + 124}, s{T0}")
    a("v_lshlrev_b32 v4, 2, v4")
    a("v_sub_u32 v7, v7, v4")
    a(f"v_add_u32 v7, s{T0}, v7")
    a("s_waitcnt lgkmcnt(0)")
    for dd in range(8):
        a(f"v_lshlrev_b32 v{TF+dd}, 16, v{TP+2*dd}")
        a(f"v_and_b32 v{TF+8+dd}, 0xffff0000, v{TP+2*dd}")
        a(f"v_lshlrev_b32 v{TF+16+dd}, 16, v{TP+2*dd+1}")
        a(f"v_and_b32 v{TF+24+dd}, 0xffff0000, v{TP+2*dd+1}")
    for i in range(5):
        for p in range(4): unpack(KF + 2 * p, KR + 4 * i + p)
        for tt, acc in ((0, A0), (1, A1)):
            j = 3 + tt - i
            if j < 0 or j > 3: continue
            if pk:
                for p in range(4):
                    if j == 3: a(f"v_pk_mul_f32 {vr(acc+2*p,2)}, {vr(KF+2*p,2)}, {vr(TF+8*j+2*p,2)}")
                    else: a(f"v_pk_fma_f32 {vr(acc+2*p,2)}, {vr(KF+2*p,2)}, {vr(TF+8*j+2*p,2)}, {vr(acc+2*p,2)}")
                continue
            for p in range(8):
                a(f"v_{'mul' if j == 3 else 'fmac'}_f32 v{acc+p}, v{KF+p}, v{TF+8*j+p}")
    for tt, acc in ((0, A0), (1, A1)):
        for p in range(4): unpack(KF + 2 * p, VR_ + 4 * tt + p)
        if pk:
            for p in range(4): a(f"v_pk_mul_f32 {vr(acc+2*p,2)}, {vr(acc+2*p,2)}, {vr(KF+2*p,2)}")
        else:
            for p in range(8): a(f"v_mul_f32 v{acc+p}, v{acc+p}, v{KF+p}")
    for dd in range(8): a(f"v_cvt_pk_bf16_f32 v{KF+dd}, v{A1+dd}, v{A0+dd}")
    for dd in range(8): a(f"ds_write_b32 v7, v{KF+dd} offset:{128*dd}")

def prep_store(vm):
    a(f"s_mul_i32 s{T0}, s{S_LW}, {2*1040}")
    a(f"s_add_u32 s{T0}, s{T0}, {L_SCR}")
    a(f"v_lshl_add_u32 v4, v1, 4, s{T0}")
    a(f"ds_read_b128 {vr(KR,4)}, v4")
    a(f"ds_read_b128 {vr(KR+4,4)}, v4 offset:1040")
    a("v_lshrrev_b32 v4, 3, v1")
    a("v_lshlrev_b32 v4, 12, v4")
    a("v_and_b32 v5, 7, v1")
    a("v_lshl_add_u32 v4, v5, 4, v4")
    a(f"s_lshl_b32 s{T0}, s{S_XCD}, 18")
    a(f"s_lshl_b32 s{T1}, s{S_LW}, 16")
    a(f"s_add_u32 s{T0}, s{T0}, s{T1}")
    a(f"s_lshl_b32 s{T1}, s{S_J}, 7")
    a(f"s_sub_u32 s{T1}, {WS_UT + 4096 - 128}, s{T1}")
    a(f"s_add_u32 s{T0}, s{T0}, s{T1}")
    a(f"s_add_u32 s{T1}, s{T0}, 32768")
    a("s_waitcnt lgkmcnt(0)")
    vm.issue("S", f"buffer_store_dwordx4 {vr(KR,4)}, v4, {sr(R_WS,4)}, s{T0} offen sc1")
    vm.issue("S", f"buffer_store_dwordx4 {vr(KR+4,4)}, v4, {sr(R_WS,4)}, s{T1} offen sc1")

def fu_flag(vm):
    a(f"s_lshl_b32 s{T0}, s{S_XCD}, 2")
    a(f"s_add_u32 s{T0}, s{T0}, s{S_LW}")
    a(f"s_lshl_b32 s{T0}, s{T0}, 5")
    a(f"s_add_u32 s{T0}, s{T0}, s{S_J}")
    a(f"s_lshl_b32 s{T0}, s{T0}, 2")
    a(f"s_add_u32 s{T0}, s{T0}, {WS_FU}")
    a(f"v_mov_b32 v{PF}, s{S_NONCE}")
    a("s_mov_b64 exec, 1")
    vm.issue("F", f"buffer_store_dword v{PF}, off, {sr(R_WS,4)}, s{T0} sc1")
    a("s_mov_b64 exec, -1")

def fu_addr():
    a(f"s_lshl_b32 s{T4}, s{S_XCD}, 2")
    a(f"s_add_u32 s{T4}, s{T4}, s{S_LW}")
    a(f"s_lshl_b32 s{T4}, s{T4}, 7")
    a(f"s_add_u32 s{T4}, s{T4}, {WS_FU}")
    a(f"s_mov_b32 s{S_EX}, s{S_NONCE}")
    a(f"s_mov_b32 s{S_EX+1}, s{S_NONCE}")

CSR = 28
def cs_read():
    a(f"s_bfe_u32 s{T0}, s{S_RB}, 0x10001")
    if OPT.pairswap: a(f"s_xor_b32 s{T0}, s{T0}, s{S_G}")
    a(f"s_and_b32 s{T1}, s{S_RB}, 1")
    a(f"s_mul_i32 s{T0}, s{T0}, {SLOT}")
    a(f"s_lshl_b32 s{T1}, s{T1}, 13")
    a(f"s_add_u32 s{T0}, s{T0}, s{T1}")
    a(f"s_add_u32 s{T0}, s{T0}, s{S_LW1K}")
    a("v_lshrrev_b32 v5, 4, v1")
    a("v_lshlrev_b32 v6, 2, v5")
    a("v_and_b32 v7, 15, v1")
    a("v_xor_b32 v6, v6, v7")
    a("v_lshlrev_b32 v6, 4, v6")
    a("v_lshl_add_u32 v6, v5, 8, v6")
    a(f"v_add_u32 v6, s{T0}, v6")
    for mat in range(2):
        for ii in range(2):
            a(f"ds_read_b128 {vr(CSR+8*mat+4*ii,4)}, v6 offset:{16384*(mat+1)+4096*ii}")

def cs_sum():
    G, U, KT = GA, GA + 8, KF
    a("v_bfe_u32 v8, v1, 4, 1")
    a("v_lshlrev_b32 v8, 4, v8")
    a("v_lshl_add_u32 v8, v7, 5, v8")
    a("v_lshrrev_b32 v5, 5, v1")
    a("v_lshl_add_u32 v8, v5, 9, v8")
    a(f"s_add_u32 s{T0}, s{S_LW1K}, {L_CSP}")
    a(f"v_add_u32 v8, s{T0}, v8")
    for mat, acc in ((0, G), (1, U)):
        for p in range(4):
            unpack(acc + 2 * p, CSR + 8 * mat + p)
            unpack(KT + 2 * p, CSR + 8 * mat + 4 + p)
        for p in range(8): a(f"v_add_f32 v{acc+p}, v{acc+p}, v{KT+p}")
    a("s_nop 0")
    for j in range(8): a(f"v_permlane32_swap_b32 v{G+j}, v{U+j}")
    for p in range(8): a(f"v_add_f32 v{G+p}, v{G+p}, v{U+p}")
    a("s_nop 0")
    for j in range(4): a(f"v_permlane16_swap_b32 v{G+j}, v{G+4+j}")
    for p in range(4): a(f"v_add_f32 v{G+p}, v{G+p}, v{G+4+p}")
    a(f"ds_write_b128 v8, {vr(G,4)}")

def cs_publish(vm):
    a(f"s_lshl_b32 s{T0}, s{S_LW}, 8")
    a(f"s_add_u32 s{T0}, s{T0}, {L_CSP}")
    a(f"v_lshlrev_b32 v{PF+7}, 2, v1")
    a(f"v_add_u32 v4, s{T0}, v{PF+7}")
    for w in range(4): a(f"ds_read_b32 v{GA+w}, v4 offset:{1024*w}")
    a(f"s_lshl_b32 s{T2}, s{S_B}, 3")
    a(f"s_add_u32 s{T2}, s{T2}, s{S_I}")
    a(f"s_lshl_b32 s{T2}, s{T2}, 2")
    a(f"s_add_u32 s{T2}, s{T2}, s{S_LW}")
    a(f"s_lshl_b32 s{T2}, s{T2}, 4")
    a(f"s_add_u32 s{T2}, s{T2}, s{S_RB}")
    a(f"s_lshl_b32 s{T3}, s{T2}, 8")
    a(f"s_add_u32 s{T3}, s{T3}, {WS_CS}")
    a(f"s_lshl_b32 s{T4}, s{T2}, 3")
    a(f"s_add_u32 s{T4}, s{T4}, {WS_FCS}")
    a("s_waitcnt lgkmcnt(0)")
    a(f"v_add_f32 v{GA}, v{GA}, v{GA+1}")
    a(f"v_add_f32 v{GA+2}, v{GA+2}, v{GA+3}")
    a(f"v_add_f32 v{GA}, v{GA}, v{GA+2}")
    vm.issue("S1", f"buffer_store_dword v{GA}, v{PF+7}, {sr(R_WS,4)}, s{T3} offen sc1")

def cs_flag(vm):
    vm.wait("S1")
    flag_store(vm, PF, T4)

def cs_poll_addr():
    a(f"s_lshl_b32 s{T2}, s{S_B}, 3")
    a(f"s_add_u32 s{T2}, s{T2}, s{S_I}")
    a(f"s_lshl_b32 s{T2}, s{T2}, 2")
    a(f"s_add_u32 s{T2}, s{T2}, s{S_LW}")
    a(f"s_lshl_b32 s{T3}, s{T2}, 7")
    a(f"s_add_u32 s{T3}, s{T3}, {WS_FCS}")
    a(f"v_lshl_add_u32 v5, v1, 3, s{T3}")
    a(f"s_lshl_b32 s{T3}, s{S_RB}, 6")
    a(f"s_lshl_b32 s{T0}, s{S_LW}, 4")
    a(f"s_add_u32 s{T3}, s{T3}, s{T0}")
    a(f"s_add_u32 s{T3}, s{T3}, {WS_FST}")
    a("v_and_b32 v4, 1, v1")
    a(f"v_lshl_add_u32 v4, v4, 3, s{T3}")
    a("v_cmp_gt_u32 vcc, 16, v1")
    a(f"s_lshl_b32 s{T2}, s{T2}, 12")
    a(f"s_add_u32 s{T2}, s{T2}, {WS_CS}")
    a(f"v_cndmask_b32 v{PF+6}, v4, v5, vcc")

def cs_gather(vm):
    a("v_lshlrev_b32 v4, 4, v1")
    for q in range(4):
        vm.issue("Cs", f"buffer_load_dwordx4 {vr(GA+4*q,4)}, v4, {sr(R_WS,4)}, s{T2} offen offset:{1024*q} sc1")
    a(f"s_lshl_b32 s{T0}, s{S_RB}, 10")
    a(f"s_lshl_b32 s{T1}, s{S_LW}, 8")
    a(f"s_add_u32 s{T0}, s{T0}, s{T1}")
    a(f"s_add_u32 s{T0}, s{T0}, {WS_ST}")
    a("v_and_b32 v2, 31, v1")
    a("v_lshlrev_b32 v2, 3, v2")
    vm.issue("Cs", f"buffer_load_dwordx2 {vr(PF+12,2)}, v2, {sr(R_WS,4)}, s{T0} offen sc1")

def cs_tables(vm):
    a(f"s_lshl_b32 s{T0}, s{S_LW}, 8")
    a(f"s_add_u32 s{T1}, s{T0}, {L_STAT}")
    a(f"v_add_u32 v2, s{T1}, v2")
    a("v_and_b32 v4, 15, v1")
    a("v_lshlrev_b32 v4, 4, v4")
    a("v_lshrrev_b32 v5, 4, v1")
    a("v_lshl_add_u32 v4, v5, 2, v4")
    a(f"s_add_u32 s{T1}, s{T0}, {L_CS}")
    a(f"v_add_u32 v4, s{T1}, v4")
    vm.wait("Cs")
    a(f"ds_write_b64 v2, {vr(PF+12,2)}")
    for j in range(4): a(f"v_add_f32 v{GA+j}, v{GA+j}, v{GA+4+j}")
    for j in range(4): a(f"v_add_f32 v{GA+8+j}, v{GA+8+j}, v{GA+12+j}")
    for j in range(4): a(f"v_add_f32 v{GA+j}, v{GA+j}, v{GA+8+j}")
    a("s_nop 1")
    a(f"v_permlane32_swap_b32 v{GA}, v{GA+2}")
    a(f"v_permlane32_swap_b32 v{GA+1}, v{GA+3}")
    a(f"v_add_f32 v{GA}, v{GA}, v{GA+2}")
    a(f"v_add_f32 v{GA+1}, v{GA+1}, v{GA+3}")
    a("s_nop 1")
    a(f"v_permlane16_swap_b32 v{GA}, v{GA+1}")
    a(f"v_add_f32 v{GA}, v{GA}, v{GA+1}")
    a(f"ds_write_b32 v4, v{GA}")

def ssm_loads(vm, rnd):
    if rnd == 0:
        a(f"s_lshr_b32 s{T0}, s{S_LW}, 1")
        a(f"s_add_u32 s{S_CH}, s{S_CH}, s{T0}")
        a(f"s_lshl_b32 s{T0}, s{T0}, 12")
        a(f"s_add_u32 s{R_SSM}, s{R_SSM}, s{T0}")
        a(f"s_addc_u32 s{R_SSM+1}, s{R_SSM+1}, 0")
        a(f"s_and_b32 s{T0}, s{S_LW}, 1")
        a(f"s_lshl_b32 s{T0}, s{T0}, 11")
        a(f"v_lshl_add_u32 v{PF+2}, v1, 4, s{T0}")
    for q in range(3):
        vm.issue("H", f"buffer_load_dwordx4 {vr(HL+12*rnd+4*q,4)}, v{PF+2}, {sr(R_SSM,4)}, 0 offen offset:{1024*rnd+4*q} {OPT.nt_s}")

def h_shift(vm):
    vm.wait("H")
    for rnd in range(2):
        L0 = HL + 12 * rnd
        for i in range(4):
            a(f"v_alignbit_b32 v{HS+8*rnd+i}, v{L0+4+i}, v{L0+i}, 16")
            a(f"v_alignbit_b32 v{HS+8*rnd+4+i}, v{L0+8+i}, v{L0+4+i}, 16")

def h_write(parts=(0, 1, 2)):
    a(f"s_lshr_b32 s{T0}, s{S_LW}, 1")
    a(f"s_mul_i32 s{T1}, s{T0}, {HCH}")
    a(f"s_add_u32 s{T1}, s{T1}, {L_HB + 32}")
    a(f"v_add_u32 v4, s{T1}, v{PF+2}")
    for rnd in range(2):
        if rnd not in parts: continue
        L0 = HL + 12 * rnd
        src = [L0, HS + 8 * rnd, L0 + 4, HS + 8 * rnd + 4]
        for e in range(4):
            a(f"ds_write_b128 v4, {vr(src[e],4)} offset:{e*HCOPY+1024*rnd}")
    if 2 not in parts: return
    Z = TP
    for i in range(4): a(f"v_mov_b32 v{Z+i}, 0")
    a(f"s_mul_i32 s{T1}, s{T0}, 4608")
    a(f"s_add_u32 s{T1}, s{T1}, {L_UB + 4096}")
    a("v_and_b32 v5, 31, v1")
    a(f"v_lshl_add_u32 v5, v5, 4, s{T1}")
    a(f"ds_write_b128 v5, {vr(Z,4)}")
    skip = a.newlabel("L_hf")
    a(f"s_bitcmp1_b32 s{S_LW}, 0")
    a(f"s_cbranch_scc1 {skip}")
    Q = Z + 4
    for i in range(12): a(f"v_mov_b32 v{Q+i}, 0")
    a(f"v_lshlrev_b32 v{Q+3}, 16, v{HL}")
    a(f"v_mov_b32 v{Q+7}, v{HL}")
    a(f"v_lshlrev_b32 v{Q+10}, 16, v{HL}")
    a(f"v_mov_b32 v{Q+11}, v{HS}")
    a("v_subrev_u32 v4, 32, v4")
    a("s_mov_b64 exec, 1")
    for e in range(4):
        a(f"ds_write_b128 v4, {vr(Z,4)} offset:{e*HCOPY}")
        a(f"ds_write_b128 v4, {vr(Z if e == 0 else Q+4*(e-1),4)} offset:{e*HCOPY+16}")
    a("s_mov_b64 exec, -1")
    a.label(skip)

UL = 48
def u_loads(vm):
    a(f"s_lshl_b32 s{T0}, s{S_CH}, 12")
    a("v_lshlrev_b32 v4, 4, v1")
    for q in range(4):
        vm.issue("U", f"buffer_load_dwordx4 {vr(UL+4*q,4)}, v4, {sr(R_WS,4)}, s{T0} offen offset:{1024*q} sc1")

def cold_touch(vm):
    if not OPT.touch: return
    a(f"s_mov_b32 s{R_SSM+2}, 8192")
    a(f"s_lshl_b32 s{T0}, s{S_LW}, 11")
    a(f"v_lshlrev_b32 v{VTO}, 7, v1")
    a("s_mov_b64 exec, 0xffff")
    vm.issue("T", f"buffer_load_dword v{VTD}, v{VTO}, {sr(R_SSM,4)}, s{T0} offen")
    a("s_mov_b64 exec, -1")
    a(f"s_mov_b32 s{R_SSM+2}, 4096")
    if OPT.w2warm:
        a(f"s_mul_i32 s{T0}, s2, 7168")
        a(f"s_mul_i32 s{T1}, s{S_LW}, 1792")
        a(f"s_add_u32 s{T0}, s{T0}, s{T1}")
        a("s_mov_b64 exec, 0x3fff")
        vm.issue("T", f"buffer_load_dword v{VTD}, v{VTO}, {sr(R_W2,4)}, s{T0} offen")
        a("s_mov_b64 exec, -1")

def w2_touch(vm):
    if not OPT.w2touch: return
    a(f"v_lshlrev_b32 v{VTO}, 10, v1")
    a(f"s_mul_i32 s{T0}, s{S_LW}, {448*1024}")
    a(f"s_lshl_b32 s{T1}, s{S_I}, 7")
    a(f"s_add_u32 s{T0}, s{T0}, s{T1}")
    a(f"v_add_u32 v{VTO}, s{T0}, v{VTO}")
    a(f"v_lshrrev_b32 v4, 4, v1")
    for rr in range(2):
        a(f"s_add_u32 s{T1}, s{S_ROT}, {4*rr}")
        a(f"v_add_u32 v5, s{T1}, v4")
        a("v_cmp_le_u32 vcc, 28, v5")
        a(f"s_lshl_b32 s{T1}, s{T1}, 14")
        a(f"v_mov_b32 v6, {(-448*1024) & 0xffffffff}")
        a("v_cndmask_b32 v5, 0, v6, vcc")
        a(f"v_add3_u32 v5, v5, v{VTO}, s{T1}")
        if rr: a("s_mov_b32 exec_hi, 0xffff")
        vm.issue("T", f"buffer_load_dword v{VTD}, v5, {sr(R_W2,4)}, 0 offen")
    a("s_mov_b64 exec, -1")

def l_main():
    vm = VM(a)
    a.label("L_lstart")
    a.c("==== L wave: placement-independent start (k/v tile, ssm rows) ====")
    pol = OPT.nt_w
    with capture() as pl:
        if not OPT.p_after: prep_loads(vm)
    k = next((i for i, ln in enumerate(pl) if ln.startswith("buffer_")), 0)
    for ln in pl[:k]: a(ln)
    a(f"s_lshl_b32 s{S_CH}, s{S_XCD}, 5")
    a(f"s_add_u32 s{S_CH}, s{S_CH}, s{S_J}")
    a(f"s_lshl_b32 s{T2}, s{S_CH}, 2")
    a(f"s_lshl_b32 s{S_CH}, s{S_CH}, 1")
    a(f"s_lshl_b32 s{T3}, s{S_CH}, 12")
    a("s_waitcnt lgkmcnt(0)")
    stamp("L", "first_ld")
    for ln in pl[k:]: a(ln)
    a(f"s_load_dword s{S_D}, {sr(S_EX,2)}, s{T2}")
    late_ptrs()
    a(f"s_add_u32 s{R_SSM}, s{R_SSM}, s{T3}")
    a(f"s_addc_u32 s{R_SSM+1}, s{R_SSM+1}, 0")
    if OPT.tlb:
        a("v_and_b32 v4, 1, v1")
        a(f"v_mul_u32_u24 v4, {512*3584 - 128}, v4")
        a("s_mov_b64 exec, 3")
        for r in (R_X, R_W1, R_W3): vm.issue("T", f"buffer_load_dword v{VTD}, v4, {sr(r,4)}, 0 offen")
        a("s_mov_b64 exec, -1")
    cold_touch(vm)
    a("v_lshrrev_b32 v4, 3, v1")
    a(f"s_lshl_b32 s{T1}, s{S_LW}, 3")
    a(f"v_add_u32 v4, s{T1}, v4")
    a("v_lshlrev_b32 v4, 10, v4")
    a("v_lshrrev_b32 v5, 4, v1")
    a(f"s_and_b32 s{T1}, s{S_LW}, 1")
    a(f"s_lshl_b32 s{T1}, s{T1}, 2")
    a(f"v_add_u32 v6, s{T1}, v5")
    a("v_and_b32 v7, 7, v1")
    a("v_xor_b32 v6, v6, v7")
    a(f"v_lshl_add_u32 v{VXO}, v6, 4, v4")
    for ii in range(1, 4): a(f"v_add_u32 v{VXO+ii}, {32768*ii}, v{VXO}")
    a(f"s_lshl_b32 s{T1}, s{S_LW}, 2")
    a(f"v_add_u32 v4, s{T1}, v5")
    a("v_mul_u32_u24 v4, 3584, v4")
    a("v_lshlrev_b32 v6, 2, v5")
    a("v_and_b32 v7, 15, v1")
    a("v_xor_b32 v6, v6, v7")
    a(f"v_lshl_add_u32 v{VWO}, v6, 4, v4")
    for ii in range(1, 4): a(f"v_add_u32 v{VWO+ii}, {16*3584*ii}, v{VWO}")
    a(f"s_mul_i32 s{T5}, s{S_LW}, 12288")
    barrier()
    decode(4)
    a(f"s_cmp_eq_u32 s{S_I}, 7")
    a("s_cbranch_scc1 L_lspare")
    a(f"s_lshl_b32 s{S_XB}, s{S_RB}, 17")
    a(f"s_lshl_b32 s{S_WB}, s{S_CB}, 8")
    a(f"s_and_b32 s{S_R1}, s{S_VX}, 6")
    a(f"s_lshl_b32 s{T0}, s{S_B}, 2")
    a(f"s_add_u32 s{S_R1}, s{S_R1}, s{T0}")
    if OPT.pairswap:
        a(f"s_add_u32 s{S_G}, s{S_RB}, s{S_I}")
        a(f"s_and_b32 s{S_G}, s{S_G}, 1")
    spare_q = list(vm.q)
    def chunk(c, fill=()):
        fill = list(fill)
        per = -(-len(fill) // 12)
        sl = (c % 3) * SLOT
        if OPT.pairswap:
            a(f"s_xor_b32 s{S_OX}, s{S_G}, {c}")
            a(f"s_add_u32 s{S_OX}, s{S_R1}, s{S_OX}")
        else:
            a(f"s_add_u32 s{S_OX}, s{S_R1}, {c}")
        a(f"s_and_b32 s{S_OX}, s{S_OX}, 7")
        a(f"s_mul_i32 s{S_OW}, s{S_OX}, {64*3584}")
        a(f"s_lshl_b32 s{S_OX}, s{S_OX}, 7")
        a(f"s_add_u32 s{S_OX}, s{S_OX}, s{S_XB}")
        a(f"s_add_u32 s{S_OW}, s{S_OW}, s{S_WB}")
        for ii in range(4):
            for part, (voff, rs, so) in enumerate(((VXO, R_X, S_OX), (VWO, R_W1, S_OW), (VWO, R_W3, S_OW))):
                a(f"s_add_u32 m0, s{S_LW1K}, {sl + part*16384 + ii*4096}")
                a("s_nop 0")
                vm.issue(f"c{c}", f"buffer_load_dwordx4 v{voff+ii}, {sr(rs,4)}, s{so} offen {pol} lds")
                for ln in fill[:per]: a(ln)
                fill = fill[per:]
    def B(c):
        barrier(); stamp("L", f"B{c}")
    if OPT.lprio: a(f"s_setprio {OPT.lprio}")
    stamp("L", "first_dma")
    chunk(0)
    stamp("L", "s_c0iss")
    if not OPT.p_after:
        vm.wait("P")
        stamp("L", "s_P")
        prep_compute(pk=True)
        stamp("L", "s_prep")
    chunk(1)
    stamp("L", "s_c1iss")
    decode2(); w2_setup()
    vm.wait("c0", "lgkmcnt(0)"); stamp("L", "c0"); B(-1)
    if not OPT.p_after: prep_store(vm)
    vm.issue("N", nonce_issue(PF + 4))
    chunk(2)
    if OPT.p_after: prep_loads(vm)
    vm.wait("c1"); B(0)
    cs_read()
    a("s_waitcnt lgkmcnt(0)")
    with capture() as pc: cs_sum()
    chunk(3, pc)
    vm.wait("c2")
    nonce_check(PF + 4)
    a(f"v_mov_b32 v4, {L_NONCE}")
    a(f"ds_write_b64 v4, {vr(PF+4,2)}")
    a("s_waitcnt lgkmcnt(0)"); B(1)
    if not OPT.p_after:
        fu_flag(vm); stamp("L", "fu_flag")
    cs_publish(vm)
    pc = []
    if OPT.p_after:
        vm.wait("P")
        with capture() as pc: prep_compute()
    half = len(pc) // 2
    chunk(4, pc[:half])
    vm.wait("c3"); B(2)
    chunk(5, pc[half:])
    vm.wait("c4", "lgkmcnt(0)"); cs_flag(vm); B(3)
    if OPT.p_after: prep_store(vm)
    chunk(6)
    ssm_loads(vm, 0); ssm_loads(vm, 1)
    cs_poll_addr()
    vm.wait("S" if OPT.p_after else "c5"); B(4)
    if OPT.p_after: fu_flag(vm)
    chunk(7)
    poll_issue(vm, PF + 8, PF + 6, "P2")
    fu_addr()
    spoll_issue(S_PB, T4, 32)
    h_shift(vm)
    B(5)
    poll_check(vm, PF + 8, PF + 6, "P2")
    stamp("L", "m_csseen")
    cs_gather(vm)
    a("s_waitcnt lgkmcnt(0)")
    spoll_test(S_PB, 32, 1)
    a(f"s_cselect_b32 s{T3}, 1, 0")
    a("s_cbranch_scc1 L_ulate")
    u_loads(VM(a))
    a.label("L_ulate")
    h_write((0,))
    vm.wait("c7"); B(6); stamp("L", "m_b6")
    a(f"s_mov_b32 s{S_KW}, s{S_ROT}")
    cs_tables(vm)
    h_write((1,))
    if OPT.ring_early:
        for s in range(6): w2_kstep(vm, s, "w0")
    a("s_waitcnt lgkmcnt(0)")
    stamp("L", "pre_b7")
    B(7)
    for s in range(6 if OPT.ring_early else 0, 12): w2_kstep(vm, s, "w0")
    stamp("L", "m_w2iss")
    h_write((2,))
    a("v_lshlrev_b32 v4, 4, v1")
    a(f"s_cmp_eq_u32 s{T3}, 0")
    a("s_cbranch_scc1 L_conv")
    spoll(S_PB, T4, 32, 1)
    u_loads(VM(a))
    a("s_waitcnt vmcnt(0)")
    a("s_branch L_conv")
    return spare_q

def spare(spare_q):
    vm = VM(a)
    stamp_on[0] = False
    a.label("L_cspare")
    a.c("==== spare work-group, C waves ====")
    XS, SU = 32, 16
    a("v_lshrrev_b32 v4, 3, v1")
    a(f"s_lshl_b32 s{T1}, s{S_TB}, 6")
    a(f"s_lshl_b32 s{T0}, s{S_WAVE}, 4")
    a(f"s_add_u32 s{T1}, s{T1}, s{T0}")
    a(f"v_add_u32 v5, s{T1}, v4")
    a("v_lshlrev_b32 v5, 10, v5")
    a("v_and_b32 v6, 7, v1")
    a("v_lshl_add_u32 v7, v6, 4, v5")
    a(f"s_mov_b32 s{T2}, 8192")
    for g in range(2):
        for kc in range(8):
            vm.issue(f"xs{g}", f"buffer_load_dwordx4 {vr(XS+32*g+4*kc,4)}, v7, {sr(R_X,4)}, {'s%d' % T2 if g else '0'} offen offset:{128*kc}")
    vm.issue("N", nonce_issue(12))
    a(f"s_mov_b32 s{S_ONES}, 0x3f803f80")
    a(f"s_lshl_b32 s{T2}, s{S_B}, 9")
    a(f"s_lshl_b32 s{T0}, s{T0}, 3")
    a(f"s_add_u32 s{T2}, s{T2}, s{T0}")
    a(f"s_add_u32 s{T2}, s{T2}, {L_STAT}")
    a("v_lshlrev_b32 v9, 3, v4")
    a(f"v_add_u32 v8, s{T2}, v9")
    a(f"s_lshl_b32 s{T1}, s{T1}, 3")
    a(f"s_add_u32 s{T1}, s{T1}, {WS_ST}")
    a(f"s_mov_b32 s{S_EX}, 0x01010101")
    a(f"s_mov_b32 s{S_EX+1}, 0x01010101")
    for g in range(2):
        for i in range(4): a(f"v_mov_b32 v{SU+i}, 0")
        vm.wait(f"xs{g}")
        for i in range(32):
            a(f"v_dot2c_f32_bf16 v{SU+(i&1)}, s{S_ONES}, v{XS+32*g+i}")
            a(f"v_dot2c_f32_bf16 v{SU+2+(i&1)}, v{XS+32*g+i}, v{XS+32*g+i}")
        a("s_nop 2")
        a(f"v_add_f32 v{SU}, v{SU}, v{SU+1}")
        a(f"v_add_f32 v{SU+2}, v{SU+2}, v{SU+3}")
        for dpp in ("quad_perm:[1,0,3,2]", "quad_perm:[2,3,0,1]", "row_half_mirror"):
            a("s_nop 0")
            a(f"v_add_f32_dpp v{SU}, v{SU}, v{SU} {dpp} row_mask:0xf bank_mask:0xf")
            a("s_nop 0")
            a(f"v_add_f32_dpp v{SU+2}, v{SU+2}, v{SU+2} {dpp} row_mask:0xf bank_mask:0xf")
        M = 20 + 2 * g
        a(f"v_mul_f32 v{M}, 0x3b000000, v{SU}")
        a(f"v_mul_f32 v6, 0x3b000000, v{SU+2}")
        a(f"v_fma_f32 v6, -v{M}, v{M}, v6")
        a("v_max_f32 v6, 0, v6")
        a("v_add_f32 v6, 0x3727c5ac, v6")
        a(f"v_rsq_f32 v{M+1}, v6")
        a(f"s_mov_b64 exec, {sr(S_EX,2)}")
        a(f"ds_write_b64 v8, {vr(M,2)} offset:{64*g}")
        vm.issue("st", f"buffer_store_dwordx2 {vr(M,2)}, v9, {sr(R_WS,4)}, s{T1} offen offset:{64*g} sc1")
        a("s_mov_b64 exec, -1")
    a(f"s_lshl_b32 s{T0}, s{S_TB}, 2")
    a(f"s_add_u32 s{T0}, s{T0}, s{S_WAVE}")
    a(f"s_lshl_b32 s{T0}, s{T0}, 3")
    a(f"s_add_u32 s{T0}, s{T0}, {WS_FST}")
    vm.waitall("lgkmcnt(0)")
    nonce_check(12)
    lds_add(L_SP3, 4, 5)
    flag_store(vm, 14, T0)
    lds_wait(L_SP3, 4, 4, 5)
    if OPT.sp_w2:
        if OPT.sp_delay: lds_wait(L_SP2, 4, 4, 5)
        a(f"s_and_b32 s{T0}, s{S_RB}, 3")
        a(f"s_mul_i32 s{T0}, s{T0}, {448*1024}")
        a("v_lshlrev_b32 v4, 7, v1")
        a(f"v_add_u32 v4, s{T0}, v4")
        a(f"s_mul_i32 s{T1}, s{S_VX}, 7")
        a(f"s_add_u32 s{T1}, s{T1}, s{S_WAVE}")
        a(f"s_mov_b32 s{T2}, 14")
        a.label("L_spw2")
        a(f"s_cmp_ge_u32 s{T1}, 56")
        a(f"s_cselect_b32 s{T0}, 56, 0")
        a(f"s_sub_u32 s{T1}, s{T1}, s{T0}")
        a(f"s_lshl_b32 s{T0}, s{T1}, 13")
        a(f"buffer_load_dword v25, v4, {sr(R_W2,4)}, s{T0} offen")
        a(f"s_add_u32 s{T1}, s{T1}, 4")
        a(f"s_sub_u32 s{T2}, s{T2}, 1")
        a(f"s_cmp_lg_u32 s{T2}, 0")
        a("s_cbranch_scc1 L_spw2")
    a("s_branch L_cE")
    a.label("L_lspare")
    vm = VM(a); vm.q = list(spare_q)
    decode2(); w2_setup()
    if OPT.p_after: prep_loads(vm)
    vm.issue("N", nonce_issue(PF + 4))
    ssm_loads(vm, 0); ssm_loads(vm, 1)
    vm.wait("P")
    prep_compute(pk=True)
    a("s_waitcnt lgkmcnt(0)")
    lds_add(L_SP1, 4, 5); lds_wait(L_SP1, 4, 4, 5)
    prep_store(vm)
    h_shift(vm); h_write()
    vm.wait("N"); nonce_check(PF + 4)
    vm.wait("S")
    lds_add(L_SP2, 4, 5); lds_wait(L_SP2, 4, 4, 5)
    fu_flag(vm)
    a(f"s_mov_b32 s{S_KW}, s{S_ROT}")
    for s in range(12): w2_kstep(vm, s, "w0")
    fu_addr()
    spoll(S_PB, T4, 32, 1, sleep=16)
    u_loads(vm)
    vm.waitall()
    stamp_on[0] = True

def l_conv():
    vm = VM(a)
    a.label("L_conv")
    a.c("==== L wave: long convolution ====")
    CA, CB, YA = 10, 11, 12
    FA = [64, 128]; FB = [96, 160]; ACC = 192
    a(f"s_lshr_b32 s{T0}, s{S_LW}, 1")
    a(f"s_mul_i32 s{T1}, s{T0}, 4608")
    a(f"s_add_u32 s{T1}, s{T1}, {L_UB}")
    a(f"v_add_u32 v14, s{T1}, v4")
    a("v_and_b32 v5, 15, v1")
    a("v_lshrrev_b32 v6, 4, v1")
    a("v_lshlrev_b32 v7, 1, v5")
    a("v_sub_u32 v7, v6, v7")
    a("v_add_u32 v7, 30, v7")
    a(f"v_lshl_add_u32 v{CB}, v7, 4, s{T1}")
    a("v_lshlrev_b32 v7, 2, v5")
    a("v_add_u32 v7, v7, v6")
    a("v_lshlrev_b32 v13, 3, v7")
    a(f"s_and_b32 s{T2}, s{S_LW}, 1")
    a(f"s_lshl_b32 s{T4}, s{T2}, 11")
    a(f"s_sub_u32 s{T1}, s{T1}, s{T4}")
    a(f"s_add_u32 s{T1}, s{T1}, {504 + 2048}")
    a(f"v_sub_u32 v{YA}, s{T1}, v13")
    a("v_add_u32 v5, 1, v5")
    a("v_and_b32 v7, 3, v5")
    a("v_sub_u32 v5, v5, v7")
    a("v_lshl_add_u32 v5, v6, 3, v5")
    a("v_lshlrev_b32 v5, 1, v5")
    a(f"v_mul_u32_u24 v7, {HCOPY}, v7")
    a(f"s_mul_i32 s{T1}, s{T0}, {HCH}")
    a(f"s_lshl_b32 s{T4}, s{T2}, 8")
    a(f"s_add_u32 s{T1}, s{T1}, s{T4}")
    a(f"s_add_u32 s{T1}, s{T1}, {L_HB}")
    a(f"v_add3_u32 v{CA}, v5, v7, s{T1}")
    a(f"v_add_u32 v{CB}, s{T4}, v{CB}")
    for r in range(ACC, ACC + 32): a(f"v_mov_b32 v{r}, 0")
    a(f"s_lshl_b32 s{T3}, s{S_LW}, 2")
    a(f"s_add_u32 s{T3}, s{T3}, {L_RING}")
    a("s_waitcnt vmcnt(24)")
    for q in range(4):
        a(f"ds_write_b128 v14, {vr(UL+4*q,4)} offset:{1024*q}")
    a("s_waitcnt lgkmcnt(0)")
    lds_add(L_ECNT, 4, 5)
    a("s_waitcnt vmcnt(0)")
    lds_add((T3,), 4, 5)
    stamp("L", "pre_E")
    lds_wait(L_ECNT, 8, 4, 5)
    stamp("L", "m_go")
    if OPT.cprio: a(f"s_setprio {OPT.cprio}")
    a(f"s_mov_b32 s{T2}, 0")
    def reads(b, extra):
        R = []
        for k in range(8):
            R.append(f"ds_read_b64 {vr(FA[b]+4*k,2)}, v{CA} offset:{512*k+extra}")
            R.append(f"ds_read_b64 {vr(FA[b]+4*k+2,2)}, v{CA} offset:{512*k+8+extra}")
            R.append(f"ds_read_b128 {vr(FB[b]+4*k,4)}, v{CB} offset:{512*(7-k)+extra}")
        return R
    for r in reads(0, 0): a(r)
    a(".p2align 3")
    a.label("L_conv_loop")
    for b in range(2):
        nxt = reads(b ^ 1, 64 * (b + 1))
        a("s_waitcnt lgkmcnt(0)")
        mf = [(n, s1) for s1 in range(8) for n in range(s1, 8)]
        for idx, (n, s1) in enumerate(mf):
            d = vr(ACC + 4 * n, 4)
            a(f"v_mfma_f32_16x16x32_bf16 {d}, {vr(FA[b]+4*s1,4)}, {vr(FB[b]+4*(n-s1),4)}, {d}")
            if idx < len(nxt): a(nxt[idx])
            if b == 1 and idx == len(mf) - 3:
                a(f"v_add_u32 v{CA}, 128, v{CA}")
                a(f"v_add_u32 v{CB}, 128, v{CB}")
                a(f"s_add_u32 s{T2}, s{T2}, 1")
                a(f"s_cmp_lt_u32 s{T2}, 2")
    a("s_cbranch_scc1 L_conv_loop")
    stamp("L", "conv_end")
    a(f"s_lshl_b32 s{T0}, s{S_LW}, 12")
    a(f"s_add_u32 s{T0}, s{T0}, {L_XCH}")
    a(f"v_lshl_add_u32 v14, v1, 4, s{T0}")
    a(f"s_xor_b32 s{T1}, s{S_LW}, 1")
    a(f"s_lshl_b32 s{T1}, s{T1}, 12")
    a(f"s_add_u32 s{T1}, s{T1}, {L_XCH}")
    a(f"v_lshl_add_u32 v15, v1, 4, s{T1}")
    a(f"v_add_u32 v13, s{T1}, v13")
    a(f"s_lshr_b32 s{T4}, s{S_LW}, 1")
    a(f"s_lshl_b32 s{T4}, s{T4}, 2")
    a(f"s_add_u32 s{T4}, s{T4}, {L_PAIR}")
    a(f"s_bitcmp1_b32 s{S_LW}, 0")
    a("s_waitcnt lgkmcnt(0)")
    a("s_cbranch_scc1 L_xch1")
    for ti in range(4): a(f"ds_write_b128 v14, {vr(ACC+16+4*ti,4)} offset:{1024*ti}")
    a("s_branch L_xch2")
    a.label("L_xch1")
    for ti in range(4): a(f"ds_write_b128 v14, {vr(ACC+4*ti,4)} offset:{1024*ti}")
    a("s_nop 1")
    for r in range(16): a(f"v_mov_b32 v{ACC+r}, v{ACC+16+r}")
    a.label("L_xch2")
    for ti in range(4):
        a(f"ds_read_b64 {vr(32+2*ti,2)}, v{YA} offset:{512*(3-ti)}")
    a(f"s_bitcmp1_b32 s{S_CH}, 0")
    a(f"s_cselect_b32 s{T3}, 0, 16")
    a(f"s_lshl_b32 s{T3}, s{S_D}, s{T3}")
    a(f"s_and_b32 s{T3}, s{T3}, 0xffff0000")
    a("s_waitcnt lgkmcnt(0)")
    lds_add((T4,), 4, 5)
    for ti in range(4):
        u = 32 + 2 * ti; t = 40 + 4 * ti; y = ACC + 4 * ti
        a(f"v_and_b32 v{t}, 0xffff0000, v{u+1}")
        a(f"v_lshlrev_b32 v{t+1}, 16, v{u+1}")
        a(f"v_and_b32 v{t+2}, 0xffff0000, v{u}")
        a(f"v_lshlrev_b32 v{t+3}, 16, v{u}")
        for r in range(4): a(f"v_fmac_f32 v{y+r}, s{T3}, v{t+r}")
    lds_wait((T4,), 2, 4, 5)
    stamp("L", "m_xch")
    for ti in range(4): a(f"ds_read_b128 {vr(40+4*ti,4)}, v15 offset:{1024*ti}")
    a(f"s_and_b32 s{T1}, s{S_LW}, 1")
    a(f"s_lshl_b32 s{T1}, s{T1}, 11")
    a(f"s_lshl_b32 s{T0}, s{S_CH}, 12")
    a(f"s_add_u32 s{T0}, s{T0}, s{T1}")
    a(f"s_add_u32 s{T0}, s{T0}, {WS_Y}")
    a("v_lshlrev_b32 v5, 4, v1")
    a("s_waitcnt lgkmcnt(0)")
    for ti in range(4):
        u = 32 + 2 * ti; t = 40 + 4 * ti; y = ACC + 4 * ti
        for r in range(4): a(f"v_add_f32 v{y+r}, v{y+r}, v{t+r}")
        a(f"v_cvt_pk_bf16_f32 v{u}, v{y}, v{y+1}")
        a(f"v_cvt_pk_bf16_f32 v{u+1}, v{y+2}, v{y+3}")
        a(f"ds_write_b64 v13, {vr(u,2)} offset:{512*ti}")
    a("s_waitcnt lgkmcnt(0)")
    a("ds_read_b128 v[40:43], v15")
    a("ds_read_b128 v[44:47], v15 offset:1024")
    a("s_waitcnt lgkmcnt(0)")
    a(f"buffer_store_dwordx4 v[40:43], v5, {sr(R_WS,4)}, s{T0} offen sc1")
    a(f"buffer_store_dwordx4 v[44:47], v5, {sr(R_WS,4)}, s{T0} offen offset:1024 sc1")
    if OPT.cprio: a("s_setprio 0")
    stamp("L", "m_yst")
    a(f"s_lshl_b32 s{T0}, s{S_XCD}, 10")
    a(f"s_lshl_b32 s{T2}, s{S_J}, 2")
    a(f"s_add_u32 s{T0}, s{T0}, s{T2}")
    a(f"s_add_u32 s{T0}, s{T0}, {WS_FY}")
    a("v_lshlrev_b32 v17, 7, v1")
    a(f"v_mov_b32 v16, s{S_NONCE}")
    a(f"v_mov_b32 v18, {L_YCNT}")
    a("v_mov_b32 v19, 1")
    vm.waitall()
    a("s_mov_b64 exec, 1")
    a("ds_add_rtn_u32 v19, v18, v19")
    a("s_waitcnt lgkmcnt(0)")
    a(f"v_readfirstlane_b32 s{T2}, v19")
    a("s_mov_b64 exec, 0xff")
    a(f"s_cmp_lg_u32 s{T2}, 3")
    a("s_cbranch_scc1 L_ynopub")
    a(f"buffer_store_dword v16, v17, {sr(R_WS,4)}, s{T0} offen sc1")
    a.label("L_ynopub")
    a("s_mov_b64 exec, -1")
    stamp("L", "y_flag")
    final_x_load(vm)
    a(f"s_lshl_b32 s{T4}, s{S_I}, 3")
    a(f"s_add_u32 s{T4}, s{T4}, s{S_VX}")
    a(f"s_lshl_b32 s{T4}, s{T4}, 7")
    a(f"s_add_u32 s{T4}, s{T4}, {WS_FY}")
    a("v_lshrrev_b32 v4, 3, v1")
    a("v_lshlrev_b32 v4, 12, v4")
    a("v_and_b32 v5, 7, v1")
    a("v_lshl_add_u32 v4, v5, 4, v4")
    a(f"s_lshl_b32 s{T2}, s{S_I}, 18")
    a(f"s_lshl_b32 s{T3}, s{S_LW}, 16")
    a(f"s_add_u32 s{T2}, s{T2}, s{T3}")
    a(f"s_lshl_b32 s{T3}, s{S_TB}, 7")
    a(f"s_add_u32 s{T2}, s{T2}, s{T3}")
    a(f"s_add_u32 s{T2}, s{T2}, {WS_Y}")
    a(f"s_add_u32 s{T3}, s{T2}, 32768")
    a(f"s_cmp_lg_u32 s{S_LW}, 0")
    a("s_cbranch_scc1 L_ywait")
    spoll(S_PB, T4, 32, 1)
    lds_wait(L_YCNT, 4, 6, 7)
    lds_add(L_YOK, 6, 7)
    a.label("L_ywait")
    lds_wait(L_YOK, 1, 6, 7)
    stamp("L", "y_seen")
    vm.issue("Y", f"buffer_load_dwordx4 v[40:43], v4, {sr(R_WS,4)}, s{T2} offen sc1")
    vm.issue("Y", f"buffer_load_dwordx4 v[44:47], v4, {sr(R_WS,4)}, s{T3} offen sc1")
    a("v_bfe_u32 v4, v1, 2, 2")
    a("v_lshlrev_b32 v4, 7, v4")
    a("v_lshrrev_b32 v5, 4, v1")
    a("v_lshl_add_u32 v4, v5, 5, v4")
    a("v_and_b32 v5, 3, v1")
    a("v_lshl_add_u32 v4, v5, 3, v4")
    a(f"s_lshl_b32 s{T0}, s{S_LW}, 11")
    a(f"s_add_u32 s{T0}, s{T0}, {L_YS}")
    a(f"v_add_u32 v4, s{T0}, v4")
    a("v_mul_u32_u24 v5, 144, v1")
    a(f"s_lshl_b32 s{T0}, s{S_LW}, 5")
    a(f"s_add_u32 s{T0}, s{T0}, {L_YT}")
    a(f"v_add_u32 v5, s{T0}, v5")
    a(f"s_lshl_b32 s{T0}, s{S_LW}, 11")
    a(f"s_add_u32 s{T0}, s{T0}, {L_YS}")
    a(f"v_lshl_add_u32 v14, v1, 4, s{T0}")
    vm.waitall()
    a("ds_write_b128 v14, v[40:43]")
    a("ds_write_b128 v14, v[44:47] offset:1024")
    a("s_waitcnt lgkmcnt(0)")
    for dd in range(4):
        a(f"ds_read_b64_tr_b16 {vr(48+2*dd,2)}, v4 offset:{512*dd}")
    a("s_waitcnt lgkmcnt(0)")
    a("ds_write_b128 v5, v[48:51]")
    a("ds_write_b128 v5, v[52:55] offset:16")
    stamp("L", "pre_final")

def build():
    prologue()
    c_start()
    c_g1()
    c_g2()
    q = l_main()
    spare(q)
    l_conv()
    final()
    a.label("L_code_end")
    hdr = open("recurrent_scan__ssm_conv_h3__glu_gated_swiglu__prompt.s.ref").read().split("; Override launch")[0]
    return f"""{hdr}; Generated by gen/gen.py (hand-written generator; one fused persistent kernel).
; @launch grid=(256,1,1) block=(512,1,1) lds={LDS_BYTES}
.amdgcn_target "amdgcn-amd-amdhsa--gfx950"
.text
.globl {NAME}
.p2align 8
.type {NAME},@function
{NAME}:
{a.text()}
.section .rodata,"a"
.p2align 6
.amdhsa_kernel {NAME}
  .amdhsa_next_free_vgpr 256
  .amdhsa_next_free_sgpr 102
  .amdhsa_accum_offset 256
  .amdhsa_group_segment_fixed_size 0
  .amdhsa_kernarg_size 104
  .amdhsa_user_sgpr_count 2
  .amdhsa_user_sgpr_kernarg_segment_ptr 1
  .amdhsa_system_sgpr_workgroup_id_x 1
  .amdhsa_float_denorm_mode_32 3
.end_amdhsa_kernel
"""

if __name__ == "__main__":
    out = sys.argv[1]
    for kv in sys.argv[2:]:
        k, v = kv.split("=")
        cur = getattr(OPT, k)
        setattr(OPT, k, type(cur)(int(v)) if isinstance(cur, (bool, int)) else v)
    s = build()
    open(out, "w").write(s)
    if OPT.prof:
        import json
        json.dump(nstamp, open(out + ".stamps.json", "w"))
```

```python
import sys
from asmlib import Asm, VM, vr, sr

NAME = "recurrent_scan__ssm_conv_h3__glu_gated_swiglu__prompt_kernel"

class Opt:
    prof = False
    x_bst = False
    nt_k = ""
    nt_v = ""
    nt_s = ""
    nt_w = ""
    code_pf = True
    prio = False
    cprio = 2
    gprio = 3
    x_st = False
    p_after = False
    tlb = False
    x_delay = 0
    x_delay_end = 0
    pairswap = False
    sp_delay = True
    w2warm = False
    w2t_at = 4
    lprio = 0
    late_st = False
    kvtouch = False
    touch = True
    touch_at = 2
    w2touch = False
    ring_early = False
    sp_w2 = True
    rot1 = 8
    rot2 = 2
    ticket = True
    x_g2st = False
    x_hmode = 0
    x_hst = "sc1"
    x_mid = False
    h_ld = "sc1"
    nbk = 6
OPT = Opt()

WS_UT = 0
WS_Y = 2 << 20
WS_H = 4 << 20
WS_CS = 12 << 20
WS_ST = WS_CS + (256 << 10)
WS_FU = WS_ST + (16 << 10)
WS_FCS = WS_FU + (16 << 10)
WS_FST = WS_FCS + (16 << 10)
WS_FH = WS_FST + (16 << 10)
WS_FY = WS_FH + (16 << 10)
WS_TK = WS_FY + (16 << 10)
WS_PROF = 13 << 20
WS_SIZE = 16 << 20

SLOT = 49152
L_HB = 98304
HCOPY = 4160
HCH = 4 * HCOPY
L_UB = L_HB + 2 * HCH
L_YT = L_UB + 2 * 4608
L_XCH = L_YT
L_YS = L_HB
L_SCR = 147456
L_CSP = L_SCR + 8320
L_TAPS = L_CSP + 4096
L_STAT = L_TAPS + 1024
L_CS = L_STAT + 1024
L_NONCE = L_CS + 1024
L_YCNT = L_NONCE + 8
L_ECNT = L_NONCE + 12
L_RING = L_NONCE + 16
L_PAIR = L_NONCE + 32
L_YOK = L_NONCE + 40
L_SP1 = L_NONCE + 44
L_SP2 = L_NONCE + 48
L_SP3 = L_NONCE + 52
L_VID = L_NONCE + 56
L_STP = L_NONCE + 64
LDS_BYTES = 163840
assert L_XCH + 16384 <= L_TAPS and L_STP + 64 <= LDS_BYTES

S_WAVE, S_XCD, S_J, S_RB, S_I = 3, 4, 5, 6, 7
STAMP0 = 8
NSTAMP = 10
S_ROT, S_SPIN = 32, 33
S_B, S_CB = 34, 35
R_X, R_WS, R_OUT, R_W1, R_W3, R_K, R_V, R_SH, R_SSM, R_DBG, R_WT, R_W2 = 36, 40, 44, 48, 52, 56, 60, 64, 68, 72, 76, 28
S_PB = 48
S_PC = 56
S_TB, S_LW = 80, 81
S_NONCE = 82
S_D = 84
T0, T1, T2, T3, T4, T5 = 85, 86, 87, 88, 89, 90
S_LW1K = 91
S_OX, S_OW = 92, 93
S_CH = 94
S_ONES = 95
S_R1 = 95
S_VX, S_VJ = 0, 1
S_XB, S_WB = 77, 78
S_G = 76
S_EX = 96
S_ST0 = 98
S_RT0 = 100
SPIN_MAX = 0x40000
NLOG2E = 0xbfb8aa3b
NLN2 = 0xbf317218

a = Asm()
nstamp = {}

class capture:
    def __enter__(self):
        self.saved = a.L; a.L = []; return a.L
    def __exit__(self, *e):
        a.L = self.saved

stamp_on = [True]
def stamp(role, name):
    if not OPT.prof or not stamp_on[0]: return
    if role == "L" and OPT.x_bst != name.startswith("B"): return
    if role == "L" and name.startswith("s_") and not OPT.x_st: return
    if role == "L" and OPT.x_st and not name.startswith(("s_", "first", "c0", "fu_")): return
    if role == "L" and name.startswith("m_") and not OPT.x_mid: return
    if role == "L" and OPT.x_mid and name in ("first_ld", "first_dma", "c0", "fu_flag", "m_csseen", "m_b6", "m_w2iss", "m_useen"): return
    if role == "C" and OPT.x_g2st and not name.startswith(("k", "h_", "g2", "E")): return
    if role == "C" and not OPT.x_g2st and name.startswith("k"): return
    k = nstamp.setdefault(role, [])
    idx = len(k)
    assert idx < NSTAMP, "too many stamps"
    k.append(name)
    a(f"s_memtime {sr(STAMP0 + 2 * idx, 2)}")

def barrier():
    a("s_barrier")

def read_nonce(vtmp):
    a(f"v_mov_b32 v{vtmp+2}, {L_NONCE}")
    a(f"ds_read_b64 {vr(vtmp,2)}, v{vtmp+2}")
    a("s_waitcnt lgkmcnt(0)")
    a(f"v_readfirstlane_b32 s{S_NONCE}, v{vtmp}")
    a(f"v_readfirstlane_b32 s{S_NONCE+1}, v{vtmp+1}")

def flag_store(vm, vtmp, s_off, tag="flag"):
    a(f"v_mov_b32 v{vtmp}, s{S_NONCE}")
    a(f"v_mov_b32 v{vtmp+1}, s{S_NONCE+1}")
    a("s_mov_b64 exec, 1")
    vm.issue(tag, f"buffer_store_dwordx2 {vr(vtmp,2)}, off, {sr(R_WS,4)}, s{s_off} sc1")
    a("s_mov_b64 exec, -1")

def poll_issue(vm, vdst, voff, tag):
    vm.issue(tag, f"buffer_load_dwordx2 {vr(vdst,2)}, v{voff}, {sr(R_WS,4)}, 0 offen sc1")

def poll_check(vm, vdst, voff, tag, sleep=2):
    ok = a.newlabel("L_pok"); again = a.newlabel("L_pagain")
    vm.wait(tag)
    a(f"v_cmp_ne_u64 vcc, {sr(S_NONCE,2)}, {vr(vdst,2)}")
    a(f"s_cbranch_vccz {ok}")
    a(f"s_mov_b32 s{S_SPIN}, {SPIN_MAX}")
    a.label(again)
    a(f"s_sub_u32 s{S_SPIN}, s{S_SPIN}, 1")
    a(f"s_cbranch_scc1 {ok}")
    a(f"s_sleep {sleep}")
    a(f"buffer_load_dwordx2 {vr(vdst,2)}, v{voff}, {sr(R_WS,4)}, 0 offen sc1")
    a("s_waitcnt vmcnt(0)")
    a(f"v_cmp_ne_u64 vcc, {sr(S_NONCE,2)}, {vr(vdst,2)}")
    a(f"s_cbranch_vccnz {again}")
    a.label(ok)

def spoll_issue(pb, s_off, nd):
    a(f"s_load_dwordx16 {sr(pb,16)}, {sr(R_WS,2)}, s{s_off} glc")
    if nd > 16:
        a(f"s_add_u32 s{T0}, s{s_off}, 64")
        a(f"s_load_dwordx16 {sr(pb+16,16)}, {sr(R_WS,2)}, s{T0} glc")

def spoll_test(pb, nd, words):
    ref = S_NONCE if words == 2 else S_EX
    for p in range(nd // 2):
        a(f"s_xor_b64 {sr(pb+2*p,2)}, {sr(pb+2*p,2)}, {sr(ref,2)}")
        if p: a(f"s_or_b64 {sr(pb,2)}, {sr(pb,2)}, {sr(pb+2*p,2)}")

def spoll(pb, s_off, n, words, sleep=4):
    ok = a.newlabel("L_sok"); again = a.newlabel("L_sagain")
    nd = n * words
    a(f"s_mov_b32 s{S_SPIN}, {SPIN_MAX}")
    a.label(again)
    spoll_issue(pb, s_off, nd)
    a(f"s_sub_u32 s{S_SPIN}, s{S_SPIN}, 1")
    a(f"s_cbranch_scc1 {ok}")
    a("s_waitcnt lgkmcnt(0)")
    spoll_test(pb, nd, words)
    a(f"s_cbranch_scc0 {ok}")
    a(f"s_sleep {sleep}")
    a(f"s_branch {again}")
    a.label(ok)

def lds_add(addr, v0_, v1_):
    a(f"v_mov_b32 v{v0_}, {addr}" if isinstance(addr, int) else f"v_mov_b32 v{v0_}, s{addr[0]}")
    a(f"v_mov_b32 v{v1_}, 1")
    a("s_mov_b64 exec, 1")
    a(f"ds_add_u32 v{v0_}, v{v1_}")
    a("s_mov_b64 exec, -1")

def lds_wait(addr, val, v0_, v1_):
    ok = a.newlabel("L_lok"); again = a.newlabel("L_lagain")
    a(f"v_mov_b32 v{v0_}, {addr}" if isinstance(addr, int) else f"v_mov_b32 v{v0_}, s{addr[0]}")
    a.label(again)
    a(f"ds_read_b32 v{v1_}, v{v0_}")
    a("s_waitcnt lgkmcnt(0)")
    a(f"v_cmp_eq_u32 vcc, {val}, v{v1_}")
    a(f"s_cbranch_vccnz {ok}")
    a("s_sleep 1")
    a(f"s_branch {again}")
    a.label(ok)

def unpack(dst, src):
    a(f"v_lshlrev_b32 v{dst}, 16, v{src}")
    a(f"v_and_b32 v{dst+1}, 0xffff0000, v{src}")

FIRST_A = ((R_WS, 96), (R_K, 8), (R_V, 16), (R_SH, 24), (R_SSM, 32), (R_DBG, 88), (S_EX, 40))
LATE_A = ((R_X, 0), (R_W1, 56), (R_W3, 64), (R_W2, 72), (R_OUT, 80))
FIRST_B = ((R_WS, 96), (R_X, 0), (R_W1, 56), (R_W3, 64), (R_SSM, 32), (R_DBG, 88), (S_EX, 40))
LATE_B = ((R_K, 8), (R_V, 16), (R_SH, 24), (R_W2, 72), (R_OUT, 80))
def prologue():
    a("s_cmp_ge_u32 s2, 256")
    a("s_cbranch_scc1 L_end")
    for r, off in (FIRST_B if OPT.p_after else FIRST_A):
        a(f"s_load_dwordx2 {sr(r,2)}, s[0:1], {off}")
    if OPT.prof:
        a(f"s_memtime {sr(S_ST0,2)}")
        a(f"s_memrealtime {sr(S_RT0,2)}")
    for _ in range(OPT.x_delay): a("s_sleep 125")
    a("v_lshrrev_b32 v2, 6, v0")
    a("v_and_b32 v1, 63, v0")
    a(f"s_and_b32 s{S_XCD}, s2, 7")
    a(f"v_readfirstlane_b32 s{S_WAVE}, v2")
    a(f"s_lshr_b32 s{S_J}, s2, 3")
    if OPT.code_pf:
        skip = a.newlabel("L_nopf")
        a(f"s_cmp_lg_u32 s{S_WAVE}, 2")
        a(f"s_cbranch_scc1 {skip}")
        a(f"s_getpc_b64 {sr(T3,2)}")
        a.label("L_pcref")
        a(f"s_add_u32 s{T0}, s{S_J}, s2")
        a(f"s_and_b32 s{T0}, s{T0}, 3")
        a(f"v_lshl_add_u32 v2, s{T0}, 6, v1")
        a("v_lshlrev_b32 v2, 7, v2")
        a("v_min_u32 v2, L_code_end-L_pcref-4, v2")
        a(f"global_load_dword v24, v2, {sr(T3,2)}")
        a.label(skip)
    a(f"s_and_b32 s{S_LW}, s{S_WAVE}, 3")
    a(f"s_lshl_b32 s{S_LW1K}, s{S_LW}, 10")
    for r, size in ((R_WS, WS_SIZE), (R_K, 2 << 20), (R_V, 2 << 20), (R_SH, 4096), (R_SSM, 4096), (R_DBG, 256),
                    (R_X, 2 << 20), (R_W1, 512 * 3584), (R_W3, 512 * 3584), (R_W2, 1792 * 1024), (R_OUT, 2 << 20)):
        a(f"s_mov_b32 s{r+2}, {size}")
        a(f"s_mov_b32 s{r+3}, 0x20000")
    a(f"s_cmp_ge_u32 s{S_WAVE}, 4")
    a("s_cbranch_scc1 L_lstart")

def late_ptrs():
    for r, off in (LATE_B if OPT.p_after else LATE_A):
        a(f"s_load_dwordx2 {sr(r,2)}, s[0:1], {off}")

def decode(vt):
    a(f"v_mov_b32 v{vt}, {L_VID}")
    a(f"ds_read_b32 v{vt}, v{vt}")
    a("s_waitcnt lgkmcnt(0)")
    a(f"v_readfirstlane_b32 s{S_VJ}, v{vt}")
    a(f"s_and_b32 s{S_VX}, s{S_VJ}, 7")
    a(f"s_lshr_b32 s{S_VJ}, s{S_VJ}, 3")
    a(f"s_and_b32 s{S_I}, s{S_VJ}, 7")
    a(f"s_and_b32 s{S_B}, s{S_VX}, 1")
    a(f"s_lshr_b32 s{S_VJ}, s{S_VJ}, 3")
    a(f"s_and_b32 s{S_RB}, s{S_VX}, 6")
    a(f"s_lshl_b32 s{S_RB}, s{S_RB}, 1")
    a(f"s_add_u32 s{S_RB}, s{S_RB}, s{S_VJ}")
    a(f"s_mul_i32 s{S_CB}, s{S_B}, 7")
    a(f"s_add_u32 s{S_CB}, s{S_CB}, s{S_I}")

def decode2():
    a(f"s_lshl_b32 s{S_TB}, s{S_RB}, 1")
    a(f"s_add_u32 s{S_TB}, s{S_TB}, s{S_B}")
    a(f"s_mul_i32 s{S_ROT}, s{S_I}, 7")
    a(f"s_lshr_b32 s{S_ROT}, s{S_ROT}, 1")
    a(f"s_mul_i32 s{T2}, s{S_VJ}, 7")
    a(f"s_add_u32 s{S_ROT}, s{S_ROT}, s{T2}")
    a(f"s_mul_i32 s{T2}, s{S_VX}, 3")
    a(f"s_add_u32 s{S_ROT}, s{S_ROT}, s{T2}")
    for _ in range(2):
        a(f"s_cmp_ge_u32 s{S_ROT}, 28")
        a(f"s_cselect_b32 s{T2}, 28, 0")
        a(f"s_sub_u32 s{S_ROT}, s{S_ROT}, s{T2}")

def nonce_issue(vt):
    return f"buffer_load_dwordx2 {vr(vt,2)}, off, {sr(R_DBG,4)}, 0 sc1"

def nonce_check(vt):
    ok = a.newlabel("L_nok"); again = a.newlabel("L_nagain")
    a(f"s_mov_b32 s{S_SPIN}, {SPIN_MAX}")
    a.label(again)
    a(f"v_cmp_gt_i32 vcc, 0, v{vt+1}")
    a(f"s_cbranch_vccnz {ok}")
    a(nonce_issue(vt))
    a(f"s_sub_u32 s{S_SPIN}, s{S_SPIN}, 1")
    a("s_waitcnt vmcnt(0)")
    a(f"s_cbranch_scc0 {again}")
    a.label(ok)
    a(f"v_readfirstlane_b32 s{S_NONCE}, v{vt}")
    a(f"v_readfirstlane_b32 s{S_NONCE+1}, v{vt+1}")

def start_jobs():
    n1 = a.newlabel("L_sj1"); n2 = a.newlabel("L_sj2")
    a(f"s_cmp_lg_u32 s{S_WAVE}, 0")
    a(f"s_cbranch_scc1 {n1}")
    if OPT.ticket:
        a(f"s_getreg_b32 s{T1}, hwreg(HW_REG_XCC_ID)")
        a(f"s_and_b32 s{T1}, s{T1}, 7")
        a(f"s_lshl_b32 s{T2}, s{T1}, 7")
        a(f"s_add_u32 s{T2}, s{T2}, {WS_TK}")
        a("v_mov_b32 v7, 1")
        a("s_waitcnt lgkmcnt(0)")
        a("s_mov_b64 exec, 1")
        a(f"buffer_atomic_add v7, off, {sr(R_WS,4)}, s{T2} sc0 sc1")
        a("s_mov_b64 exec, -1")
    a(f"v_mov_b32 v6, {L_NONCE}")
    a("v_mov_b32 v4, 0")
    a("v_mov_b32 v5, 0")
    for o in (8, 16, 24, 32, 40, 48): a(f"ds_write_b64 v6, v[4:5] offset:{o}")
    a(f"s_branch {n2}")
    a.label(n1)
    a(f"s_cmp_lg_u32 s{S_WAVE}, 1")
    a(f"s_cbranch_scc1 {n2}")
    a("s_cmp_lg_u32 s2, 0")
    a(f"s_cbranch_scc1 {n2}")
    a(f"s_memrealtime {sr(T1,2)}")
    a("s_waitcnt lgkmcnt(0)")
    a(f"s_or_b32 s{T2}, s{T2}, 0x80000000")
    a(f"v_mov_b32 v4, s{T1}")
    a(f"v_mov_b32 v5, s{T2}")
    a("s_mov_b64 exec, 1")
    a(f"buffer_store_dwordx2 v[4:5], off, {sr(R_DBG,4)}, 0 sc1")
    a("s_mov_b64 exec, -1")
    a.label(n2)

def ticket_done():
    n1 = a.newlabel("L_td")
    a(f"s_cmp_lg_u32 s{S_WAVE}, 0")
    a(f"s_cbranch_scc1 {n1}")
    if OPT.ticket:
        a("s_waitcnt vmcnt(0)")
        a("v_and_b32 v7, 31, v7")
        a(f"v_lshl_add_u32 v7, v7, 3, s{T1}")
    else:
        a("v_mov_b32 v7, s2")
    a("s_mov_b64 exec, 1")
    a(f"ds_write_b32 v6, v7 offset:{L_VID - L_NONCE}")
    a("s_mov_b64 exec, -1")
    a.label(n1)
assert T1 % 2 == 0 and T3 % 2 == 0

ACC1 = 128
def acc1(gu, m, n): return ACC1 + 16 * (4 * n + 2 * m + gu)
def abuf(b, m, gu): return 64 + 16 * b + 4 * (2 * m + gu)
def bbuf(b, n): return 96 + 8 * b + 4 * n
VA = 10
VB = 12

def c_g1_reads(ks, b):
    tr = lambda m, gu, jj: f"ds_read_b64_tr_b16 {vr(abuf(b,m,gu)+2*jj,2)}, v{VA+m} offset:{16384+gu*16384+(16*ks+4*jj)*256}"
    bb = lambda n: f"ds_read_b128 {vr(bbuf(b,n),4)}, v{VB+ks} offset:{4096*n}"
    return [[bb(0), tr(0,0,0), tr(0,0,1)], [tr(0,1,0), tr(0,1,1), tr(1,0,0)], [tr(1,0,1), tr(1,1,0), tr(1,1,1)], [bb(1)]]

def c_start():
    a.c("==== C wave: set-up ====")
    start_jobs()
    late_ptrs()
    a("v_lshrrev_b32 v3, 5, v1")
    a("v_and_b32 v2, 31, v1")
    a(f"s_and_b32 s{T0}, s{S_WAVE}, 1")
    a(f"s_lshr_b32 s{T4}, s{S_WAVE}, 1")
    a("v_bfe_u32 v4, v1, 1, 3")
    a(f"s_lshl_b32 s{T2}, s{T0}, 13")
    a(f"v_lshl_add_u32 v5, v2, 7, s{T2}")
    for ks in range(4):
        a(f"v_add_u32 v8, {2*ks}, v3")
        a("v_xor_b32 v8, v8, v4")
        a(f"v_lshl_add_u32 v{VB+ks}, v8, 4, v5")
    a("v_bfe_u32 v4, v1, 2, 2")
    a("v_lshl_add_u32 v5, v3, 3, v4")
    a("v_lshlrev_b32 v5, 8, v5")
    a("v_bfe_u32 v8, v1, 4, 1")
    a("v_lshl_add_u32 v5, v8, 5, v5")
    a("v_and_b32 v8, 3, v1")
    a("v_lshl_add_u32 v5, v8, 3, v5")
    a(f"s_lshl_b32 s{T2}, s{T4}, 1")
    for m in range(2):
        a(f"s_add_u32 s{T3}, s{T2}, {m}")
        a(f"v_xor_b32 v8, s{T3}, v4")
        a(f"v_lshl_add_u32 v{VA+m}, v8, 6, v5")
    for r in range(ACC1, 256, 2):
        a(f"v_pk_mov_b32 {vr(r,2)}, 0, 0")
    ticket_done()
    a("s_waitcnt lgkmcnt(0)")
    barrier()
    stamp("C", "V")
    decode(4); decode2()
    a(f"s_cmp_eq_u32 s{S_I}, 7")
    a("s_cbranch_scc1 L_cspare")
    a(f"s_lshr_b32 s{T1}, s{S_WAVE}, 1")
    a(f"s_mov_b32 s{T4}, 0")
    a(f"s_mov_b32 s{T5}, 0")
    a(f"s_mov_b32 s{S_OX}, {(-2*SLOT) & 0xffffffff}")
    a(f"s_mov_b32 s{S_OW}, {SLOT}")
    barrier()

def c_g1():
    a.c("==== C wave: GEMM1 ====")
    stamp("C", "g1_start")
    for grp in c_g1_reads(0, 0):
        for r in grp: a(r)
    a(".p2align 3")
    a.label("L_cg1")
    for ks in range(4):
        b = ks & 1
        nxt = c_g1_reads((ks + 1) & 3, b ^ 1)
        a("s_waitcnt lgkmcnt(0)")
        i = 0
        for n in range(2):
            for m in range(2):
                for gu in range(2):
                    d = vr(acc1(gu, m, n), 16)
                    a(f"v_mfma_f32_32x32x16_bf16 {d}, {vr(abuf(b,m,gu),4)}, {vr(bbuf(b,n),4)}, {d}")
                    if ks == 3 and i == 0:
                        barrier()
                    if i < 4:
                        for r in nxt[i]: a(r)
                    if ks == 2 and i == 4:
                        a(f"s_add_u32 s{T5}, s{T5}, 1")
                        a(f"s_cmp_eq_u32 s{T5}, 3")
                        a(f"s_cselect_b32 s{T3}, s{S_OX}, s{S_OW}")
                        a(f"s_cselect_b32 s{T5}, 0, s{T5}")
                    if ks == 2 and i == 5:
                        for k in range(3): a(f"v_add_u32 v{VA+k}, s{T3}, v{VA+k}")
                    if ks == 2 and i == 6:
                        for k in range(3, 6): a(f"v_add_u32 v{VA+k}, s{T3}, v{VA+k}")
                    if ks == 3 and i == 6:
                        a(f"s_add_u32 s{T4}, s{T4}, 1")
                        a(f"s_cmp_lt_u32 s{T4}, 8")
                    i += 1
    a("s_cbranch_scc1 L_cg1")
    stamp("C", "g1_end")
    a.c("---- GEMM1 epilogue ----")
    if OPT.prio: a("s_setprio 3")
    CS = 32
    ST = 16
    a(f"s_lshl_b32 s{T2}, s{T0}, 9")
    a(f"s_add_u32 s{T2}, s{T2}, {L_STAT}")
    a(f"v_lshl_add_u32 v4, v2, 3, s{T2}")
    a(f"s_lshl_b32 s{T2}, s{T1}, 8")
    a(f"s_add_u32 s{T2}, s{T2}, {L_CS}")
    a(f"v_lshl_add_u32 v5, v3, 4, s{T2}")
    a("s_waitcnt vmcnt(0) lgkmcnt(0)")
    a(f"ds_read_b64 {vr(ST,2)}, v4")
    a(f"ds_read_b64 {vr(ST+2,2)}, v4 offset:256")
    for m in range(2):
        for gu in range(2):
            for j in range(4):
                a(f"ds_read_b128 {vr(CS+16*(2*m+gu)+4*j,4)}, v5 offset:{gu*512+m*128+j*32}")
    a(f"s_lshl_b32 s{T2}, s{S_RB}, 2")
    a(f"s_lshl_b32 s{T3}, s{T0}, 1")
    a(f"s_add_u32 s{T2}, s{T2}, s{T3}")
    a(f"s_mul_i32 s{T2}, s{T2}, 112")
    a(f"s_lshl_b32 s{T3}, s{S_CB}, 3")
    a(f"s_add_u32 s{T2}, s{T2}, s{T3}")
    a(f"s_lshl_b32 s{T3}, s{T1}, 2")
    a(f"s_add_u32 s{T2}, s{T2}, s{T3}")
    a(f"s_lshl_b32 s{T2}, s{T2}, 10")
    a(f"s_add_u32 s{T2}, s{T2}, {WS_H}")
    a(f"s_add_u32 s{T3}, s{T2}, {112*1024}")
    a("v_lshlrev_b32 v6, 4, v1")
    read_nonce(20)
    a(f"v_mul_f32 v24, 0x{NLOG2E:x}, v{ST+1}")
    a(f"v_mul_f32 v26, 0x{NLOG2E:x}, v{ST+3}")
    E = 96; O = 112
    blk = 0
    late = []
    for n in range(2):
        st = vr(ST + 2 * n, 2)
        for m in range(2):
            for hb in range(2):
                A = acc1(0, m, n) + 8 * hb; B = acc1(1, m, n) + 8 * hb
                CG = CS + 16 * (2 * m) + 8 * hb; CU = CS + 16 * (2 * m + 1) + 8 * hb
                e = E + 8 * (blk & 1); o = O + 4 * (blk & 3)
                if OPT.late_st: o = B
                for p in range(4):
                    a(f"v_pk_fma_f32 {vr(A+2*p,2)}, {vr(CG+2*p,2)}, {st}, {vr(A+2*p,2)} op_sel_hi:[1,0,1] neg_lo:[0,1,0] neg_hi:[0,1,0]")
                for p in range(4):
                    a(f"v_pk_mul_f32 {vr(A+2*p,2)}, {vr(A+2*p,2)}, {vr(24+2*n,2)} op_sel_hi:[1,0]")
                for p in range(4):
                    a(f"v_exp_f32 v{e+2*p}, v{A+2*p}")
                    a(f"v_exp_f32 v{e+2*p+1}, v{A+2*p+1}")
                    a(f"v_pk_fma_f32 {vr(B+2*p,2)}, {vr(CU+2*p,2)}, {st}, {vr(B+2*p,2)} op_sel_hi:[1,0,1] neg_lo:[0,1,0] neg_hi:[0,1,0]")
                for p in range(4):
                    a(f"v_pk_add_f32 {vr(e+2*p,2)}, {vr(e+2*p,2)}, 1.0 op_sel_hi:[1,0]")
                for p in range(4):
                    a(f"v_rcp_f32 v{e+2*p}, v{e+2*p}")
                    a(f"v_rcp_f32 v{e+2*p+1}, v{e+2*p+1}")
                    a(f"v_pk_mul_f32 {vr(A+2*p,2)}, {vr(A+2*p,2)}, {vr(B+2*p,2)}")
                for p in range(4):
                    a(f"v_pk_mul_f32 {vr(A+2*p,2)}, {vr(A+2*p,2)}, {vr(e+2*p,2)}")
                for p in range(4):
                    a(f"v_cvt_pk_bf16_f32 v{o+p}, v{A+2*p}, v{A+2*p+1}")
                st_ = f"buffer_store_dwordx4 {vr(o,4)}, v6, {sr(R_WS,4)}, s{T2+n} offen offset:{(2*m+hb)*1024} {OPT.x_hst}"
                if OPT.late_st: late.append(st_)
                else: a(st_)
                blk += 1
    for st_ in late: a(st_)
    if OPT.prio: a("s_setprio 0")

W2O = 15
S_KW = S_OX
S_KH = S_OW
def w2_setup():
    a("v_lshrrev_b32 v4, 3, v1")
    a("v_bfe_u32 v5, v1, 4, 1")
    a("v_lshlrev_b32 v5, 2, v5")
    a("v_and_b32 v6, 7, v1")
    a("v_xor_b32 v5, v5, v6")
    a("v_lshlrev_b32 v4, 10, v4")
    a(f"v_lshl_add_u32 v{W2O}, v5, 4, v4")
    a(f"s_mul_i32 s{T0}, s{S_LW}, {448*1024}")
    a(f"s_lshl_b32 s{T1}, s{S_I}, 7")
    a(f"s_add_u32 s{T0}, s{T0}, s{T1}")
    a(f"v_add_u32 v{W2O}, s{T0}, v{W2O}")

def kidx_init(reg, s0):
    a(f"s_add_u32 s{reg}, s{S_ROT}, {s0}")
    a(f"s_cmp_ge_u32 s{reg}, 28")
    a(f"s_cselect_b32 s{T0}, 28, 0")
    a(f"s_sub_u32 s{reg}, s{reg}, s{T0}")
def kidx_next(reg):
    a(f"s_add_u32 s{reg}, s{reg}, 1")
    a(f"s_cmp_eq_u32 s{reg}, 28")
    a(f"s_cselect_b32 s{reg}, 0, s{reg}")

def ring_off(slot):
    return (slot // 6) * SLOT + (slot % 6) * 2048

def w2_kstep(vm, s, tag):
    a(f"s_add_u32 m0, s{T5}, {ring_off(s % 12)}")
    a(f"s_lshl_b32 s{T1}, s{S_KW}, 14")
    vm.issue(tag, f"buffer_load_dwordx4 v{W2O}, {sr(R_W2,4)}, s{T1} offen {OPT.nt_w} lds")
    a(f"s_add_u32 m0, s{T5}, {ring_off(s % 12) + 1024}")
    a(f"s_add_u32 s{T1}, s{T1}, 8192")
    vm.issue(tag, f"buffer_load_dwordx4 v{W2O}, {sr(R_W2,4)}, s{T1} offen {OPT.nt_w} lds")
    kidx_next(S_KW)

ACC2 = 192
AR = 64
HR = 16
VX = 64
def c_g2():
    vm = VM(a)
    a.label("L_cE")
    a.c("==== C wave: GEMM2 ====")
    NBK = OPT.nbk
    assert HR + 8 * NBK <= AR
    VT = 10
    a("v_lshrrev_b32 v3, 5, v1")
    a("v_bfe_u32 v5, v1, 2, 2")
    a("v_lshl_add_u32 v7, v3, 2, v5")
    a("v_lshlrev_b32 v7, 7, v7")
    a("v_bfe_u32 v8, v1, 4, 1")
    a("v_lshl_add_u32 v7, v8, 5, v7")
    a("v_and_b32 v8, 3, v1")
    a("v_lshl_add_u32 v7, v8, 3, v7")
    a(f"s_mul_i32 s{T5}, s{S_LW}, 12288")
    a(f"v_add_u32 v7, s{T5}, v7")
    a("v_lshrrev_b32 v5, 1, v5")
    a(f"v_lshl_add_u32 v{VT}, v5, 6, v7")
    a("v_xor_b32 v5, 1, v5")
    a(f"v_lshl_add_u32 v{VT+1}, v5, 6, v7")
    if OPT.gprio: a(f"s_setprio {OPT.gprio}")
    lds_add(L_ECNT, 12, 13)
    stamp("C", "E")
    def treads(s, dst):
        return [f"ds_read_b64_tr_b16 {vr(dst+4*m+2*jj,2)}, v{VT+m} offset:{ring_off(s % 12) + 8*jj*128}" for m in range(2) for jj in range(2)]
    w2_setup()
    kidx_init(S_KW, 12)
    a(f"s_and_b32 s{T0}, s{S_WAVE}, 1")
    a(f"s_lshl_b32 s{T4}, s{S_RB}, 1")
    a(f"s_add_u32 s{T4}, s{T4}, s{T0}")
    a(f"s_lshl_b32 s{T4}, s{T4}, 1")
    a(f"s_add_u32 s{T4}, s{T4}, s{S_B}")
    a(f"s_lshl_b32 s{T4}, s{T4}, 4")
    a(f"s_lshl_b32 s{T3}, s{S_I}, 1")
    a(f"s_add_u32 s{T4}, s{T4}, s{T3}")
    a(f"s_lshr_b32 s{T3}, s{S_WAVE}, 1")
    a(f"s_add_u32 s{T4}, s{T4}, s{T3}")
    a(f"s_lshl_b32 s{T4}, s{T4}, 3")
    a(f"s_add_u32 s{T4}, s{T4}, {WS_FH}")
    a(f"s_lshl_b32 s{T2}, s{S_TB}, 1")
    a(f"s_add_u32 s{T2}, s{T2}, s{T3}")
    a(f"s_lshl_b32 s{T2}, s{T2}, 7")
    a(f"s_mul_i32 s{T3}, s{T0}, 56")
    a(f"s_add_u32 s{T2}, s{T2}, s{T3}")
    a(f"s_add_u32 s{S_CH}, s{T2}, {WS_FH}")
    a(f"s_lshl_b32 s{T3}, s{S_LW}, 2")
    a(f"s_add_u32 s{T3}, s{T3}, {L_RING}")
    slow = a.newlabel("L_cslow"); join = a.newlabel("L_cjoin")
    a(f"v_mov_b32 v12, s{T3}")
    a("ds_read_b32 v13, v12")
    a("s_waitcnt lgkmcnt(0)")
    a("v_cmp_eq_u32 vcc, 1, v13")
    a(f"s_cbranch_vccz {slow}")
    for s in range(12):
        for r in treads(s, AR + 8 * s): a(r)
    a("s_waitcnt lgkmcnt(0)")
    for s in range(12, 16): w2_kstep(VM(a), s, "wa")
    a("s_waitcnt vmcnt(8)")
    flag_store(VM(a), 12, T4)
    a(f"s_branch {join}")
    a.label(slow)
    a("s_waitcnt vmcnt(0)")
    flag_store(VM(a), 12, T4)
    lds_wait((T3,), 1, 14, 4)
    for s in range(12):
        for r in treads(s, AR + 8 * s): a(r)
    a("s_waitcnt lgkmcnt(0)")
    for s in range(12, 16): w2_kstep(VM(a), s, "wa")
    a.label(join)
    vm.q.extend(["wa"] * 8)
    stamp("C", "h_flag")
    for s in range(16, 24): w2_kstep(vm, s, "wb")
    vm.wait("wa")
    for s in range(12, 16):
        for r in treads(s, AR + 8 * s): a(r)
    a(f"s_mul_i32 s{T2}, s{S_TB}, 224")
    a(f"s_mul_i32 s{T3}, s{S_LW}, 28")
    a(f"s_add_u32 s{T2}, s{T2}, s{T3}")
    a(f"s_lshl_b32 s{T2}, s{T2}, 10")
    a(f"s_add_u32 s{T2}, s{T2}, {WS_H}")
    a("v_lshlrev_b32 v6, 4, v1")
    a(f"v_add_u32 v7, {112*1024}, v6")
    a(f"s_mov_b32 s{S_KH}, s{S_ROT}")
    a("s_waitcnt lgkmcnt(0)")
    for s in range(24, 28): w2_kstep(vm, s, "wc")
    spoll(S_PC, S_CH, 7, 2)
    stamp("C", "h_seen")
    def hload(s):
        a(f"s_lshl_b32 s{T4}, s{S_KH}, 10")
        a(f"s_add_u32 s{T4}, s{T4}, s{T2}")
        if OPT.x_hmode == 1: a(f"s_and_b32 s{T4}, s{T4}, 0x43ffff")
        for n in range(2):
            vm.issue(f"h{s}", f"buffer_load_dwordx4 {vr(HR+8*(s%NBK)+4*n,4)}, v{6+n}, {sr(R_WS,4)}, s{T4} offen {OPT.h_ld}")
        kidx_next(S_KH)
    for s in range(NBK): hload(s)
    if OPT.gprio: a("s_setprio 0")
    stamp("C", "g2_start")
    for s in range(28):
        A = AR + 8 * (s % 16)
        vm.wait(f"h{s}", "lgkmcnt(0)" if s >= 16 else "")
        i = 0
        for n in range(2):
            for m in range(2):
                d = vr(ACC2 + 16 * (2 * n + m), 16)
                a(f"v_mfma_f32_32x32x16_bf16 {d}, {vr(A+4*m,4)}, {vr(HR+8*(s%NBK)+4*n,4)}, {'0' if s == 0 else d}")
                if i == 0 and 15 <= s < 27:
                    for r in treads(s + 1, AR + 8 * ((s + 1) % 16)): a(r)
                if i == 1 and s >= 1 and s - 1 + NBK < 28: hload(s - 1 + NBK)
                i += 1
        if s == 21: final_x_load(vm)
        if s in (0, 3, 7, 14, 21): stamp("C", f"k{s}")
    stamp("C", "g2_end")
    a("v_and_b32 v4, 31, v1")
    a("v_mul_u32_u24 v4, 272, v4")
    a("v_lshl_add_u32 v4, v3, 4, v4")
    a(f"v_add_u32 v4, s{T5}, v4")
    a("s_nop 7")
    for n in range(2):
        for m in range(2):
            for j in range(4):
                a(f"ds_write_b128 v4, {vr(ACC2+16*(2*n+m)+4*j,4)} offset:{n*SLOT+m*128+j*32}")
    vm.waitall("lgkmcnt(0)")
    a("s_branch L_final")

def final_x_load(vm):
    a("v_lshrrev_b32 v8, 3, v0")
    a(f"s_lshl_b32 s{T3}, s{S_TB}, 6")
    a(f"v_add_u32 v8, s{T3}, v8")
    a("v_lshlrev_b32 v8, 10, v8")
    a("v_and_b32 v9, 7, v0")
    a("v_lshl_add_u32 v9, v9, 4, v8")
    a(f"s_lshl_b32 s{T3}, s{S_I}, 7")
    a(f"v_add_u32 v9, s{T3}, v9")
    vm.issue("x", f"buffer_load_dwordx4 {vr(VX,4)}, v9, {sr(R_X,4)}, 0 offen")

def final():
    a.label("L_final")
    a.c("==== final epilogue (all waves) ====")
    P, Y, ST, XF, YF, XN = 16, 48, 52, 56, 72, 80
    a("v_lshrrev_b32 v4, 3, v0")
    a("v_and_b32 v5, 7, v0")
    a("v_and_b32 v6, 31, v4")
    a("v_mul_u32_u24 v6, 272, v6")
    a("v_lshl_add_u32 v6, v5, 5, v6")
    a("v_lshrrev_b32 v7, 5, v4")
    a(f"v_mul_u32_u24 v7, {SLOT}, v7")
    a("v_add_u32 v6, v6, v7")
    a("v_mul_u32_u24 v7, 144, v4")
    a("v_lshl_add_u32 v7, v5, 4, v7")
    a(f"v_add_u32 v7, {L_YT}, v7")
    a(f"s_lshl_b32 s{T0}, s{S_B}, 9")
    a(f"s_add_u32 s{T0}, s{T0}, {L_STAT}")
    a(f"v_lshl_add_u32 v8, v4, 3, s{T0}")
    a(f"ds_read_b64 {vr(ST,2)}, v8")
    for p in range(4): unpack(XF + 2 * p, VX + p)
    a("s_waitcnt lgkmcnt(0)")
    a(f"v_mul_f32 v{ST+2}, 0x{NLN2:x}, v{ST+1}")
    a(f"v_mov_b32 v90, v{ST+1}")
    a(f"v_mul_f32 v88, v{ST}, v{ST+2}")
    barrier()
    a(f"ds_read_b128 {vr(Y,4)}, v7")
    for w in range(4):
        a(f"ds_read_b128 {vr(P+8*w,4)}, v6 offset:{w*12288}")
        a(f"ds_read_b128 {vr(P+8*w+4,4)}, v6 offset:{w*12288+16}")
    for p in range(4):
        a(f"v_pk_fma_f32 {vr(XN+2*p,2)}, {vr(XF+2*p,2)}, {vr(ST+2,2)}, v[88:89] op_sel_hi:[1,0,0] neg_lo:[0,0,1] neg_hi:[0,0,1]")
    a("s_waitcnt lgkmcnt(8)")
    for p in range(4): unpack(YF + 2 * p, Y + p)
    for p in range(4):
        a(f"v_pk_mul_f32 {vr(XN+2*p,2)}, {vr(XN+2*p,2)}, {vr(YF+2*p,2)}")
    a("s_waitcnt lgkmcnt(4)")
    for p in range(4): a(f"v_pk_add_f32 {vr(P+2*p,2)}, {vr(P+2*p,2)}, {vr(P+8+2*p,2)}")
    a("s_waitcnt lgkmcnt(0)")
    for p in range(4): a(f"v_pk_add_f32 {vr(P+16+2*p,2)}, {vr(P+16+2*p,2)}, {vr(P+24+2*p,2)}")
    for p in range(4): a(f"v_pk_add_f32 {vr(P+2*p,2)}, {vr(P+2*p,2)}, {vr(P+16+2*p,2)}")
    for p in range(4): a(f"v_pk_mul_f32 {vr(P+2*p,2)}, {vr(P+2*p,2)}, v[90:91] op_sel_hi:[1,0]")
    P1 = P + 8
    for p in range(4):
        a(f"v_exp_f32 v{P1+2*p}, v{P+2*p}")
        a(f"v_exp_f32 v{P1+2*p+1}, v{P+2*p+1}")
        a(f"v_pk_mul_f32 {vr(XN+2*p,2)}, {vr(XN+2*p,2)}, {vr(P+2*p,2)}")
    for p in range(4): a(f"v_pk_add_f32 {vr(P1+2*p,2)}, {vr(P1+2*p,2)}, 1.0 op_sel_hi:[1,0]")
    for p in range(8): a(f"v_rcp_f32 v{P1+p}, v{P1+p}")
    for p in range(4):
        a(f"v_pk_fma_f32 {vr(XF+2*p,2)}, {vr(XN+2*p,2)}, {vr(P1+2*p,2)}, {vr(XF+2*p,2)}")
    for p in range(4):
        a(f"v_cvt_pk_bf16_f32 v{Y+p}, v{XF+2*p}, v{XF+2*p+1}")
    for _ in range(OPT.x_delay_end): a("s_sleep 125")
    a(f"buffer_store_dwordx4 {vr(Y,4)}, v9, {sr(R_OUT,4)}, 0 offen")
    if OPT.prof:
        a(f"s_memtime {sr(R_K,2)}")
        a(f"s_memrealtime {sr(T1,2)}")
        a("s_waitcnt lgkmcnt(0)")
        a(f"s_lshl_b32 s{T3}, s{S_VJ}, 3")
        a(f"s_add_u32 s{T3}, s{T3}, s{S_I}")
        a(f"s_lshl_b32 s{T3}, s{T3}, 3")
        a(f"s_add_u32 s{T3}, s{T3}, s{S_VX}")
        a(f"s_lshl_b32 s{T3}, s{T3}, 3")
        a(f"s_add_u32 s{T3}, s{T3}, s{S_WAVE}")
        a(f"s_lshl_b32 s{T3}, s{T3}, 7")
        a(f"s_add_u32 s{T3}, s{T3}, {WS_PROF}")
        for i in range(NSTAMP):
            a(f"s_sub_u32 s{T4}, s{STAMP0+2*i}, s{S_ST0}")
            a(f"v_mov_b32 v{16+i}, s{T4}")
        a(f"s_sub_u32 s{T4}, s{R_K}, s{S_ST0}")
        a(f"v_mov_b32 v28, s{T4}")
        a(f"v_mov_b32 v29, s{S_RT0}")
        a(f"v_mov_b32 v30, s{T1}")
        a("v_mov_b32 v31, 0")
        a("s_mov_b64 exec, 1")
        for i in range(4):
            a(f"buffer_store_dwordx4 {vr(16+4*i,4)}, off, {sr(R_WS,4)}, s{T3} offset:{16*i}")
    a.label("L_end")
    a("s_endpgm")

VXO = 16
VWO = 20
VTO = 24
VTD = 25
VPO = 26
KR = 48
VR_ = 68
TP = 76
TF = 92
KF = 124
A0 = 132
A1 = 140
HL = 148
HS = 172
PF = 188
GA = 208

def prep_loads(vm):
    a("v_lshrrev_b32 v4, 3, v1")
    a(f"s_lshl_b32 s{T0}, s{S_J}, 6")
    a(f"s_lshl_b32 s{T1}, s{S_LW}, 4")
    a(f"s_add_u32 s{T0}, s{T0}, s{T1}")
    a(f"s_sub_u32 s{T0}, s{T0}, 3")
    a(f"v_lshl_add_u32 v4, v4, 1, s{T0}")
    a("v_lshlrev_b32 v4, 10, v4")
    a("v_and_b32 v5, 7, v1")
    a("v_lshl_add_u32 v4, v5, 4, v4")
    a(f"s_lshl_b32 s{T0}, s{S_XCD}, 7")
    a(f"v_add_u32 v4, s{T0}, v4")
    for i in range(5):
        vm.issue("P", f"buffer_load_dwordx4 {vr(KR+4*i,4)}, v4, {sr(R_K,4)}, 0 offen {OPT.nt_k}")
        if i >= 3:
            vm.issue("P", f"buffer_load_dwordx4 {vr(VR_+4*(i-3),4)}, v4, {sr(R_V,4)}, 0 offen {OPT.nt_v}")
        if i < 4: a("v_add_u32 v4, 1024, v4")
    a(f"s_mov_b32 m0, {L_TAPS}")
    a("v_lshlrev_b32 v4, 4, v1")
    a(f"s_lshl_b32 s{T0}, s{S_XCD}, 9")
    vm.issue("P", f"buffer_load_dwordx4 v4, {sr(R_SH,4)}, s{T0} offen lds")

def prep_compute(pk=False):
    a("v_and_b32 v5, 7, v1")
    a("v_lshlrev_b32 v4, 6, v5")
    a(f"v_add_u32 v6, {L_TAPS}, v4")
    for q in range(4):
        a(f"ds_read_b128 {vr(TP+4*q,4)}, v6 offset:{16*q}")
    a("v_mul_u32_u24 v7, 1040, v5")
    a("v_lshrrev_b32 v4, 3, v1")
    a(f"s_lshl_b32 s{T0}, s{S_LW}, 5")
    a(f"s_sub_u32 s{T0}, {L_SCR + 124}, s{T0}")
    a("v_lshlrev_b32 v4, 2, v4")
    a("v_sub_u32 v7, v7, v4")
    a(f"v_add_u32 v7, s{T0}, v7")
    a("s_waitcnt lgkmcnt(0)")
    for dd in range(8):
        a(f"v_lshlrev_b32 v{TF+dd}, 16, v{TP+2*dd}")
        a(f"v_and_b32 v{TF+8+dd}, 0xffff0000, v{TP+2*dd}")
        a(f"v_lshlrev_b32 v{TF+16+dd}, 16, v{TP+2*dd+1}")
        a(f"v_and_b32 v{TF+24+dd}, 0xffff0000, v{TP+2*dd+1}")
    for i in range(5):
        for p in range(4): unpack(KF + 2 * p, KR + 4 * i + p)
        for tt, acc in ((0, A0), (1, A1)):
            j = 3 + tt - i
            if j < 0 or j > 3: continue
            if pk:
                for p in range(4):
                    if j == 3: a(f"v_pk_mul_f32 {vr(acc+2*p,2)}, {vr(KF+2*p,2)}, {vr(TF+8*j+2*p,2)}")
                    else: a(f"v_pk_fma_f32 {vr(acc+2*p,2)}, {vr(KF+2*p,2)}, {vr(TF+8*j+2*p,2)}, {vr(acc+2*p,2)}")
                continue
            for p in range(8):
                a(f"v_{'mul' if j == 3 else 'fmac'}_f32 v{acc+p}, v{KF+p}, v{TF+8*j+p}")
    for tt, acc in ((0, A0), (1, A1)):
        for p in range(4): unpack(KF + 2 * p, VR_ + 4 * tt + p)
        if pk:
            for p in range(4): a(f"v_pk_mul_f32 {vr(acc+2*p,2)}, {vr(acc+2*p,2)}, {vr(KF+2*p,2)}")
        else:
            for p in range(8): a(f"v_mul_f32 v{acc+p}, v{acc+p}, v{KF+p}")
    for dd in range(8): a(f"v_cvt_pk_bf16_f32 v{KF+dd}, v{A1+dd}, v{A0+dd}")
    for dd in range(8): a(f"ds_write_b32 v7, v{KF+dd} offset:{128*dd}")

def prep_store(vm):
    a(f"s_mul_i32 s{T0}, s{S_LW}, {2*1040}")
    a(f"s_add_u32 s{T0}, s{T0}, {L_SCR}")
    a(f"v_lshl_add_u32 v4, v1, 4, s{T0}")
    a(f"ds_read_b128 {vr(KR,4)}, v4")
    a(f"ds_read_b128 {vr(KR+4,4)}, v4 offset:1040")
    a("v_lshrrev_b32 v4, 3, v1")
    a("v_lshlrev_b32 v4, 12, v4")
    a("v_and_b32 v5, 7, v1")
    a("v_lshl_add_u32 v4, v5, 4, v4")
    a(f"s_lshl_b32 s{T0}, s{S_XCD}, 18")
    a(f"s_lshl_b32 s{T1}, s{S_LW}, 16")
    a(f"s_add_u32 s{T0}, s{T0}, s{T1}")
    a(f"s_lshl_b32 s{T1}, s{S_J}, 7")
    a(f"s_sub_u32 s{T1}, {WS_UT + 4096 - 128}, s{T1}")
    a(f"s_add_u32 s{T0}, s{T0}, s{T1}")
    a(f"s_add_u32 s{T1}, s{T0}, 32768")
    a("s_waitcnt lgkmcnt(0)")
    vm.issue("S", f"buffer_store_dwordx4 {vr(KR,4)}, v4, {sr(R_WS,4)}, s{T0} offen sc1")
    vm.issue("S", f"buffer_store_dwordx4 {vr(KR+4,4)}, v4, {sr(R_WS,4)}, s{T1} offen sc1")

def fu_flag(vm):
    a(f"s_lshl_b32 s{T0}, s{S_XCD}, 2")
    a(f"s_add_u32 s{T0}, s{T0}, s{S_LW}")
    a(f"s_lshl_b32 s{T0}, s{T0}, 5")
    a(f"s_add_u32 s{T0}, s{T0}, s{S_J}")
    a(f"s_lshl_b32 s{T0}, s{T0}, 2")
    a(f"s_add_u32 s{T0}, s{T0}, {WS_FU}")
    a(f"v_mov_b32 v{PF}, s{S_NONCE}")
    a("s_mov_b64 exec, 1")
    vm.issue("F", f"buffer_store_dword v{PF}, off, {sr(R_WS,4)}, s{T0} sc1")
    a("s_mov_b64 exec, -1")

def fu_addr():
    a(f"s_lshl_b32 s{T4}, s{S_XCD}, 2")
    a(f"s_add_u32 s{T4}, s{T4}, s{S_LW}")
    a(f"s_lshl_b32 s{T4}, s{T4}, 7")
    a(f"s_add_u32 s{T4}, s{T4}, {WS_FU}")
    a(f"s_mov_b32 s{S_EX}, s{S_NONCE}")
    a(f"s_mov_b32 s{S_EX+1}, s{S_NONCE}")

CSR = 28
def cs_read():
    a(f"s_bfe_u32 s{T0}, s{S_RB}, 0x10001")
    if OPT.pairswap: a(f"s_xor_b32 s{T0}, s{T0}, s{S_G}")
    a(f"s_and_b32 s{T1}, s{S_RB}, 1")
    a(f"s_mul_i32 s{T0}, s{T0}, {SLOT}")
    a(f"s_lshl_b32 s{T1}, s{T1}, 13")
    a(f"s_add_u32 s{T0}, s{T0}, s{T1}")
    a(f"s_add_u32 s{T0}, s{T0}, s{S_LW1K}")
    a("v_lshrrev_b32 v5, 4, v1")
    a("v_lshlrev_b32 v6, 2, v5")
    a("v_and_b32 v7, 15, v1")
    a("v_xor_b32 v6, v6, v7")
    a("v_lshlrev_b32 v6, 4, v6")
    a("v_lshl_add_u32 v6, v5, 8, v6")
    a(f"v_add_u32 v6, s{T0}, v6")
    for mat in range(2):
        for ii in range(2):
            a(f"ds_read_b128 {vr(CSR+8*mat+4*ii,4)}, v6 offset:{16384*(mat+1)+4096*ii}")

def cs_sum():
    G, U, KT = GA, GA + 8, KF
    a("v_bfe_u32 v8, v1, 4, 1")
    a("v_lshlrev_b32 v8, 4, v8")
    a("v_lshl_add_u32 v8, v7, 5, v8")
    a("v_lshrrev_b32 v5, 5, v1")
    a("v_lshl_add_u32 v8, v5, 9, v8")
    a(f"s_add_u32 s{T0}, s{S_LW1K}, {L_CSP}")
    a(f"v_add_u32 v8, s{T0}, v8")
    for mat, acc in ((0, G), (1, U)):
        for p in range(4):
            unpack(acc + 2 * p, CSR + 8 * mat + p)
            unpack(KT + 2 * p, CSR + 8 * mat + 4 + p)
        for p in range(8): a(f"v_add_f32 v{acc+p}, v{acc+p}, v{KT+p}")
    a("s_nop 0")
    for j in range(8): a(f"v_permlane32_swap_b32 v{G+j}, v{U+j}")
    for p in range(8): a(f"v_add_f32 v{G+p}, v{G+p}, v{U+p}")
    a("s_nop 0")
    for j in range(4): a(f"v_permlane16_swap_b32 v{G+j}, v{G+4+j}")
    for p in range(4): a(f"v_add_f32 v{G+p}, v{G+p}, v{G+4+p}")
    a(f"ds_write_b128 v8, {vr(G,4)}")

def cs_publish(vm):
    a(f"s_lshl_b32 s{T0}, s{S_LW}, 8")
    a(f"s_add_u32 s{T0}, s{T0}, {L_CSP}")
    a(f"v_lshlrev_b32 v{PF+7}, 2, v1")
    a(f"v_add_u32 v4, s{T0}, v{PF+7}")
    for w in range(4): a(f"ds_read_b32 v{GA+w}, v4 offset:{1024*w}")
    a(f"s_lshl_b32 s{T2}, s{S_B}, 3")
    a(f"s_add_u32 s{T2}, s{T2}, s{S_I}")
    a(f"s_lshl_b32 s{T2}, s{T2}, 2")
    a(f"s_add_u32 s{T2}, s{T2}, s{S_LW}")
    a(f"s_lshl_b32 s{T2}, s{T2}, 4")
    a(f"s_add_u32 s{T2}, s{T2}, s{S_RB}")
    a(f"s_lshl_b32 s{T3}, s{T2}, 8")
    a(f"s_add_u32 s{T3}, s{T3}, {WS_CS}")
    a(f"s_lshl_b32 s{T4}, s{T2}, 3")
    a(f"s_add_u32 s{T4}, s{T4}, {WS_FCS}")
    a("s_waitcnt lgkmcnt(0)")
    a(f"v_add_f32 v{GA}, v{GA}, v{GA+1}")
    a(f"v_add_f32 v{GA+2}, v{GA+2}, v{GA+3}")
    a(f"v_add_f32 v{GA}, v{GA}, v{GA+2}")
    vm.issue("S1", f"buffer_store_dword v{GA}, v{PF+7}, {sr(R_WS,4)}, s{T3} offen sc1")

def cs_flag(vm):
    vm.wait("S1")
    flag_store(vm, PF, T4)

def cs_poll_addr():
    a(f"s_lshl_b32 s{T2}, s{S_B}, 3")
    a(f"s_add_u32 s{T2}, s{T2}, s{S_I}")
    a(f"s_lshl_b32 s{T2}, s{T2}, 2")
    a(f"s_add_u32 s{T2}, s{T2}, s{S_LW}")
    a(f"s_lshl_b32 s{T3}, s{T2}, 7")
    a(f"s_add_u32 s{T3}, s{T3}, {WS_FCS}")
    a(f"v_lshl_add_u32 v5, v1, 3, s{T3}")
    a(f"s_lshl_b32 s{T3}, s{S_RB}, 6")
    a(f"s_lshl_b32 s{T0}, s{S_LW}, 4")
    a(f"s_add_u32 s{T3}, s{T3}, s{T0}")
    a(f"s_add_u32 s{T3}, s{T3}, {WS_FST}")
    a("v_and_b32 v4, 1, v1")
    a(f"v_lshl_add_u32 v4, v4, 3, s{T3}")
    a("v_cmp_gt_u32 vcc, 16, v1")
    a(f"s_lshl_b32 s{T2}, s{T2}, 12")
    a(f"s_add_u32 s{T2}, s{T2}, {WS_CS}")
    a(f"v_cndmask_b32 v{PF+6}, v4, v5, vcc")

def cs_gather(vm):
    a("v_lshlrev_b32 v4, 4, v1")
    for q in range(4):
        vm.issue("Cs", f"buffer_load_dwordx4 {vr(GA+4*q,4)}, v4, {sr(R_WS,4)}, s{T2} offen offset:{1024*q} sc1")
    a(f"s_lshl_b32 s{T0}, s{S_RB}, 10")
    a(f"s_lshl_b32 s{T1}, s{S_LW}, 8")
    a(f"s_add_u32 s{T0}, s{T0}, s{T1}")
    a(f"s_add_u32 s{T0}, s{T0}, {WS_ST}")
    a("v_and_b32 v2, 31, v1")
    a("v_lshlrev_b32 v2, 3, v2")
    vm.issue("Cs", f"buffer_load_dwordx2 {vr(PF+12,2)}, v2, {sr(R_WS,4)}, s{T0} offen sc1")

def cs_tables(vm):
    a(f"s_lshl_b32 s{T0}, s{S_LW}, 8")
    a(f"s_add_u32 s{T1}, s{T0}, {L_STAT}")
    a(f"v_add_u32 v2, s{T1}, v2")
    a("v_and_b32 v4, 15, v1")
    a("v_lshlrev_b32 v4, 4, v4")
    a("v_lshrrev_b32 v5, 4, v1")
    a("v_lshl_add_u32 v4, v5, 2, v4")
    a(f"s_add_u32 s{T1}, s{T0}, {L_CS}")
    a(f"v_add_u32 v4, s{T1}, v4")
    vm.wait("Cs")
    a(f"ds_write_b64 v2, {vr(PF+12,2)}")
    for j in range(4): a(f"v_add_f32 v{GA+j}, v{GA+j}, v{GA+4+j}")
    for j in range(4): a(f"v_add_f32 v{GA+8+j}, v{GA+8+j}, v{GA+12+j}")
    for j in range(4): a(f"v_add_f32 v{GA+j}, v{GA+j}, v{GA+8+j}")
    a("s_nop 1")
    a(f"v_permlane32_swap_b32 v{GA}, v{GA+2}")
    a(f"v_permlane32_swap_b32 v{GA+1}, v{GA+3}")
    a(f"v_add_f32 v{GA}, v{GA}, v{GA+2}")
    a(f"v_add_f32 v{GA+1}, v{GA+1}, v{GA+3}")
    a("s_nop 1")
    a(f"v_permlane16_swap_b32 v{GA}, v{GA+1}")
    a(f"v_add_f32 v{GA}, v{GA}, v{GA+1}")
    a(f"ds_write_b32 v4, v{GA}")

def ssm_loads(vm, rnd):
    if rnd == 0:
        a(f"s_lshr_b32 s{T0}, s{S_LW}, 1")
        a(f"s_add_u32 s{S_CH}, s{S_CH}, s{T0}")
        a(f"s_lshl_b32 s{T0}, s{T0}, 12")
        a(f"s_add_u32 s{R_SSM}, s{R_SSM}, s{T0}")
        a(f"s_addc_u32 s{R_SSM+1}, s{R_SSM+1}, 0")
        a(f"s_and_b32 s{T0}, s{S_LW}, 1")
        a(f"s_lshl_b32 s{T0}, s{T0}, 11")
        a(f"v_lshl_add_u32 v{PF+2}, v1, 4, s{T0}")
    for q in range(3):
        vm.issue("H", f"buffer_load_dwordx4 {vr(HL+12*rnd+4*q,4)}, v{PF+2}, {sr(R_SSM,4)}, 0 offen offset:{1024*rnd+4*q} {OPT.nt_s}")

def h_shift(vm):
    vm.wait("H")
    for rnd in range(2):
        L0 = HL + 12 * rnd
        for i in range(4):
            a(f"v_alignbit_b32 v{HS+8*rnd+i}, v{L0+4+i}, v{L0+i}, 16")
            a(f"v_alignbit_b32 v{HS+8*rnd+4+i}, v{L0+8+i}, v{L0+4+i}, 16")

def h_write(parts=(0, 1, 2)):
    a(f"s_lshr_b32 s{T0}, s{S_LW}, 1")
    a(f"s_mul_i32 s{T1}, s{T0}, {HCH}")
    a(f"s_add_u32 s{T1}, s{T1}, {L_HB + 32}")
    a(f"v_add_u32 v4, s{T1}, v{PF+2}")
    for rnd in range(2):
        if rnd not in parts: continue
        L0 = HL + 12 * rnd
        src = [L0, HS + 8 * rnd, L0 + 4, HS + 8 * rnd + 4]
        for e in range(4):
            a(f"ds_write_b128 v4, {vr(src[e],4)} offset:{e*HCOPY+1024*rnd}")
    if 2 not in parts: return
    Z = TP
    for i in range(4): a(f"v_mov_b32 v{Z+i}, 0")
    a(f"s_mul_i32 s{T1}, s{T0}, 4608")
    a(f"s_add_u32 s{T1}, s{T1}, {L_UB + 4096}")
    a("v_and_b32 v5, 31, v1")
    a(f"v_lshl_add_u32 v5, v5, 4, s{T1}")
    a(f"ds_write_b128 v5, {vr(Z,4)}")
    skip = a.newlabel("L_hf")
    a(f"s_bitcmp1_b32 s{S_LW}, 0")
    a(f"s_cbranch_scc1 {skip}")
    Q = Z + 4
    for i in range(12): a(f"v_mov_b32 v{Q+i}, 0")
    a(f"v_lshlrev_b32 v{Q+3}, 16, v{HL}")
    a(f"v_mov_b32 v{Q+7}, v{HL}")
    a(f"v_lshlrev_b32 v{Q+10}, 16, v{HL}")
    a(f"v_mov_b32 v{Q+11}, v{HS}")
    a("v_subrev_u32 v4, 32, v4")
    a("s_mov_b64 exec, 1")
    for e in range(4):
        a(f"ds_write_b128 v4, {vr(Z,4)} offset:{e*HCOPY}")
        a(f"ds_write_b128 v4, {vr(Z if e == 0 else Q+4*(e-1),4)} offset:{e*HCOPY+16}")
    a("s_mov_b64 exec, -1")
    a.label(skip)

UL = 48
def u_loads(vm):
    a(f"s_lshl_b32 s{T0}, s{S_CH}, 12")
    a("v_lshlrev_b32 v4, 4, v1")
    for q in range(4):
        vm.issue("U", f"buffer_load_dwordx4 {vr(UL+4*q,4)}, v4, {sr(R_WS,4)}, s{T0} offen offset:{1024*q} sc1")

def cold_touch(vm):
    if not OPT.touch: return
    a(f"s_mov_b32 s{R_SSM+2}, 8192")
    a(f"s_lshl_b32 s{T0}, s{S_LW}, 11")
    a(f"v_lshlrev_b32 v{VTO}, 7, v1")
    a("s_mov_b64 exec, 0xffff")
    vm.issue("T", f"buffer_load_dword v{VTD}, v{VTO}, {sr(R_SSM,4)}, s{T0} offen")
    a("s_mov_b64 exec, -1")
    a(f"s_mov_b32 s{R_SSM+2}, 4096")
    if OPT.w2warm:
        a(f"s_mul_i32 s{T0}, s2, 7168")
        a(f"s_mul_i32 s{T1}, s{S_LW}, 1792")
        a(f"s_add_u32 s{T0}, s{T0}, s{T1}")
        a("s_mov_b64 exec, 0x3fff")
        vm.issue("T", f"buffer_load_dword v{VTD}, v{VTO}, {sr(R_W2,4)}, s{T0} offen")
        a("s_mov_b64 exec, -1")

def w2_touch(vm):
    if not OPT.w2touch: return
    a(f"v_lshlrev_b32 v{VTO}, 10, v1")
    a(f"s_mul_i32 s{T0}, s{S_LW}, {448*1024}")
    a(f"s_lshl_b32 s{T1}, s{S_I}, 7")
    a(f"s_add_u32 s{T0}, s{T0}, s{T1}")
    a(f"v_add_u32 v{VTO}, s{T0}, v{VTO}")
    a(f"v_lshrrev_b32 v4, 4, v1")
    for rr in range(2):
        a(f"s_add_u32 s{T1}, s{S_ROT}, {4*rr}")
        a(f"v_add_u32 v5, s{T1}, v4")
        a("v_cmp_le_u32 vcc, 28, v5")
        a(f"s_lshl_b32 s{T1}, s{T1}, 14")
        a(f"v_mov_b32 v6, {(-448*1024) & 0xffffffff}")
        a("v_cndmask_b32 v5, 0, v6, vcc")
        a(f"v_add3_u32 v5, v5, v{VTO}, s{T1}")
        if rr: a("s_mov_b32 exec_hi, 0xffff")
        vm.issue("T", f"buffer_load_dword v{VTD}, v5, {sr(R_W2,4)}, 0 offen")
    a("s_mov_b64 exec, -1")

def l_main():
    vm = VM(a)
    a.label("L_lstart")
    a.c("==== L wave: placement-independent start (k/v tile, ssm rows) ====")
    pol = OPT.nt_w
    with capture() as pl:
        if not OPT.p_after: prep_loads(vm)
    k = next((i for i, ln in enumerate(pl) if ln.startswith("buffer_")), 0)
    for ln in pl[:k]: a(ln)
    a(f"s_lshl_b32 s{S_CH}, s{S_XCD}, 5")
    a(f"s_add_u32 s{S_CH}, s{S_CH}, s{S_J}")
    a(f"s_lshl_b32 s{T2}, s{S_CH}, 2")
    a(f"s_lshl_b32 s{S_CH}, s{S_CH}, 1")
    a(f"s_lshl_b32 s{T3}, s{S_CH}, 12")
    a("s_waitcnt lgkmcnt(0)")
    stamp("L", "first_ld")
    for ln in pl[k:]: a(ln)
    a(f"s_load_dword s{S_D}, {sr(S_EX,2)}, s{T2}")
    late_ptrs()
    a(f"s_add_u32 s{R_SSM}, s{R_SSM}, s{T3}")
    a(f"s_addc_u32 s{R_SSM+1}, s{R_SSM+1}, 0")
    if OPT.tlb:
        a("v_and_b32 v4, 1, v1")
        a(f"v_mul_u32_u24 v4, {512*3584 - 128}, v4")
        a("s_mov_b64 exec, 3")
        for r in (R_X, R_W1, R_W3): vm.issue("T", f"buffer_load_dword v{VTD}, v4, {sr(r,4)}, 0 offen")
        a("s_mov_b64 exec, -1")
    cold_touch(vm)
    a("v_lshrrev_b32 v4, 3, v1")
    a(f"s_lshl_b32 s{T1}, s{S_LW}, 3")
    a(f"v_add_u32 v4, s{T1}, v4")
    a("v_lshlrev_b32 v4, 10, v4")
    a("v_lshrrev_b32 v5, 4, v1")
    a(f"s_and_b32 s{T1}, s{S_LW}, 1")
    a(f"s_lshl_b32 s{T1}, s{T1}, 2")
    a(f"v_add_u32 v6, s{T1}, v5")
    a("v_and_b32 v7, 7, v1")
    a("v_xor_b32 v6, v6, v7")
    a(f"v_lshl_add_u32 v{VXO}, v6, 4, v4")
    for ii in range(1, 4): a(f"v_add_u32 v{VXO+ii}, {32768*ii}, v{VXO}")
    a(f"s_lshl_b32 s{T1}, s{S_LW}, 2")
    a(f"v_add_u32 v4, s{T1}, v5")
    a("v_mul_u32_u24 v4, 3584, v4")
    a("v_lshlrev_b32 v6, 2, v5")
    a("v_and_b32 v7, 15, v1")
    a("v_xor_b32 v6, v6, v7")
    a(f"v_lshl_add_u32 v{VWO}, v6, 4, v4")
    for ii in range(1, 4): a(f"v_add_u32 v{VWO+ii}, {16*3584*ii}, v{VWO}")
    a(f"s_mul_i32 s{T5}, s{S_LW}, 12288")
    barrier()
    decode(4)
    a(f"s_cmp_eq_u32 s{S_I}, 7")
    a("s_cbranch_scc1 L_lspare")
    a(f"s_lshl_b32 s{S_XB}, s{S_RB}, 17")
    a(f"s_lshl_b32 s{S_WB}, s{S_CB}, 8")
    a(f"s_and_b32 s{S_R1}, s{S_VX}, 6")
    a(f"s_lshl_b32 s{T0}, s{S_B}, 2")
    a(f"s_add_u32 s{S_R1}, s{S_R1}, s{T0}")
    if OPT.pairswap:
        a(f"s_add_u32 s{S_G}, s{S_RB}, s{S_I}")
        a(f"s_and_b32 s{S_G}, s{S_G}, 1")
    spare_q = list(vm.q)
    def chunk(c, fill=()):
        fill = list(fill)
        per = -(-len(fill) // 12)
        sl = (c % 3) * SLOT
        if OPT.pairswap:
            a(f"s_xor_b32 s{S_OX}, s{S_G}, {c}")
            a(f"s_add_u32 s{S_OX}, s{S_R1}, s{S_OX}")
        else:
            a(f"s_add_u32 s{S_OX}, s{S_R1}, {c}")
        a(f"s_and_b32 s{S_OX}, s{S_OX}, 7")
        a(f"s_mul_i32 s{S_OW}, s{S_OX}, {64*3584}")
        a(f"s_lshl_b32 s{S_OX}, s{S_OX}, 7")
        a(f"s_add_u32 s{S_OX}, s{S_OX}, s{S_XB}")
        a(f"s_add_u32 s{S_OW}, s{S_OW}, s{S_WB}")
        for ii in range(4):
            for part, (voff, rs, so) in enumerate(((VXO, R_X, S_OX), (VWO, R_W1, S_OW), (VWO, R_W3, S_OW))):
                a(f"s_add_u32 m0, s{S_LW1K}, {sl + part*16384 + ii*4096}")
                a("s_nop 0")
                vm.issue(f"c{c}", f"buffer_load_dwordx4 v{voff+ii}, {sr(rs,4)}, s{so} offen {pol} lds")
                for ln in fill[:per]: a(ln)
                fill = fill[per:]
    def B(c):
        barrier(); stamp("L", f"B{c}")
    if OPT.lprio: a(f"s_setprio {OPT.lprio}")
    stamp("L", "first_dma")
    chunk(0)
    stamp("L", "s_c0iss")
    if not OPT.p_after:
        vm.wait("P")
        stamp("L", "s_P")
        prep_compute(pk=True)
        stamp("L", "s_prep")
    chunk(1)
    stamp("L", "s_c1iss")
    decode2(); w2_setup()
    vm.wait("c0", "lgkmcnt(0)"); stamp("L", "c0"); B(-1)
    if not OPT.p_after: prep_store(vm)
    vm.issue("N", nonce_issue(PF + 4))
    chunk(2)
    if OPT.p_after: prep_loads(vm)
    vm.wait("c1"); B(0)
    cs_read()
    a("s_waitcnt lgkmcnt(0)")
    with capture() as pc: cs_sum()
    chunk(3, pc)
    vm.wait("c2")
    nonce_check(PF + 4)
    a(f"v_mov_b32 v4, {L_NONCE}")
    a(f"ds_write_b64 v4, {vr(PF+4,2)}")
    a("s_waitcnt lgkmcnt(0)"); B(1)
    if not OPT.p_after:
        fu_flag(vm); stamp("L", "fu_flag")
    cs_publish(vm)
    pc = []
    if OPT.p_after:
        vm.wait("P")
        with capture() as pc: prep_compute()
    half = len(pc) // 2
    chunk(4, pc[:half])
    vm.wait("c3"); B(2)
    chunk(5, pc[half:])
    vm.wait("c4", "lgkmcnt(0)"); cs_flag(vm); B(3)
    if OPT.p_after: prep_store(vm)
    chunk(6)
    ssm_loads(vm, 0); ssm_loads(vm, 1)
    cs_poll_addr()
    vm.wait("S" if OPT.p_after else "c5"); B(4)
    if OPT.p_after: fu_flag(vm)
    chunk(7)
    poll_issue(vm, PF + 8, PF + 6, "P2")
    fu_addr()
    spoll_issue(S_PB, T4, 32)
    h_shift(vm)
    B(5)
    poll_check(vm, PF + 8, PF + 6, "P2")
    stamp("L", "m_csseen")
    cs_gather(vm)
    a("s_waitcnt lgkmcnt(0)")
    spoll_test(S_PB, 32, 1)
    a(f"s_cselect_b32 s{T3}, 1, 0")
    a("s_cbranch_scc1 L_ulate")
    u_loads(VM(a))
    a.label("L_ulate")
    h_write((0,))
    vm.wait("c7"); B(6); stamp("L", "m_b6")
    a(f"s_mov_b32 s{S_KW}, s{S_ROT}")
    cs_tables(vm)
    h_write((1,))
    if OPT.ring_early:
        for s in range(6): w2_kstep(vm, s, "w0")
    a("s_waitcnt lgkmcnt(0)")
    stamp("L", "pre_b7")
    B(7)
    for s in range(6 if OPT.ring_early else 0, 12): w2_kstep(vm, s, "w0")
    stamp("L", "m_w2iss")
    h_write((2,))
    a("v_lshlrev_b32 v4, 4, v1")
    a(f"s_cmp_eq_u32 s{T3}, 0")
    a("s_cbranch_scc1 L_conv")
    spoll(S_PB, T4, 32, 1)
    u_loads(VM(a))
    a("s_waitcnt vmcnt(0)")
    a("s_branch L_conv")
    return spare_q

def spare(spare_q):
    vm = VM(a)
    stamp_on[0] = False
    a.label("L_cspare")
    a.c("==== spare work-group, C waves ====")
    XS, SU = 32, 16
    a("v_lshrrev_b32 v4, 3, v1")
    a(f"s_lshl_b32 s{T1}, s{S_TB}, 6")
    a(f"s_lshl_b32 s{T0}, s{S_WAVE}, 4")
    a(f"s_add_u32 s{T1}, s{T1}, s{T0}")
    a(f"v_add_u32 v5, s{T1}, v4")
    a("v_lshlrev_b32 v5, 10, v5")
    a("v_and_b32 v6, 7, v1")
    a("v_lshl_add_u32 v7, v6, 4, v5")
    a(f"s_mov_b32 s{T2}, 8192")
    for g in range(2):
        for kc in range(8):
            vm.issue(f"xs{g}", f"buffer_load_dwordx4 {vr(XS+32*g+4*kc,4)}, v7, {sr(R_X,4)}, {'s%d' % T2 if g else '0'} offen offset:{128*kc}")
    vm.issue("N", nonce_issue(12))
    a(f"s_mov_b32 s{S_ONES}, 0x3f803f80")
    a(f"s_lshl_b32 s{T2}, s{S_B}, 9")
    a(f"s_lshl_b32 s{T0}, s{T0}, 3")
    a(f"s_add_u32 s{T2}, s{T2}, s{T0}")
    a(f"s_add_u32 s{T2}, s{T2}, {L_STAT}")
    a("v_lshlrev_b32 v9, 3, v4")
    a(f"v_add_u32 v8, s{T2}, v9")
    a(f"s_lshl_b32 s{T1}, s{T1}, 3")
    a(f"s_add_u32 s{T1}, s{T1}, {WS_ST}")
    a(f"s_mov_b32 s{S_EX}, 0x01010101")
    a(f"s_mov_b32 s{S_EX+1}, 0x01010101")
    for g in range(2):
        for i in range(4): a(f"v_mov_b32 v{SU+i}, 0")
        vm.wait(f"xs{g}")
        for i in range(32):
            a(f"v_dot2c_f32_bf16 v{SU+(i&1)}, s{S_ONES}, v{XS+32*g+i}")
            a(f"v_dot2c_f32_bf16 v{SU+2+(i&1)}, v{XS+32*g+i}, v{XS+32*g+i}")
        a("s_nop 2")
        a(f"v_add_f32 v{SU}, v{SU}, v{SU+1}")
        a(f"v_add_f32 v{SU+2}, v{SU+2}, v{SU+3}")
        for dpp in ("quad_perm:[1,0,3,2]", "quad_perm:[2,3,0,1]", "row_half_mirror"):
            a("s_nop 0")
            a(f"v_add_f32_dpp v{SU}, v{SU}, v{SU} {dpp} row_mask:0xf bank_mask:0xf")
            a("s_nop 0")
            a(f"v_add_f32_dpp v{SU+2}, v{SU+2}, v{SU+2} {dpp} row_mask:0xf bank_mask:0xf")
        M = 20 + 2 * g
        a(f"v_mul_f32 v{M}, 0x3b000000, v{SU}")
        a(f"v_mul_f32 v6, 0x3b000000, v{SU+2}")
        a(f"v_fma_f32 v6, -v{M}, v{M}, v6")
        a("v_max_f32 v6, 0, v6")
        a("v_add_f32 v6, 0x3727c5ac, v6")
        a(f"v_rsq_f32 v{M+1}, v6")
        a(f"s_mov_b64 exec, {sr(S_EX,2)}")
        a(f"ds_write_b64 v8, {vr(M,2)} offset:{64*g}")
        vm.issue("st", f"buffer_store_dwordx2 {vr(M,2)}, v9, {sr(R_WS,4)}, s{T1} offen offset:{64*g} sc1")
        a("s_mov_b64 exec, -1")
    a(f"s_lshl_b32 s{T0}, s{S_TB}, 2")
    a(f"s_add_u32 s{T0}, s{T0}, s{S_WAVE}")
    a(f"s_lshl_b32 s{T0}, s{T0}, 3")
    a(f"s_add_u32 s{T0}, s{T0}, {WS_FST}")
    vm.waitall("lgkmcnt(0)")
    nonce_check(12)
    lds_add(L_SP3, 4, 5)
    flag_store(vm, 14, T0)
    lds_wait(L_SP3, 4, 4, 5)
    if OPT.sp_w2:
        if OPT.sp_delay: lds_wait(L_SP2, 4, 4, 5)
        a(f"s_and_b32 s{T0}, s{S_RB}, 3")
        a(f"s_mul_i32 s{T0}, s{T0}, {448*1024}")
        a("v_lshlrev_b32 v4, 7, v1")
        a(f"v_add_u32 v4, s{T0}, v4")
        a(f"s_mul_i32 s{T1}, s{S_VX}, 7")
        a(f"s_add_u32 s{T1}, s{T1}, s{S_WAVE}")
        a(f"s_mov_b32 s{T2}, 14")
        a.label("L_spw2")
        a(f"s_cmp_ge_u32 s{T1}, 56")
        a(f"s_cselect_b32 s{T0}, 56, 0")
        a(f"s_sub_u32 s{T1}, s{T1}, s{T0}")
        a(f"s_lshl_b32 s{T0}, s{T1}, 13")
        a(f"buffer_load_dword v25, v4, {sr(R_W2,4)}, s{T0} offen")
        a(f"s_add_u32 s{T1}, s{T1}, 4")
        a(f"s_sub_u32 s{T2}, s{T2}, 1")
        a(f"s_cmp_lg_u32 s{T2}, 0")
        a("s_cbranch_scc1 L_spw2")
    a("s_branch L_cE")
    a.label("L_lspare")
    vm = VM(a); vm.q = list(spare_q)
    decode2(); w2_setup()
    if OPT.p_after: prep_loads(vm)
    vm.issue("N", nonce_issue(PF + 4))
    ssm_loads(vm, 0); ssm_loads(vm, 1)
    vm.wait("P")
    prep_compute(pk=True)
    a("s_waitcnt lgkmcnt(0)")
    lds_add(L_SP1, 4, 5); lds_wait(L_SP1, 4, 4, 5)
    prep_store(vm)
    h_shift(vm); h_write()
    vm.wait("N"); nonce_check(PF + 4)
    vm.wait("S")
    lds_add(L_SP2, 4, 5); lds_wait(L_SP2, 4, 4, 5)
    fu_flag(vm)
    a(f"s_mov_b32 s{S_KW}, s{S_ROT}")
    for s in range(12): w2_kstep(vm, s, "w0")
    fu_addr()
    spoll(S_PB, T4, 32, 1, sleep=16)
    u_loads(vm)
    vm.waitall()
    stamp_on[0] = True

def l_conv():
    vm = VM(a)
    a.label("L_conv")
    a.c("==== L wave: long convolution ====")
    CA, CB, YA = 10, 11, 12
    FA = [64, 128]; FB = [96, 160]; ACC = 192
    a(f"s_lshr_b32 s{T0}, s{S_LW}, 1")
    a(f"s_mul_i32 s{T1}, s{T0}, 4608")
    a(f"s_add_u32 s{T1}, s{T1}, {L_UB}")
    a(f"v_add_u32 v14, s{T1}, v4")
    a("v_and_b32 v5, 15, v1")
    a("v_lshrrev_b32 v6, 4, v1")
    a("v_lshlrev_b32 v7, 1, v5")
    a("v_sub_u32 v7, v6, v7")
    a("v_add_u32 v7, 30, v7")
    a(f"v_lshl_add_u32 v{CB}, v7, 4, s{T1}")
    a("v_lshlrev_b32 v7, 2, v5")
    a("v_add_u32 v7, v7, v6")
    a("v_lshlrev_b32 v13, 3, v7")
    a(f"s_and_b32 s{T2}, s{S_LW}, 1")
    a(f"s_lshl_b32 s{T4}, s{T2}, 11")
    a(f"s_sub_u32 s{T1}, s{T1}, s{T4}")
    a(f"s_add_u32 s{T1}, s{T1}, {504 + 2048}")
    a(f"v_sub_u32 v{YA}, s{T1}, v13")
    a("v_add_u32 v5, 1, v5")
    a("v_and_b32 v7, 3, v5")
    a("v_sub_u32 v5, v5, v7")
    a("v_lshl_add_u32 v5, v6, 3, v5")
    a("v_lshlrev_b32 v5, 1, v5")
    a(f"v_mul_u32_u24 v7, {HCOPY}, v7")
    a(f"s_mul_i32 s{T1}, s{T0}, {HCH}")
    a(f"s_lshl_b32 s{T4}, s{T2}, 8")
    a(f"s_add_u32 s{T1}, s{T1}, s{T4}")
    a(f"s_add_u32 s{T1}, s{T1}, {L_HB}")
    a(f"v_add3_u32 v{CA}, v5, v7, s{T1}")
    a(f"v_add_u32 v{CB}, s{T4}, v{CB}")
    for r in range(ACC, ACC + 32): a(f"v_mov_b32 v{r}, 0")
    a(f"s_lshl_b32 s{T3}, s{S_LW}, 2")
    a(f"s_add_u32 s{T3}, s{T3}, {L_RING}")
    a("s_waitcnt vmcnt(24)")
    for q in range(4):
        a(f"ds_write_b128 v14, {vr(UL+4*q,4)} offset:{1024*q}")
    a("s_waitcnt lgkmcnt(0)")
    lds_add(L_ECNT, 4, 5)
    a("s_waitcnt vmcnt(0)")
    lds_add((T3,), 4, 5)
    stamp("L", "pre_E")
    lds_wait(L_ECNT, 8, 4, 5)
    stamp("L", "m_go")
    if OPT.cprio: a(f"s_setprio {OPT.cprio}")
    a(f"s_mov_b32 s{T2}, 0")
    def reads(b, extra):
        R = []
        for k in range(8):
            R.append(f"ds_read_b64 {vr(FA[b]+4*k,2)}, v{CA} offset:{512*k+extra}")
            R.append(f"ds_read_b64 {vr(FA[b]+4*k+2,2)}, v{CA} offset:{512*k+8+extra}")
            R.append(f"ds_read_b128 {vr(FB[b]+4*k,4)}, v{CB} offset:{512*(7-k)+extra}")
        return R
    for r in reads(0, 0): a(r)
    a(".p2align 3")
    a.label("L_conv_loop")
    for b in range(2):
        nxt = reads(b ^ 1, 64 * (b + 1))
        a("s_waitcnt lgkmcnt(0)")
        mf = [(n, s1) for s1 in range(8) for n in range(s1, 8)]
        for idx, (n, s1) in enumerate(mf):
            d = vr(ACC + 4 * n, 4)
            a(f"v_mfma_f32_16x16x32_bf16 {d}, {vr(FA[b]+4*s1,4)}, {vr(FB[b]+4*(n-s1),4)}, {d}")
            if idx < len(nxt): a(nxt[idx])
            if b == 1 and idx == len(mf) - 3:
                a(f"v_add_u32 v{CA}, 128, v{CA}")
                a(f"v_add_u32 v{CB}, 128, v{CB}")
                a(f"s_add_u32 s{T2}, s{T2}, 1")
                a(f"s_cmp_lt_u32 s{T2}, 2")
    a("s_cbranch_scc1 L_conv_loop")
    stamp("L", "conv_end")
    a(f"s_lshl_b32 s{T0}, s{S_LW}, 12")
    a(f"s_add_u32 s{T0}, s{T0}, {L_XCH}")
    a(f"v_lshl_add_u32 v14, v1, 4, s{T0}")
    a(f"s_xor_b32 s{T1}, s{S_LW}, 1")
    a(f"s_lshl_b32 s{T1}, s{T1}, 12")
    a(f"s_add_u32 s{T1}, s{T1}, {L_XCH}")
    a(f"v_lshl_add_u32 v15, v1, 4, s{T1}")
    a(f"v_add_u32 v13, s{T1}, v13")
    a(f"s_lshr_b32 s{T4}, s{S_LW}, 1")
    a(f"s_lshl_b32 s{T4}, s{T4}, 2")
    a(f"s_add_u32 s{T4}, s{T4}, {L_PAIR}")
    a(f"s_bitcmp1_b32 s{S_LW}, 0")
    a("s_waitcnt lgkmcnt(0)")
    a("s_cbranch_scc1 L_xch1")
    for ti in range(4): a(f"ds_write_b128 v14, {vr(ACC+16+4*ti,4)} offset:{1024*ti}")
    a("s_branch L_xch2")
    a.label("L_xch1")
    for ti in range(4): a(f"ds_write_b128 v14, {vr(ACC+4*ti,4)} offset:{1024*ti}")
    a("s_nop 1")
    for r in range(16): a(f"v_mov_b32 v{ACC+r}, v{ACC+16+r}")
    a.label("L_xch2")
    for ti in range(4):
        a(f"ds_read_b64 {vr(32+2*ti,2)}, v{YA} offset:{512*(3-ti)}")
    a(f"s_bitcmp1_b32 s{S_CH}, 0")
    a(f"s_cselect_b32 s{T3}, 0, 16")
    a(f"s_lshl_b32 s{T3}, s{S_D}, s{T3}")
    a(f"s_and_b32 s{T3}, s{T3}, 0xffff0000")
    a("s_waitcnt lgkmcnt(0)")
    lds_add((T4,), 4, 5)
    for ti in range(4):
        u = 32 + 2 * ti; t = 40 + 4 * ti; y = ACC + 4 * ti
        a(f"v_and_b32 v{t}, 0xffff0000, v{u+1}")
        a(f"v_lshlrev_b32 v{t+1}, 16, v{u+1}")
        a(f"v_and_b32 v{t+2}, 0xffff0000, v{u}")
        a(f"v_lshlrev_b32 v{t+3}, 16, v{u}")
        for r in range(4): a(f"v_fmac_f32 v{y+r}, s{T3}, v{t+r}")
    lds_wait((T4,), 2, 4, 5)
    stamp("L", "m_xch")
    for ti in range(4): a(f"ds_read_b128 {vr(40+4*ti,4)}, v15 offset:{1024*ti}")
    a(f"s_and_b32 s{T1}, s{S_LW}, 1")
    a(f"s_lshl_b32 s{T1}, s{T1}, 11")
    a(f"s_lshl_b32 s{T0}, s{S_CH}, 12")
    a(f"s_add_u32 s{T0}, s{T0}, s{T1}")
    a(f"s_add_u32 s{T0}, s{T0}, {WS_Y}")
    a("v_lshlrev_b32 v5, 4, v1")
    a("s_waitcnt lgkmcnt(0)")
    for ti in range(4):
        u = 32 + 2 * ti; t = 40 + 4 * ti; y = ACC + 4 * ti
        for r in range(4): a(f"v_add_f32 v{y+r}, v{y+r}, v{t+r}")
        a(f"v_cvt_pk_bf16_f32 v{u}, v{y}, v{y+1}")
        a(f"v_cvt_pk_bf16_f32 v{u+1}, v{y+2}, v{y+3}")
        a(f"ds_write_b64 v13, {vr(u,2)} offset:{512*ti}")
    a("s_waitcnt lgkmcnt(0)")
    a("ds_read_b128 v[40:43], v15")
    a("ds_read_b128 v[44:47], v15 offset:1024")
    a("s_waitcnt lgkmcnt(0)")
    a(f"buffer_store_dwordx4 v[40:43], v5, {sr(R_WS,4)}, s{T0} offen sc1")
    a(f"buffer_store_dwordx4 v[44:47], v5, {sr(R_WS,4)}, s{T0} offen offset:1024 sc1")
    if OPT.cprio: a("s_setprio 0")
    stamp("L", "m_yst")
    a(f"s_lshl_b32 s{T0}, s{S_XCD}, 10")
    a(f"s_lshl_b32 s{T2}, s{S_J}, 2")
    a(f"s_add_u32 s{T0}, s{T0}, s{T2}")
    a(f"s_add_u32 s{T0}, s{T0}, {WS_FY}")
    a("v_lshlrev_b32 v17, 7, v1")
    a(f"v_mov_b32 v16, s{S_NONCE}")
    a(f"v_mov_b32 v18, {L_YCNT}")
    a("v_mov_b32 v19, 1")
    vm.waitall()
    a("s_mov_b64 exec, 1")
    a("ds_add_rtn_u32 v19, v18, v19")
    a("s_waitcnt lgkmcnt(0)")
    a(f"v_readfirstlane_b32 s{T2}, v19")
    a("s_mov_b64 exec, 0xff")
    a(f"s_cmp_lg_u32 s{T2}, 3")
    a("s_cbranch_scc1 L_ynopub")
    a(f"buffer_store_dword v16, v17, {sr(R_WS,4)}, s{T0} offen sc1")
    a.label("L_ynopub")
    a("s_mov_b64 exec, -1")
    stamp("L", "y_flag")
    final_x_load(vm)
    a(f"s_lshl_b32 s{T4}, s{S_I}, 3")
    a(f"s_add_u32 s{T4}, s{T4}, s{S_VX}")
    a(f"s_lshl_b32 s{T4}, s{T4}, 7")
    a(f"s_add_u32 s{T4}, s{T4}, {WS_FY}")
    a("v_lshrrev_b32 v4, 3, v1")
    a("v_lshlrev_b32 v4, 12, v4")
    a("v_and_b32 v5, 7, v1")
    a("v_lshl_add_u32 v4, v5, 4, v4")
    a(f"s_lshl_b32 s{T2}, s{S_I}, 18")
    a(f"s_lshl_b32 s{T3}, s{S_LW}, 16")
    a(f"s_add_u32 s{T2}, s{T2}, s{T3}")
    a(f"s_lshl_b32 s{T3}, s{S_TB}, 7")
    a(f"s_add_u32 s{T2}, s{T2}, s{T3}")
    a(f"s_add_u32 s{T2}, s{T2}, {WS_Y}")
    a(f"s_add_u32 s{T3}, s{T2}, 32768")
    a(f"s_cmp_lg_u32 s{S_LW}, 0")
    a("s_cbranch_scc1 L_ywait")
    spoll(S_PB, T4, 32, 1)
    lds_wait(L_YCNT, 4, 6, 7)
    lds_add(L_YOK, 6, 7)
    a.label("L_ywait")
    lds_wait(L_YOK, 1, 6, 7)
    stamp("L", "y_seen")
    vm.issue("Y", f"buffer_load_dwordx4 v[40:43], v4, {sr(R_WS,4)}, s{T2} offen sc1")
    vm.issue("Y", f"buffer_load_dwordx4 v[44:47], v4, {sr(R_WS,4)}, s{T3} offen sc1")
    a("v_bfe_u32 v4, v1, 2, 2")
    a("v_lshlrev_b32 v4, 7, v4")
    a("v_lshrrev_b32 v5, 4, v1")
    a("v_lshl_add_u32 v4, v5, 5, v4")
    a("v_and_b32 v5, 3, v1")
    a("v_lshl_add_u32 v4, v5, 3, v4")
    a(f"s_lshl_b32 s{T0}, s{S_LW}, 11")
    a(f"s_add_u32 s{T0}, s{T0}, {L_YS}")
    a(f"v_add_u32 v4, s{T0}, v4")
    a("v_mul_u32_u24 v5, 144, v1")
    a(f"s_lshl_b32 s{T0}, s{S_LW}, 5")
    a(f"s_add_u32 s{T0}, s{T0}, {L_YT}")
    a(f"v_add_u32 v5, s{T0}, v5")
    a(f"s_lshl_b32 s{T0}, s{S_LW}, 11")
    a(f"s_add_u32 s{T0}, s{T0}, {L_YS}")
    a(f"v_lshl_add_u32 v14, v1, 4, s{T0}")
    vm.waitall()
    a("ds_write_b128 v14, v[40:43]")
    a("ds_write_b128 v14, v[44:47] offset:1024")
    a("s_waitcnt lgkmcnt(0)")
    for dd in range(4):
        a(f"ds_read_b64_tr_b16 {vr(48+2*dd,2)}, v4 offset:{512*dd}")
    a("s_waitcnt lgkmcnt(0)")
    a("ds_write_b128 v5, v[48:51]")
    a("ds_write_b128 v5, v[52:55] offset:16")
    stamp("L", "pre_final")

def build():
    prologue()
    c_start()
    c_g1()
    c_g2()
    q = l_main()
    spare(q)
    l_conv()
    final()
    a.label("L_code_end")
    hdr = open("recurrent_scan__ssm_conv_h3__glu_gated_swiglu__prompt.s.ref").read().split("; Override launch")[0]
    return f"""{hdr}; Generated by gen/gen.py (hand-written generator; one fused persistent kernel).
; @launch grid=(256,1,1) block=(512,1,1) lds={LDS_BYTES}
.amdgcn_target "amdgcn-amd-amdhsa--gfx950"
.text
.globl {NAME}
.p2align 8
.type {NAME},@function
{NAME}:
{a.text()}
.section .rodata,"a"
.p2align 6
.amdhsa_kernel {NAME}
  .amdhsa_next_free_vgpr 256
  .amdhsa_next_free_sgpr 102
  .amdhsa_accum_offset 256
  .amdhsa_group_segment_fixed_size 0
  .amdhsa_kernarg_size 104
  .amdhsa_user_sgpr_count 2
  .amdhsa_user_sgpr_kernarg_segment_ptr 1
  .amdhsa_system_sgpr_workgroup_id_x 1
  .amdhsa_float_denorm_mode_32 3
.end_amdhsa_kernel
"""

if __name__ == "__main__":
    out = sys.argv[1]
    for kv in sys.argv[2:]:
        k, v = kv.split("=")
        cur = getattr(OPT, k)
        setattr(OPT, k, type(cur)(int(v)) if isinstance(cur, (bool, int)) else v)
    s = build()
    open(out, "w").write(s)
    if OPT.prof:
        import json
        json.dump(nstamp, open(out + ".stamps.json", "w"))
```

```python
import sys
from asmlib import Asm, VM, vr, sr

NAME = "recurrent_scan__ssm_conv_h3__glu_gated_swiglu__prompt_kernel"

class Opt:
    prof = False
    x_bst = False
    nt_k = ""
    nt_v = ""
    nt_s = ""
    nt_w = ""
    code_pf = True
    prio = False
    cprio = 2
    gprio = 3
    x_st = False
    p_after = False
    tlb = False
    tlb2 = 0
    x_delay = 0
    x_delay_end = 0
    pairswap = False
    sp_delay = True
    w2warm = False
    w2t_at = 4
    lprio = 0
    late_st = False
    kvtouch = False
    touch = True
    touch_at = 2
    w2touch = False
    ring_early = False
    sp_w2 = True
    rot1 = 8
    rot2 = 2
    ticket = True
    x_g2st = False
    x_hmode = 0
    x_hst = "sc1"
    x_mid = False
    h_ld = "sc1"
    nbk = 6
OPT = Opt()

WS_UT = 0
WS_Y = 2 << 20
WS_H = 4 << 20
WS_CS = 12 << 20
WS_ST = WS_CS + (256 << 10)
WS_FU = WS_ST + (16 << 10)
WS_FCS = WS_FU + (16 << 10)
WS_FST = WS_FCS + (16 << 10)
WS_FH = WS_FST + (16 << 10)
WS_FY = WS_FH + (16 << 10)
WS_TK = WS_FY + (16 << 10)
WS_PROF = 13 << 20
WS_SIZE = 16 << 20

SLOT = 49152
L_HB = 98304
HCOPY = 4160
HCH = 4 * HCOPY
L_UB = L_HB + 2 * HCH
L_YT = L_UB + 2 * 4608
L_XCH = L_YT
L_YS = L_HB
L_SCR = 147456
L_CSP = L_SCR + 8320
L_TAPS = L_CSP + 4096
L_STAT = L_TAPS + 1024
L_CS = L_STAT + 1024
L_NONCE = L_CS + 1024
L_YCNT = L_NONCE + 8
L_ECNT = L_NONCE + 12
L_RING = L_NONCE + 16
L_PAIR = L_NONCE + 32
L_YOK = L_NONCE + 40
L_SP1 = L_NONCE + 44
L_SP2 = L_NONCE + 48
L_SP3 = L_NONCE + 52
L_VID = L_NONCE + 56
L_STP = L_NONCE + 64
LDS_BYTES = 163840
assert L_XCH + 16384 <= L_TAPS and L_STP + 64 <= LDS_BYTES

S_WAVE, S_XCD, S_J, S_RB, S_I = 3, 4, 5, 6, 7
STAMP0 = 8
NSTAMP = 10
S_ROT, S_SPIN = 32, 33
S_B, S_CB = 34, 35
R_X, R_WS, R_OUT, R_W1, R_W3, R_K, R_V, R_SH, R_SSM, R_DBG, R_WT, R_W2 = 36, 40, 44, 48, 52, 56, 60, 64, 68, 72, 76, 28
S_PB = 48
S_PC = 56
S_TB, S_LW = 80, 81
S_NONCE = 82
S_D = 84
T0, T1, T2, T3, T4, T5 = 85, 86, 87, 88, 89, 90
S_LW1K = 91
S_OX, S_OW = 92, 93
S_CH = 94
S_ONES = 95
S_R1 = 95
S_VX, S_VJ = 0, 1
S_XB, S_WB = 77, 78
S_G = 76
S_EX = 96
S_ST0 = 98
S_RT0 = 100
SPIN_MAX = 0x40000
NLOG2E = 0xbfb8aa3b
NLN2 = 0xbf317218

a = Asm()
nstamp = {}

class capture:
    def __enter__(self):
        self.saved = a.L; a.L = []; return a.L
    def __exit__(self, *e):
        a.L = self.saved

stamp_on = [True]
def stamp(role, name):
    if not OPT.prof or not stamp_on[0]: return
    if role == "L" and OPT.x_bst != name.startswith("B"): return
    if role == "L" and name.startswith("s_") and not OPT.x_st: return
    if role == "L" and OPT.x_st and not name.startswith(("s_", "first", "c0", "fu_")): return
    if role == "L" and name.startswith("m_") and not OPT.x_mid: return
    if role == "L" and OPT.x_mid and name in ("first_ld", "first_dma", "c0", "fu_flag", "m_csseen", "m_b6", "m_w2iss", "m_useen"): return
    if role == "C" and OPT.x_g2st and not name.startswith(("k", "h_", "g2", "E")): return
    if role == "C" and not OPT.x_g2st and name.startswith("k"): return
    k = nstamp.setdefault(role, [])
    idx = len(k)
    assert idx < NSTAMP, "too many stamps"
    k.append(name)
    a(f"s_memtime {sr(STAMP0 + 2 * idx, 2)}")

def barrier():
    a("s_barrier")

def read_nonce(vtmp):
    a(f"v_mov_b32 v{vtmp+2}, {L_NONCE}")
    a(f"ds_read_b64 {vr(vtmp,2)}, v{vtmp+2}")
    a("s_waitcnt lgkmcnt(0)")
    a(f"v_readfirstlane_b32 s{S_NONCE}, v{vtmp}")
    a(f"v_readfirstlane_b32 s{S_NONCE+1}, v{vtmp+1}")

def flag_store(vm, vtmp, s_off, tag="flag"):
    a(f"v_mov_b32 v{vtmp}, s{S_NONCE}")
    a(f"v_mov_b32 v{vtmp+1}, s{S_NONCE+1}")
    a("s_mov_b64 exec, 1")
    vm.issue(tag, f"buffer_store_dwordx2 {vr(vtmp,2)}, off, {sr(R_WS,4)}, s{s_off} sc1")
    a("s_mov_b64 exec, -1")

def poll_issue(vm, vdst, voff, tag):
    vm.issue(tag, f"buffer_load_dwordx2 {vr(vdst,2)}, v{voff}, {sr(R_WS,4)}, 0 offen sc1")

def poll_check(vm, vdst, voff, tag, sleep=2):
    ok = a.newlabel("L_pok"); again = a.newlabel("L_pagain")
    vm.wait(tag)
    a(f"v_cmp_ne_u64 vcc, {sr(S_NONCE,2)}, {vr(vdst,2)}")
    a(f"s_cbranch_vccz {ok}")
    a(f"s_mov_b32 s{S_SPIN}, {SPIN_MAX}")
    a.label(again)
    a(f"s_sub_u32 s{S_SPIN}, s{S_SPIN}, 1")
    a(f"s_cbranch_scc1 {ok}")
    a(f"s_sleep {sleep}")
    a(f"buffer_load_dwordx2 {vr(vdst,2)}, v{voff}, {sr(R_WS,4)}, 0 offen sc1")
    a("s_waitcnt vmcnt(0)")
    a(f"v_cmp_ne_u64 vcc, {sr(S_NONCE,2)}, {vr(vdst,2)}")
    a(f"s_cbranch_vccnz {again}")
    a.label(ok)

def spoll_issue(pb, s_off, nd):
    a(f"s_load_dwordx16 {sr(pb,16)}, {sr(R_WS,2)}, s{s_off} glc")
    if nd > 16:
        a(f"s_add_u32 s{T0}, s{s_off}, 64")
        a(f"s_load_dwordx16 {sr(pb+16,16)}, {sr(R_WS,2)}, s{T0} glc")

def spoll_test(pb, nd, words):
    ref = S_NONCE if words == 2 else S_EX
    for p in range(nd // 2):
        a(f"s_xor_b64 {sr(pb+2*p,2)}, {sr(pb+2*p,2)}, {sr(ref,2)}")
        if p: a(f"s_or_b64 {sr(pb,2)}, {sr(pb,2)}, {sr(pb+2*p,2)}")

def spoll(pb, s_off, n, words, sleep=4):
    ok = a.newlabel("L_sok"); again = a.newlabel("L_sagain")
    nd = n * words
    a(f"s_mov_b32 s{S_SPIN}, {SPIN_MAX}")
    a.label(again)
    spoll_issue(pb, s_off, nd)
    a(f"s_sub_u32 s{S_SPIN}, s{S_SPIN}, 1")
    a(f"s_cbranch_scc1 {ok}")
    a("s_waitcnt lgkmcnt(0)")
    spoll_test(pb, nd, words)
    a(f"s_cbranch_scc0 {ok}")
    a(f"s_sleep {sleep}")
    a(f"s_branch {again}")
    a.label(ok)

def lds_add(addr, v0_, v1_):
    a(f"v_mov_b32 v{v0_}, {addr}" if isinstance(addr, int) else f"v_mov_b32 v{v0_}, s{addr[0]}")
    a(f"v_mov_b32 v{v1_}, 1")
    a("s_mov_b64 exec, 1")
    a(f"ds_add_u32 v{v0_}, v{v1_}")
    a("s_mov_b64 exec, -1")

def lds_wait(addr, val, v0_, v1_):
    ok = a.newlabel("L_lok"); again = a.newlabel("L_lagain")
    a(f"v_mov_b32 v{v0_}, {addr}" if isinstance(addr, int) else f"v_mov_b32 v{v0_}, s{addr[0]}")
    a.label(again)
    a(f"ds_read_b32 v{v1_}, v{v0_}")
    a("s_waitcnt lgkmcnt(0)")
    a(f"v_cmp_eq_u32 vcc, {val}, v{v1_}")
    a(f"s_cbranch_vccnz {ok}")
    a("s_sleep 1")
    a(f"s_branch {again}")
    a.label(ok)

def unpack(dst, src):
    a(f"v_lshlrev_b32 v{dst}, 16, v{src}")
    a(f"v_and_b32 v{dst+1}, 0xffff0000, v{src}")

FIRST_A = ((R_WS, 96), (R_K, 8), (R_V, 16), (R_SH, 24), (R_SSM, 32), (R_DBG, 88), (S_EX, 40))
LATE_A = ((R_X, 0), (R_W1, 56), (R_W3, 64), (R_W2, 72), (R_OUT, 80))
FIRST_B = ((R_WS, 96), (R_X, 0), (R_W1, 56), (R_W3, 64), (R_SSM, 32), (R_DBG, 88), (S_EX, 40))
LATE_B = ((R_K, 8), (R_V, 16), (R_SH, 24), (R_W2, 72), (R_OUT, 80))
def prologue():
    a("s_cmp_ge_u32 s2, 256")
    a("s_cbranch_scc1 L_end")
    for r, off in (FIRST_B if OPT.p_after else FIRST_A):
        a(f"s_load_dwordx2 {sr(r,2)}, s[0:1], {off}")
    if OPT.prof:
        a(f"s_memtime {sr(S_ST0,2)}")
        a(f"s_memrealtime {sr(S_RT0,2)}")
    for _ in range(OPT.x_delay): a("s_sleep 125")
    a("v_lshrrev_b32 v2, 6, v0")
    a("v_and_b32 v1, 63, v0")
    a(f"s_and_b32 s{S_XCD}, s2, 7")
    a(f"v_readfirstlane_b32 s{S_WAVE}, v2")
    a(f"s_lshr_b32 s{S_J}, s2, 3")
    if OPT.code_pf:
        skip = a.newlabel("L_nopf")
        a(f"s_cmp_lg_u32 s{S_WAVE}, 2")
        a(f"s_cbranch_scc1 {skip}")
        a(f"s_getpc_b64 {sr(T3,2)}")
        a.label("L_pcref")
        a(f"s_add_u32 s{T0}, s{S_J}, s2")
        a(f"s_and_b32 s{T0}, s{T0}, 3")
        a(f"v_lshl_add_u32 v2, s{T0}, 6, v1")
        a("v_lshlrev_b32 v2, 7, v2")
        a("v_min_u32 v2, L_code_end-L_pcref-4, v2")
        a(f"global_load_dword v24, v2, {sr(T3,2)}")
        a.label(skip)
    a(f"s_and_b32 s{S_LW}, s{S_WAVE}, 3")
    a(f"s_lshl_b32 s{S_LW1K}, s{S_LW}, 10")
    for r, size in ((R_WS, WS_SIZE), (R_K, 2 << 20), (R_V, 2 << 20), (R_SH, 4096), (R_SSM, 4096), (R_DBG, 256),
                    (R_X, 2 << 20), (R_W1, 512 * 3584), (R_W3, 512 * 3584), (R_W2, 1792 * 1024), (R_OUT, 2 << 20)):
        a(f"s_mov_b32 s{r+2}, {size}")
        a(f"s_mov_b32 s{r+3}, 0x20000")
    a(f"s_cmp_ge_u32 s{S_WAVE}, 4")
    a("s_cbranch_scc1 L_lstart")

def late_ptrs():
    for r, off in (LATE_B if OPT.p_after else LATE_A):
        a(f"s_load_dwordx2 {sr(r,2)}, s[0:1], {off}")

def decode(vt):
    a(f"v_mov_b32 v{vt}, {L_VID}")
    a(f"ds_read_b32 v{vt}, v{vt}")
    a("s_waitcnt lgkmcnt(0)")
    a(f"v_readfirstlane_b32 s{S_VJ}, v{vt}")
    a(f"s_and_b32 s{S_VX}, s{S_VJ}, 7")
    a(f"s_lshr_b32 s{S_VJ}, s{S_VJ}, 3")
    a(f"s_and_b32 s{S_I}, s{S_VJ}, 7")
    a(f"s_and_b32 s{S_B}, s{S_VX}, 1")
    a(f"s_lshr_b32 s{S_VJ}, s{S_VJ}, 3")
    a(f"s_and_b32 s{S_RB}, s{S_VX}, 6")
    a(f"s_lshl_b32 s{S_RB}, s{S_RB}, 1")
    a(f"s_add_u32 s{S_RB}, s{S_RB}, s{S_VJ}")
    a(f"s_mul_i32 s{S_CB}, s{S_B}, 7")
    a(f"s_add_u32 s{S_CB}, s{S_CB}, s{S_I}")

def decode2():
    a(f"s_lshl_b32 s{S_TB}, s{S_RB}, 1")
    a(f"s_add_u32 s{S_TB}, s{S_TB}, s{S_B}")
    a(f"s_mul_i32 s{S_ROT}, s{S_I}, 7")
    a(f"s_lshr_b32 s{S_ROT}, s{S_ROT}, 1")
    a(f"s_mul_i32 s{T2}, s{S_VJ}, 7")
    a(f"s_add_u32 s{S_ROT}, s{S_ROT}, s{T2}")
    a(f"s_mul_i32 s{T2}, s{S_VX}, 3")
    a(f"s_add_u32 s{S_ROT}, s{S_ROT}, s{T2}")
    for _ in range(2):
        a(f"s_cmp_ge_u32 s{S_ROT}, 28")
        a(f"s_cselect_b32 s{T2}, 28, 0")
        a(f"s_sub_u32 s{S_ROT}, s{S_ROT}, s{T2}")

def nonce_issue(vt):
    return f"buffer_load_dwordx2 {vr(vt,2)}, off, {sr(R_DBG,4)}, 0 sc1"

def nonce_check(vt):
    ok = a.newlabel("L_nok"); again = a.newlabel("L_nagain")
    a(f"s_mov_b32 s{S_SPIN}, {SPIN_MAX}")
    a.label(again)
    a(f"v_cmp_gt_i32 vcc, 0, v{vt+1}")
    a(f"s_cbranch_vccnz {ok}")
    a(nonce_issue(vt))
    a(f"s_sub_u32 s{S_SPIN}, s{S_SPIN}, 1")
    a("s_waitcnt vmcnt(0)")
    a(f"s_cbranch_scc0 {again}")
    a.label(ok)
    a(f"v_readfirstlane_b32 s{S_NONCE}, v{vt}")
    a(f"v_readfirstlane_b32 s{S_NONCE+1}, v{vt+1}")

def start_jobs():
    n1 = a.newlabel("L_sj1"); n2 = a.newlabel("L_sj2")
    a(f"s_cmp_lg_u32 s{S_WAVE}, 0")
    a(f"s_cbranch_scc1 {n1}")
    if OPT.ticket:
        a(f"s_getreg_b32 s{T1}, hwreg(HW_REG_XCC_ID)")
        a(f"s_and_b32 s{T1}, s{T1}, 7")
        a(f"s_lshl_b32 s{T2}, s{T1}, 7")
        a(f"s_add_u32 s{T2}, s{T2}, {WS_TK}")
        a("v_mov_b32 v7, 1")
        a("s_waitcnt lgkmcnt(0)")
        a("s_mov_b64 exec, 1")
        a(f"buffer_atomic_add v7, off, {sr(R_WS,4)}, s{T2} sc0 sc1")
        a("s_mov_b64 exec, -1")
    a(f"v_mov_b32 v6, {L_NONCE}")
    a("v_mov_b32 v4, 0")
    a("v_mov_b32 v5, 0")
    for o in (8, 16, 24, 32, 40, 48): a(f"ds_write_b64 v6, v[4:5] offset:{o}")
    a(f"s_branch {n2}")
    a.label(n1)
    a(f"s_cmp_lg_u32 s{S_WAVE}, 1")
    a(f"s_cbranch_scc1 {n2}")
    a("s_cmp_lg_u32 s2, 0")
    a(f"s_cbranch_scc1 {n2}")
    a(f"s_memrealtime {sr(T1,2)}")
    a("s_waitcnt lgkmcnt(0)")
    a(f"s_or_b32 s{T2}, s{T2}, 0x80000000")
    a(f"v_mov_b32 v4, s{T1}")
    a(f"v_mov_b32 v5, s{T2}")
    a("s_mov_b64 exec, 1")
    a(f"buffer_store_dwordx2 v[4:5], off, {sr(R_DBG,4)}, 0 sc1")
    a("s_mov_b64 exec, -1")
    a.label(n2)

def ticket_done():
    n1 = a.newlabel("L_td")
    a(f"s_cmp_lg_u32 s{S_WAVE}, 0")
    a(f"s_cbranch_scc1 {n1}")
    if OPT.ticket:
        a("s_waitcnt vmcnt(0)")
        a("v_and_b32 v7, 31, v7")
        a(f"v_lshl_add_u32 v7, v7, 3, s{T1}")
    else:
        a("v_mov_b32 v7, s2")
    a("s_mov_b64 exec, 1")
    a(f"ds_write_b32 v6, v7 offset:{L_VID - L_NONCE}")
    a("s_mov_b64 exec, -1")
    a.label(n1)
assert T1 % 2 == 0 and T3 % 2 == 0

ACC1 = 128
def acc1(gu, m, n): return ACC1 + 16 * (4 * n + 2 * m + gu)
def abuf(b, m, gu): return 64 + 16 * b + 4 * (2 * m + gu)
def bbuf(b, n): return 96 + 8 * b + 4 * n
VA = 10
VB = 12

def c_g1_reads(ks, b):
    tr = lambda m, gu, jj: f"ds_read_b64_tr_b16 {vr(abuf(b,m,gu)+2*jj,2)}, v{VA+m} offset:{16384+gu*16384+(16*ks+4*jj)*256}"
    bb = lambda n: f"ds_read_b128 {vr(bbuf(b,n),4)}, v{VB+ks} offset:{4096*n}"
    return [[bb(0), tr(0,0,0), tr(0,0,1)], [tr(0,1,0), tr(0,1,1), tr(1,0,0)], [tr(1,0,1), tr(1,1,0), tr(1,1,1)], [bb(1)]]

def c_start():
    a.c("==== C wave: set-up ====")
    start_jobs()
    late_ptrs()
    a("v_lshrrev_b32 v3, 5, v1")
    a("v_and_b32 v2, 31, v1")
    a(f"s_and_b32 s{T0}, s{S_WAVE}, 1")
    a(f"s_lshr_b32 s{T4}, s{S_WAVE}, 1")
    a("v_bfe_u32 v4, v1, 1, 3")
    a(f"s_lshl_b32 s{T2}, s{T0}, 13")
    a(f"v_lshl_add_u32 v5, v2, 7, s{T2}")
    for ks in range(4):
        a(f"v_add_u32 v8, {2*ks}, v3")
        a("v_xor_b32 v8, v8, v4")
        a(f"v_lshl_add_u32 v{VB+ks}, v8, 4, v5")
    a("v_bfe_u32 v4, v1, 2, 2")
    a("v_lshl_add_u32 v5, v3, 3, v4")
    a("v_lshlrev_b32 v5, 8, v5")
    a("v_bfe_u32 v8, v1, 4, 1")
    a("v_lshl_add_u32 v5, v8, 5, v5")
    a("v_and_b32 v8, 3, v1")
    a("v_lshl_add_u32 v5, v8, 3, v5")
    a(f"s_lshl_b32 s{T2}, s{T4}, 1")
    for m in range(2):
        a(f"s_add_u32 s{T3}, s{T2}, {m}")
        a(f"v_xor_b32 v8, s{T3}, v4")
        a(f"v_lshl_add_u32 v{VA+m}, v8, 6, v5")
    if OPT.tlb2:
        skip = a.newlabel("L_notlb")
        a(f"s_cmp_lg_u32 s{S_WAVE}, 3")
        a(f"s_cbranch_scc1 {skip}")
        if OPT.tlb2 == 16:
            a(f"s_and_b32 s{T2}, s{S_J}, 3")
            a("v_and_b32 v8, 15, v1")
            a(f"v_lshl_add_u32 v8, v8, 2, s{T2}")
            a("v_lshlrev_b32 v8, 16, v8")
            a(f"v_lshl_add_u32 v9, v1, 2, s{T2}")
            a("v_lshlrev_b32 v9, 16, v9")
            a("s_waitcnt lgkmcnt(0)")
            a("s_mov_b64 exec, 0xff")
            for r in (R_X, R_W1, R_W3, R_W2, R_OUT): a(f"buffer_load_dword v25, v8, {sr(r,4)}, 0 offen")
            a("s_mov_b64 exec, -1")
            a(f"buffer_load_dword v25, v9, {sr(R_WS,4)}, 0 offen")
        else:
            a("v_lshlrev_b32 v8, 20, v1")
            a("s_waitcnt lgkmcnt(0)")
            a("s_mov_b64 exec, 3")
            for r in (R_X, R_W1, R_W3, R_W2, R_OUT): a(f"buffer_load_dword v25, v8, {sr(r,4)}, 0 offen")
            a("s_mov_b64 exec, 0x3fff")
            a(f"buffer_load_dword v25, v8, {sr(R_WS,4)}, 0 offen")
            a("s_mov_b64 exec, -1")
        a.label(skip)
    for r in range(ACC1, 256, 2):
        a(f"v_pk_mov_b32 {vr(r,2)}, 0, 0")
    ticket_done()
    a("s_waitcnt lgkmcnt(0)")
    barrier()
    stamp("C", "V")
    decode(4); decode2()
    a(f"s_cmp_eq_u32 s{S_I}, 7")
    a("s_cbranch_scc1 L_cspare")
    a(f"s_lshr_b32 s{T1}, s{S_WAVE}, 1")
    a(f"s_mov_b32 s{T4}, 0")
    a(f"s_mov_b32 s{T5}, 0")
    a(f"s_mov_b32 s{S_OX}, {(-2*SLOT) & 0xffffffff}")
    a(f"s_mov_b32 s{S_OW}, {SLOT}")
    barrier()

def c_g1():
    a.c("==== C wave: GEMM1 ====")
    stamp("C", "g1_start")
    for grp in c_g1_reads(0, 0):
        for r in grp: a(r)
    a(".p2align 3")
    a.label("L_cg1")
    for ks in range(4):
        b = ks & 1
        nxt = c_g1_reads((ks + 1) & 3, b ^ 1)
        a("s_waitcnt lgkmcnt(0)")
        i = 0
        for n in range(2):
            for m in range(2):
                for gu in range(2):
                    d = vr(acc1(gu, m, n), 16)
                    a(f"v_mfma_f32_32x32x16_bf16 {d}, {vr(abuf(b,m,gu),4)}, {vr(bbuf(b,n),4)}, {d}")
                    if ks == 3 and i == 0:
                        barrier()
                    if i < 4:
                        for r in nxt[i]: a(r)
                    if ks == 2 and i == 4:
                        a(f"s_add_u32 s{T5}, s{T5}, 1")
                        a(f"s_cmp_eq_u32 s{T5}, 3")
                        a(f"s_cselect_b32 s{T3}, s{S_OX}, s{S_OW}")
                        a(f"s_cselect_b32 s{T5}, 0, s{T5}")
                    if ks == 2 and i == 5:
                        for k in range(3): a(f"v_add_u32 v{VA+k}, s{T3}, v{VA+k}")
                    if ks == 2 and i == 6:
                        for k in range(3, 6): a(f"v_add_u32 v{VA+k}, s{T3}, v{VA+k}")
                    if ks == 3 and i == 6:
                        a(f"s_add_u32 s{T4}, s{T4}, 1")
                        a(f"s_cmp_lt_u32 s{T4}, 8")
                    i += 1
    a("s_cbranch_scc1 L_cg1")
    stamp("C", "g1_end")
    a.c("---- GEMM1 epilogue ----")
    if OPT.prio: a("s_setprio 3")
    CS = 32
    ST = 16
    a(f"s_lshl_b32 s{T2}, s{T0}, 9")
    a(f"s_add_u32 s{T2}, s{T2}, {L_STAT}")
    a(f"v_lshl_add_u32 v4, v2, 3, s{T2}")
    a(f"s_lshl_b32 s{T2}, s{T1}, 8")
    a(f"s_add_u32 s{T2}, s{T2}, {L_CS}")
    a(f"v_lshl_add_u32 v5, v3, 4, s{T2}")
    a("s_waitcnt vmcnt(0) lgkmcnt(0)")
    a(f"ds_read_b64 {vr(ST,2)}, v4")
    a(f"ds_read_b64 {vr(ST+2,2)}, v4 offset:256")
    for m in range(2):
        for gu in range(2):
            for j in range(4):
                a(f"ds_read_b128 {vr(CS+16*(2*m+gu)+4*j,4)}, v5 offset:{gu*512+m*128+j*32}")
    a(f"s_lshl_b32 s{T2}, s{S_RB}, 2")
    a(f"s_lshl_b32 s{T3}, s{T0}, 1")
    a(f"s_add_u32 s{T2}, s{T2}, s{T3}")
    a(f"s_mul_i32 s{T2}, s{T2}, 112")
    a(f"s_lshl_b32 s{T3}, s{S_CB}, 3")
    a(f"s_add_u32 s{T2}, s{T2}, s{T3}")
    a(f"s_lshl_b32 s{T3}, s{T1}, 2")
    a(f"s_add_u32 s{T2}, s{T2}, s{T3}")
    a(f"s_lshl_b32 s{T2}, s{T2}, 10")
    a(f"s_add_u32 s{T2}, s{T2}, {WS_H}")
    a(f"s_add_u32 s{T3}, s{T2}, {112*1024}")
    a("v_lshlrev_b32 v6, 4, v1")
    read_nonce(20)
    a(f"v_mul_f32 v24, 0x{NLOG2E:x}, v{ST+1}")
    a(f"v_mul_f32 v26, 0x{NLOG2E:x}, v{ST+3}")
    E = 96; O = 112
    blk = 0
    late = []
    for n in range(2):
        st = vr(ST + 2 * n, 2)
        for m in range(2):
            for hb in range(2):
                A = acc1(0, m, n) + 8 * hb; B = acc1(1, m, n) + 8 * hb
                CG = CS + 16 * (2 * m) + 8 * hb; CU = CS + 16 * (2 * m + 1) + 8 * hb
                e = E + 8 * (blk & 1); o = O + 4 * (blk & 3)
                if OPT.late_st: o = B
                for p in range(4):
                    a(f"v_pk_fma_f32 {vr(A+2*p,2)}, {vr(CG+2*p,2)}, {st}, {vr(A+2*p,2)} op_sel_hi:[1,0,1] neg_lo:[0,1,0] neg_hi:[0,1,0]")
                for p in range(4):
                    a(f"v_pk_mul_f32 {vr(A+2*p,2)}, {vr(A+2*p,2)}, {vr(24+2*n,2)} op_sel_hi:[1,0]")
                for p in range(4):
                    a(f"v_exp_f32 v{e+2*p}, v{A+2*p}")
                    a(f"v_exp_f32 v{e+2*p+1}, v{A+2*p+1}")
                    a(f"v_pk_fma_f32 {vr(B+2*p,2)}, {vr(CU+2*p,2)}, {st}, {vr(B+2*p,2)} op_sel_hi:[1,0,1] neg_lo:[0,1,0] neg_hi:[0,1,0]")
                for p in range(4):
                    a(f"v_pk_add_f32 {vr(e+2*p,2)}, {vr(e+2*p,2)}, 1.0 op_sel_hi:[1,0]")
                for p in range(4):
                    a(f"v_rcp_f32 v{e+2*p}, v{e+2*p}")
                    a(f"v_rcp_f32 v{e+2*p+1}, v{e+2*p+1}")
                    a(f"v_pk_mul_f32 {vr(A+2*p,2)}, {vr(A+2*p,2)}, {vr(B+2*p,2)}")
                for p in range(4):
                    a(f"v_pk_mul_f32 {vr(A+2*p,2)}, {vr(A+2*p,2)}, {vr(e+2*p,2)}")
                for p in range(4):
                    a(f"v_cvt_pk_bf16_f32 v{o+p}, v{A+2*p}, v{A+2*p+1}")
                st_ = f"buffer_store_dwordx4 {vr(o,4)}, v6, {sr(R_WS,4)}, s{T2+n} offen offset:{(2*m+hb)*1024} {OPT.x_hst}"
                if OPT.late_st: late.append(st_)
                else: a(st_)
                blk += 1
    for st_ in late: a(st_)
    if OPT.prio: a("s_setprio 0")

W2O = 15
S_KW = S_OX
S_KH = S_OW
def w2_setup():
    a("v_lshrrev_b32 v4, 3, v1")
    a("v_bfe_u32 v5, v1, 4, 1")
    a("v_lshlrev_b32 v5, 2, v5")
    a("v_and_b32 v6, 7, v1")
    a("v_xor_b32 v5, v5, v6")
    a("v_lshlrev_b32 v4, 10, v4")
    a(f"v_lshl_add_u32 v{W2O}, v5, 4, v4")
    a(f"s_mul_i32 s{T0}, s{S_LW}, {448*1024}")
    a(f"s_lshl_b32 s{T1}, s{S_I}, 7")
    a(f"s_add_u32 s{T0}, s{T0}, s{T1}")
    a(f"v_add_u32 v{W2O}, s{T0}, v{W2O}")

def kidx_init(reg, s0):
    a(f"s_add_u32 s{reg}, s{S_ROT}, {s0}")
    a(f"s_cmp_ge_u32 s{reg}, 28")
    a(f"s_cselect_b32 s{T0}, 28, 0")
    a(f"s_sub_u32 s{reg}, s{reg}, s{T0}")
def kidx_next(reg):
    a(f"s_add_u32 s{reg}, s{reg}, 1")
    a(f"s_cmp_eq_u32 s{reg}, 28")
    a(f"s_cselect_b32 s{reg}, 0, s{reg}")

def ring_off(slot):
    return (slot // 6) * SLOT + (slot % 6) * 2048

def w2_kstep(vm, s, tag):
    a(f"s_add_u32 m0, s{T5}, {ring_off(s % 12)}")
    a(f"s_lshl_b32 s{T1}, s{S_KW}, 14")
    vm.issue(tag, f"buffer_load_dwordx4 v{W2O}, {sr(R_W2,4)}, s{T1} offen {OPT.nt_w} lds")
    a(f"s_add_u32 m0, s{T5}, {ring_off(s % 12) + 1024}")
    a(f"s_add_u32 s{T1}, s{T1}, 8192")
    vm.issue(tag, f"buffer_load_dwordx4 v{W2O}, {sr(R_W2,4)}, s{T1} offen {OPT.nt_w} lds")
    kidx_next(S_KW)

ACC2 = 192
AR = 64
HR = 16
VX = 64
def c_g2():
    vm = VM(a)
    a.label("L_cE")
    a.c("==== C wave: GEMM2 ====")
    NBK = OPT.nbk
    assert HR + 8 * NBK <= AR
    VT = 10
    a("v_lshrrev_b32 v3, 5, v1")
    a("v_bfe_u32 v5, v1, 2, 2")
    a("v_lshl_add_u32 v7, v3, 2, v5")
    a("v_lshlrev_b32 v7, 7, v7")
    a("v_bfe_u32 v8, v1, 4, 1")
    a("v_lshl_add_u32 v7, v8, 5, v7")
    a("v_and_b32 v8, 3, v1")
    a("v_lshl_add_u32 v7, v8, 3, v7")
    a(f"s_mul_i32 s{T5}, s{S_LW}, 12288")
    a(f"v_add_u32 v7, s{T5}, v7")
    a("v_lshrrev_b32 v5, 1, v5")
    a(f"v_lshl_add_u32 v{VT}, v5, 6, v7")
    a("v_xor_b32 v5, 1, v5")
    a(f"v_lshl_add_u32 v{VT+1}, v5, 6, v7")
    if OPT.gprio: a(f"s_setprio {OPT.gprio}")
    lds_add(L_ECNT, 12, 13)
    stamp("C", "E")
    def treads(s, dst):
        return [f"ds_read_b64_tr_b16 {vr(dst+4*m+2*jj,2)}, v{VT+m} offset:{ring_off(s % 12) + 8*jj*128}" for m in range(2) for jj in range(2)]
    w2_setup()
    kidx_init(S_KW, 12)
    a(f"s_and_b32 s{T0}, s{S_WAVE}, 1")
    a(f"s_lshl_b32 s{T4}, s{S_RB}, 1")
    a(f"s_add_u32 s{T4}, s{T4}, s{T0}")
    a(f"s_lshl_b32 s{T4}, s{T4}, 1")
    a(f"s_add_u32 s{T4}, s{T4}, s{S_B}")
    a(f"s_lshl_b32 s{T4}, s{T4}, 4")
    a(f"s_lshl_b32 s{T3}, s{S_I}, 1")
    a(f"s_add_u32 s{T4}, s{T4}, s{T3}")
    a(f"s_lshr_b32 s{T3}, s{S_WAVE}, 1")
    a(f"s_add_u32 s{T4}, s{T4}, s{T3}")
    a(f"s_lshl_b32 s{T4}, s{T4}, 3")
    a(f"s_add_u32 s{T4}, s{T4}, {WS_FH}")
    a(f"s_lshl_b32 s{T2}, s{S_TB}, 1")
    a(f"s_add_u32 s{T2}, s{T2}, s{T3}")
    a(f"s_lshl_b32 s{T2}, s{T2}, 7")
    a(f"s_mul_i32 s{T3}, s{T0}, 56")
    a(f"s_add_u32 s{T2}, s{T2}, s{T3}")
    a(f"s_add_u32 s{S_CH}, s{T2}, {WS_FH}")
    a(f"s_lshl_b32 s{T3}, s{S_LW}, 2")
    a(f"s_add_u32 s{T3}, s{T3}, {L_RING}")
    slow = a.newlabel("L_cslow"); join = a.newlabel("L_cjoin")
    a(f"v_mov_b32 v12, s{T3}")
    a("ds_read_b32 v13, v12")
    a("s_waitcnt lgkmcnt(0)")
    a("v_cmp_eq_u32 vcc, 1, v13")
    a(f"s_cbranch_vccz {slow}")
    for s in range(12):
        for r in treads(s, AR + 8 * s): a(r)
    a("s_waitcnt lgkmcnt(0)")
    for s in range(12, 16): w2_kstep(VM(a), s, "wa")
    a("s_waitcnt vmcnt(8)")
    flag_store(VM(a), 12, T4)
    a(f"s_branch {join}")
    a.label(slow)
    a("s_waitcnt vmcnt(0)")
    flag_store(VM(a), 12, T4)
    lds_wait((T3,), 1, 14, 4)
    for s in range(12):
        for r in treads(s, AR + 8 * s): a(r)
    a("s_waitcnt lgkmcnt(0)")
    for s in range(12, 16): w2_kstep(VM(a), s, "wa")
    a.label(join)
    vm.q.extend(["wa"] * 8)
    stamp("C", "h_flag")
    for s in range(16, 24): w2_kstep(vm, s, "wb")
    vm.wait("wa")
    for s in range(12, 16):
        for r in treads(s, AR + 8 * s): a(r)
    a(f"s_mul_i32 s{T2}, s{S_TB}, 224")
    a(f"s_mul_i32 s{T3}, s{S_LW}, 28")
    a(f"s_add_u32 s{T2}, s{T2}, s{T3}")
    a(f"s_lshl_b32 s{T2}, s{T2}, 10")
    a(f"s_add_u32 s{T2}, s{T2}, {WS_H}")
    a("v_lshlrev_b32 v6, 4, v1")
    a(f"v_add_u32 v7, {112*1024}, v6")
    a(f"s_mov_b32 s{S_KH}, s{S_ROT}")
    a("s_waitcnt lgkmcnt(0)")
    for s in range(24, 28): w2_kstep(vm, s, "wc")
    spoll(S_PC, S_CH, 7, 2)
    stamp("C", "h_seen")
    def hload(s):
        a(f"s_lshl_b32 s{T4}, s{S_KH}, 10")
        a(f"s_add_u32 s{T4}, s{T4}, s{T2}")
        if OPT.x_hmode == 1: a(f"s_and_b32 s{T4}, s{T4}, 0x43ffff")
        for n in range(2):
            vm.issue(f"h{s}", f"buffer_load_dwordx4 {vr(HR+8*(s%NBK)+4*n,4)}, v{6+n}, {sr(R_WS,4)}, s{T4} offen {OPT.h_ld}")
        kidx_next(S_KH)
    for s in range(NBK): hload(s)
    if OPT.gprio: a("s_setprio 0")
    stamp("C", "g2_start")
    for s in range(28):
        A = AR + 8 * (s % 16)
        vm.wait(f"h{s}", "lgkmcnt(0)" if s >= 16 else "")
        i = 0
        for n in range(2):
            for m in range(2):
                d = vr(ACC2 + 16 * (2 * n + m), 16)
                a(f"v_mfma_f32_32x32x16_bf16 {d}, {vr(A+4*m,4)}, {vr(HR+8*(s%NBK)+4*n,4)}, {'0' if s == 0 else d}")
                if i == 0 and 15 <= s < 27:
                    for r in treads(s + 1, AR + 8 * ((s + 1) % 16)): a(r)
                if i == 1 and s >= 1 and s - 1 + NBK < 28: hload(s - 1 + NBK)
                i += 1
        if s == 21: final_x_load(vm)
        if s in (0, 3, 7, 14, 21): stamp("C", f"k{s}")
    stamp("C", "g2_end")
    a("v_and_b32 v4, 31, v1")
    a("v_mul_u32_u24 v4, 272, v4")
    a("v_lshl_add_u32 v4, v3, 4, v4")
    a(f"v_add_u32 v4, s{T5}, v4")
    a("s_nop 7")
    for n in range(2):
        for m in range(2):
            for j in range(4):
                a(f"ds_write_b128 v4, {vr(ACC2+16*(2*n+m)+4*j,4)} offset:{n*SLOT+m*128+j*32}")
    vm.waitall("lgkmcnt(0)")
    a("s_branch L_final")

def final_x_load(vm):
    a("v_lshrrev_b32 v8, 3, v0")
    a(f"s_lshl_b32 s{T3}, s{S_TB}, 6")
    a(f"v_add_u32 v8, s{T3}, v8")
    a("v_lshlrev_b32 v8, 10, v8")
    a("v_and_b32 v9, 7, v0")
    a("v_lshl_add_u32 v9, v9, 4, v8")
    a(f"s_lshl_b32 s{T3}, s{S_I}, 7")
    a(f"v_add_u32 v9, s{T3}, v9")
    vm.issue("x", f"buffer_load_dwordx4 {vr(VX,4)}, v9, {sr(R_X,4)}, 0 offen")

def final():
    a.label("L_final")
    a.c("==== final epilogue (all waves) ====")
    P, Y, ST, XF, YF, XN = 16, 48, 52, 56, 72, 80
    a("v_lshrrev_b32 v4, 3, v0")
    a("v_and_b32 v5, 7, v0")
    a("v_and_b32 v6, 31, v4")
    a("v_mul_u32_u24 v6, 272, v6")
    a("v_lshl_add_u32 v6, v5, 5, v6")
    a("v_lshrrev_b32 v7, 5, v4")
    a(f"v_mul_u32_u24 v7, {SLOT}, v7")
    a("v_add_u32 v6, v6, v7")
    a("v_mul_u32_u24 v7, 144, v4")
    a("v_lshl_add_u32 v7, v5, 4, v7")
    a(f"v_add_u32 v7, {L_YT}, v7")
    a(f"s_lshl_b32 s{T0}, s{S_B}, 9")
    a(f"s_add_u32 s{T0}, s{T0}, {L_STAT}")
    a(f"v_lshl_add_u32 v8, v4, 3, s{T0}")
    a(f"ds_read_b64 {vr(ST,2)}, v8")
    for p in range(4): unpack(XF + 2 * p, VX + p)
    a("s_waitcnt lgkmcnt(0)")
    a(f"v_mul_f32 v{ST+2}, 0x{NLN2:x}, v{ST+1}")
    a(f"v_mov_b32 v90, v{ST+1}")
    a(f"v_mul_f32 v88, v{ST}, v{ST+2}")
    barrier()
    a(f"ds_read_b128 {vr(Y,4)}, v7")
    for w in range(4):
        a(f"ds_read_b128 {vr(P+8*w,4)}, v6 offset:{w*12288}")
        a(f"ds_read_b128 {vr(P+8*w+4,4)}, v6 offset:{w*12288+16}")
    for p in range(4):
        a(f"v_pk_fma_f32 {vr(XN+2*p,2)}, {vr(XF+2*p,2)}, {vr(ST+2,2)}, v[88:89] op_sel_hi:[1,0,0] neg_lo:[0,0,1] neg_hi:[0,0,1]")
    a("s_waitcnt lgkmcnt(8)")
    for p in range(4): unpack(YF + 2 * p, Y + p)
    for p in range(4):
        a(f"v_pk_mul_f32 {vr(XN+2*p,2)}, {vr(XN+2*p,2)}, {vr(YF+2*p,2)}")
    a("s_waitcnt lgkmcnt(4)")
    for p in range(4): a(f"v_pk_add_f32 {vr(P+2*p,2)}, {vr(P+2*p,2)}, {vr(P+8+2*p,2)}")
    a("s_waitcnt lgkmcnt(0)")
    for p in range(4): a(f"v_pk_add_f32 {vr(P+16+2*p,2)}, {vr(P+16+2*p,2)}, {vr(P+24+2*p,2)}")
    for p in range(4): a(f"v_pk_add_f32 {vr(P+2*p,2)}, {vr(P+2*p,2)}, {vr(P+16+2*p,2)}")
    for p in range(4): a(f"v_pk_mul_f32 {vr(P+2*p,2)}, {vr(P+2*p,2)}, v[90:91] op_sel_hi:[1,0]")
    P1 = P + 8
    for p in range(4):
        a(f"v_exp_f32 v{P1+2*p}, v{P+2*p}")
        a(f"v_exp_f32 v{P1+2*p+1}, v{P+2*p+1}")
        a(f"v_pk_mul_f32 {vr(XN+2*p,2)}, {vr(XN+2*p,2)}, {vr(P+2*p,2)}")
    for p in range(4): a(f"v_pk_add_f32 {vr(P1+2*p,2)}, {vr(P1+2*p,2)}, 1.0 op_sel_hi:[1,0]")
    for p in range(8): a(f"v_rcp_f32 v{P1+p}, v{P1+p}")
    for p in range(4):
        a(f"v_pk_fma_f32 {vr(XF+2*p,2)}, {vr(XN+2*p,2)}, {vr(P1+2*p,2)}, {vr(XF+2*p,2)}")
    for p in range(4):
        a(f"v_cvt_pk_bf16_f32 v{Y+p}, v{XF+2*p}, v{XF+2*p+1}")
    for _ in range(OPT.x_delay_end): a("s_sleep 125")
    a(f"buffer_store_dwordx4 {vr(Y,4)}, v9, {sr(R_OUT,4)}, 0 offen")
    if OPT.prof:
        a(f"s_memtime {sr(R_K,2)}")
        a(f"s_memrealtime {sr(T1,2)}")
        a("s_waitcnt lgkmcnt(0)")
        a(f"s_lshl_b32 s{T3}, s{S_VJ}, 3")
        a(f"s_add_u32 s{T3}, s{T3}, s{S_I}")
        a(f"s_lshl_b32 s{T3}, s{T3}, 3")
        a(f"s_add_u32 s{T3}, s{T3}, s{S_VX}")
        a(f"s_lshl_b32 s{T3}, s{T3}, 3")
        a(f"s_add_u32 s{T3}, s{T3}, s{S_WAVE}")
        a(f"s_lshl_b32 s{T3}, s{T3}, 7")
        a(f"s_add_u32 s{T3}, s{T3}, {WS_PROF}")
        for i in range(NSTAMP):
            a(f"s_sub_u32 s{T4}, s{STAMP0+2*i}, s{S_ST0}")
            a(f"v_mov_b32 v{16+i}, s{T4}")
        a(f"s_sub_u32 s{T4}, s{R_K}, s{S_ST0}")
        a(f"v_mov_b32 v28, s{T4}")
        a(f"v_mov_b32 v29, s{S_RT0}")
        a(f"v_mov_b32 v30, s{T1}")
        a("v_mov_b32 v31, 0")
        a("s_mov_b64 exec, 1")
        for i in range(4):
            a(f"buffer_store_dwordx4 {vr(16+4*i,4)}, off, {sr(R_WS,4)}, s{T3} offset:{16*i}")
    a.label("L_end")
    a("s_endpgm")

VXO = 16
VWO = 20
VTO = 24
VTD = 25
VPO = 26
KR = 48
VR_ = 68
TP = 76
TF = 92
KF = 124
A0 = 132
A1 = 140
HL = 148
HS = 172
PF = 188
GA = 208

def prep_loads(vm):
    a("v_lshrrev_b32 v4, 3, v1")
    a(f"s_lshl_b32 s{T0}, s{S_J}, 6")
    a(f"s_lshl_b32 s{T1}, s{S_LW}, 4")
    a(f"s_add_u32 s{T0}, s{T0}, s{T1}")
    a(f"s_sub_u32 s{T0}, s{T0}, 3")
    a(f"v_lshl_add_u32 v4, v4, 1, s{T0}")
    a("v_lshlrev_b32 v4, 10, v4")
    a("v_and_b32 v5, 7, v1")
    a("v_lshl_add_u32 v4, v5, 4, v4")
    a(f"s_lshl_b32 s{T0}, s{S_XCD}, 7")
    a(f"v_add_u32 v4, s{T0}, v4")
    for i in range(5):
        vm.issue("P", f"buffer_load_dwordx4 {vr(KR+4*i,4)}, v4, {sr(R_K,4)}, 0 offen {OPT.nt_k}")
        if i >= 3:
            vm.issue("P", f"buffer_load_dwordx4 {vr(VR_+4*(i-3),4)}, v4, {sr(R_V,4)}, 0 offen {OPT.nt_v}")
        if i < 4: a("v_add_u32 v4, 1024, v4")
    a(f"s_mov_b32 m0, {L_TAPS}")
    a("v_lshlrev_b32 v4, 4, v1")
    a(f"s_lshl_b32 s{T0}, s{S_XCD}, 9")
    vm.issue("P", f"buffer_load_dwordx4 v4, {sr(R_SH,4)}, s{T0} offen lds")

def prep_compute(pk=False):
    a("v_and_b32 v5, 7, v1")
    a("v_lshlrev_b32 v4, 6, v5")
    a(f"v_add_u32 v6, {L_TAPS}, v4")
    for q in range(4):
        a(f"ds_read_b128 {vr(TP+4*q,4)}, v6 offset:{16*q}")
    a("v_mul_u32_u24 v7, 1040, v5")
    a("v_lshrrev_b32 v4, 3, v1")
    a(f"s_lshl_b32 s{T0}, s{S_LW}, 5")
    a(f"s_sub_u32 s{T0}, {L_SCR + 124}, s{T0}")
    a("v_lshlrev_b32 v4, 2, v4")
    a("v_sub_u32 v7, v7, v4")
    a(f"v_add_u32 v7, s{T0}, v7")
    a("s_waitcnt lgkmcnt(0)")
    for dd in range(8):
        a(f"v_lshlrev_b32 v{TF+dd}, 16, v{TP+2*dd}")
        a(f"v_and_b32 v{TF+8+dd}, 0xffff0000, v{TP+2*dd}")
        a(f"v_lshlrev_b32 v{TF+16+dd}, 16, v{TP+2*dd+1}")
        a(f"v_and_b32 v{TF+24+dd}, 0xffff0000, v{TP+2*dd+1}")
    for i in range(5):
        for p in range(4): unpack(KF + 2 * p, KR + 4 * i + p)
        for tt, acc in ((0, A0), (1, A1)):
            j = 3 + tt - i
            if j < 0 or j > 3: continue
            if pk:
                for p in range(4):
                    if j == 3: a(f"v_pk_mul_f32 {vr(acc+2*p,2)}, {vr(KF+2*p,2)}, {vr(TF+8*j+2*p,2)}")
                    else: a(f"v_pk_fma_f32 {vr(acc+2*p,2)}, {vr(KF+2*p,2)}, {vr(TF+8*j+2*p,2)}, {vr(acc+2*p,2)}")
                continue
            for p in range(8):
                a(f"v_{'mul' if j == 3 else 'fmac'}_f32 v{acc+p}, v{KF+p}, v{TF+8*j+p}")
    for tt, acc in ((0, A0), (1, A1)):
        for p in range(4): unpack(KF + 2 * p, VR_ + 4 * tt + p)
        if pk:
            for p in range(4): a(f"v_pk_mul_f32 {vr(acc+2*p,2)}, {vr(acc+2*p,2)}, {vr(KF+2*p,2)}")
        else:
            for p in range(8): a(f"v_mul_f32 v{acc+p}, v{acc+p}, v{KF+p}")
    for dd in range(8): a(f"v_cvt_pk_bf16_f32 v{KF+dd}, v{A1+dd}, v{A0+dd}")
    for dd in range(8): a(f"ds_write_b32 v7, v{KF+dd} offset:{128*dd}")

def prep_store(vm):
    a(f"s_mul_i32 s{T0}, s{S_LW}, {2*1040}")
    a(f"s_add_u32 s{T0}, s{T0}, {L_SCR}")
    a(f"v_lshl_add_u32 v4, v1, 4, s{T0}")
    a(f"ds_read_b128 {vr(KR,4)}, v4")
    a(f"ds_read_b128 {vr(KR+4,4)}, v4 offset:1040")
    a("v_lshrrev_b32 v4, 3, v1")
    a("v_lshlrev_b32 v4, 12, v4")
    a("v_and_b32 v5, 7, v1")
    a("v_lshl_add_u32 v4, v5, 4, v4")
    a(f"s_lshl_b32 s{T0}, s{S_XCD}, 18")
    a(f"s_lshl_b32 s{T1}, s{S_LW}, 16")
    a(f"s_add_u32 s{T0}, s{T0}, s{T1}")
    a(f"s_lshl_b32 s{T1}, s{S_J}, 7")
    a(f"s_sub_u32 s{T1}, {WS_UT + 4096 - 128}, s{T1}")
    a(f"s_add_u32 s{T0}, s{T0}, s{T1}")
    a(f"s_add_u32 s{T1}, s{T0}, 32768")
    a("s_waitcnt lgkmcnt(0)")
    vm.issue("S", f"buffer_store_dwordx4 {vr(KR,4)}, v4, {sr(R_WS,4)}, s{T0} offen sc1")
    vm.issue("S", f"buffer_store_dwordx4 {vr(KR+4,4)}, v4, {sr(R_WS,4)}, s{T1} offen sc1")

def fu_flag(vm):
    a(f"s_lshl_b32 s{T0}, s{S_XCD}, 2")
    a(f"s_add_u32 s{T0}, s{T0}, s{S_LW}")
    a(f"s_lshl_b32 s{T0}, s{T0}, 5")
    a(f"s_add_u32 s{T0}, s{T0}, s{S_J}")
    a(f"s_lshl_b32 s{T0}, s{T0}, 2")
    a(f"s_add_u32 s{T0}, s{T0}, {WS_FU}")
    a(f"v_mov_b32 v{PF}, s{S_NONCE}")
    a("s_mov_b64 exec, 1")
    vm.issue("F", f"buffer_store_dword v{PF}, off, {sr(R_WS,4)}, s{T0} sc1")
    a("s_mov_b64 exec, -1")

def fu_addr():
    a(f"s_lshl_b32 s{T4}, s{S_XCD}, 2")
    a(f"s_add_u32 s{T4}, s{T4}, s{S_LW}")
    a(f"s_lshl_b32 s{T4}, s{T4}, 7")
    a(f"s_add_u32 s{T4}, s{T4}, {WS_FU}")
    a(f"s_mov_b32 s{S_EX}, s{S_NONCE}")
    a(f"s_mov_b32 s{S_EX+1}, s{S_NONCE}")

CSR = 28
def cs_read():
    a(f"s_bfe_u32 s{T0}, s{S_RB}, 0x10001")
    if OPT.pairswap: a(f"s_xor_b32 s{T0}, s{T0}, s{S_G}")
    a(f"s_and_b32 s{T1}, s{S_RB}, 1")
    a(f"s_mul_i32 s{T0}, s{T0}, {SLOT}")
    a(f"s_lshl_b32 s{T1}, s{T1}, 13")
    a(f"s_add_u32 s{T0}, s{T0}, s{T1}")
    a(f"s_add_u32 s{T0}, s{T0}, s{S_LW1K}")
    a("v_lshrrev_b32 v5, 4, v1")
    a("v_lshlrev_b32 v6, 2, v5")
    a("v_and_b32 v7, 15, v1")
    a("v_xor_b32 v6, v6, v7")
    a("v_lshlrev_b32 v6, 4, v6")
    a("v_lshl_add_u32 v6, v5, 8, v6")
    a(f"v_add_u32 v6, s{T0}, v6")
    for mat in range(2):
        for ii in range(2):
            a(f"ds_read_b128 {vr(CSR+8*mat+4*ii,4)}, v6 offset:{16384*(mat+1)+4096*ii}")

def cs_sum():
    G, U, KT = GA, GA + 8, KF
    a("v_bfe_u32 v8, v1, 4, 1")
    a("v_lshlrev_b32 v8, 4, v8")
    a("v_lshl_add_u32 v8, v7, 5, v8")
    a("v_lshrrev_b32 v5, 5, v1")
    a("v_lshl_add_u32 v8, v5, 9, v8")
    a(f"s_add_u32 s{T0}, s{S_LW1K}, {L_CSP}")
    a(f"v_add_u32 v8, s{T0}, v8")
    for mat, acc in ((0, G), (1, U)):
        for p in range(4):
            unpack(acc + 2 * p, CSR + 8 * mat + p)
            unpack(KT + 2 * p, CSR + 8 * mat + 4 + p)
        for p in range(8): a(f"v_add_f32 v{acc+p}, v{acc+p}, v{KT+p}")
    a("s_nop 0")
    for j in range(8): a(f"v_permlane32_swap_b32 v{G+j}, v{U+j}")
    for p in range(8): a(f"v_add_f32 v{G+p}, v{G+p}, v{U+p}")
    a("s_nop 0")
    for j in range(4): a(f"v_permlane16_swap_b32 v{G+j}, v{G+4+j}")
    for p in range(4): a(f"v_add_f32 v{G+p}, v{G+p}, v{G+4+p}")
    a(f"ds_write_b128 v8, {vr(G,4)}")

def cs_publish(vm):
    a(f"s_lshl_b32 s{T0}, s{S_LW}, 8")
    a(f"s_add_u32 s{T0}, s{T0}, {L_CSP}")
    a(f"v_lshlrev_b32 v{PF+7}, 2, v1")
    a(f"v_add_u32 v4, s{T0}, v{PF+7}")
    for w in range(4): a(f"ds_read_b32 v{GA+w}, v4 offset:{1024*w}")
    a(f"s_lshl_b32 s{T2}, s{S_B}, 3")
    a(f"s_add_u32 s{T2}, s{T2}, s{S_I}")
    a(f"s_lshl_b32 s{T2}, s{T2}, 2")
    a(f"s_add_u32 s{T2}, s{T2}, s{S_LW}")
    a(f"s_lshl_b32 s{T2}, s{T2}, 4")
    a(f"s_add_u32 s{T2}, s{T2}, s{S_RB}")
    a(f"s_lshl_b32 s{T3}, s{T2}, 8")
    a(f"s_add_u32 s{T3}, s{T3}, {WS_CS}")
    a(f"s_lshl_b32 s{T4}, s{T2}, 3")
    a(f"s_add_u32 s{T4}, s{T4}, {WS_FCS}")
    a("s_waitcnt lgkmcnt(0)")
    a(f"v_add_f32 v{GA}, v{GA}, v{GA+1}")
    a(f"v_add_f32 v{GA+2}, v{GA+2}, v{GA+3}")
    a(f"v_add_f32 v{GA}, v{GA}, v{GA+2}")
    vm.issue("S1", f"buffer_store_dword v{GA}, v{PF+7}, {sr(R_WS,4)}, s{T3} offen sc1")

def cs_flag(vm):
    vm.wait("S1")
    flag_store(vm, PF, T4)

def cs_poll_addr():
    a(f"s_lshl_b32 s{T2}, s{S_B}, 3")
    a(f"s_add_u32 s{T2}, s{T2}, s{S_I}")
    a(f"s_lshl_b32 s{T2}, s{T2}, 2")
    a(f"s_add_u32 s{T2}, s{T2}, s{S_LW}")
    a(f"s_lshl_b32 s{T3}, s{T2}, 7")
    a(f"s_add_u32 s{T3}, s{T3}, {WS_FCS}")
    a(f"v_lshl_add_u32 v5, v1, 3, s{T3}")
    a(f"s_lshl_b32 s{T3}, s{S_RB}, 6")
    a(f"s_lshl_b32 s{T0}, s{S_LW}, 4")
    a(f"s_add_u32 s{T3}, s{T3}, s{T0}")
    a(f"s_add_u32 s{T3}, s{T3}, {WS_FST}")
    a("v_and_b32 v4, 1, v1")
    a(f"v_lshl_add_u32 v4, v4, 3, s{T3}")
    a("v_cmp_gt_u32 vcc, 16, v1")
    a(f"s_lshl_b32 s{T2}, s{T2}, 12")
    a(f"s_add_u32 s{T2}, s{T2}, {WS_CS}")
    a(f"v_cndmask_b32 v{PF+6}, v4, v5, vcc")

def cs_gather(vm):
    a("v_lshlrev_b32 v4, 4, v1")
    for q in range(4):
        vm.issue("Cs", f"buffer_load_dwordx4 {vr(GA+4*q,4)}, v4, {sr(R_WS,4)}, s{T2} offen offset:{1024*q} sc1")
    a(f"s_lshl_b32 s{T0}, s{S_RB}, 10")
    a(f"s_lshl_b32 s{T1}, s{S_LW}, 8")
    a(f"s_add_u32 s{T0}, s{T0}, s{T1}")
    a(f"s_add_u32 s{T0}, s{T0}, {WS_ST}")
    a("v_and_b32 v2, 31, v1")
    a("v_lshlrev_b32 v2, 3, v2")
    vm.issue("Cs", f"buffer_load_dwordx2 {vr(PF+12,2)}, v2, {sr(R_WS,4)}, s{T0} offen sc1")

def cs_tables(vm):
    a(f"s_lshl_b32 s{T0}, s{S_LW}, 8")
    a(f"s_add_u32 s{T1}, s{T0}, {L_STAT}")
    a(f"v_add_u32 v2, s{T1}, v2")
    a("v_and_b32 v4, 15, v1")
    a("v_lshlrev_b32 v4, 4, v4")
    a("v_lshrrev_b32 v5, 4, v1")
    a("v_lshl_add_u32 v4, v5, 2, v4")
    a(f"s_add_u32 s{T1}, s{T0}, {L_CS}")
    a(f"v_add_u32 v4, s{T1}, v4")
    vm.wait("Cs")
    a(f"ds_write_b64 v2, {vr(PF+12,2)}")
    for j in range(4): a(f"v_add_f32 v{GA+j}, v{GA+j}, v{GA+4+j}")
    for j in range(4): a(f"v_add_f32 v{GA+8+j}, v{GA+8+j}, v{GA+12+j}")
    for j in range(4): a(f"v_add_f32 v{GA+j}, v{GA+j}, v{GA+8+j}")
    a("s_nop 1")
    a(f"v_permlane32_swap_b32 v{GA}, v{GA+2}")
    a(f"v_permlane32_swap_b32 v{GA+1}, v{GA+3}")
    a(f"v_add_f32 v{GA}, v{GA}, v{GA+2}")
    a(f"v_add_f32 v{GA+1}, v{GA+1}, v{GA+3}")
    a("s_nop 1")
    a(f"v_permlane16_swap_b32 v{GA}, v{GA+1}")
    a(f"v_add_f32 v{GA}, v{GA}, v{GA+1}")
    a(f"ds_write_b32 v4, v{GA}")

def ssm_loads(vm, rnd):
    if rnd == 0:
        a(f"s_lshr_b32 s{T0}, s{S_LW}, 1")
        a(f"s_add_u32 s{S_CH}, s{S_CH}, s{T0}")
        a(f"s_lshl_b32 s{T0}, s{T0}, 12")
        a(f"s_add_u32 s{R_SSM}, s{R_SSM}, s{T0}")
        a(f"s_addc_u32 s{R_SSM+1}, s{R_SSM+1}, 0")
        a(f"s_and_b32 s{T0}, s{S_LW}, 1")
        a(f"s_lshl_b32 s{T0}, s{T0}, 11")
        a(f"v_lshl_add_u32 v{PF+2}, v1, 4, s{T0}")
    for q in range(3):
        vm.issue("H", f"buffer_load_dwordx4 {vr(HL+12*rnd+4*q,4)}, v{PF+2}, {sr(R_SSM,4)}, 0 offen offset:{1024*rnd+4*q} {OPT.nt_s}")

def h_shift(vm):
    vm.wait("H")
    for rnd in range(2):
        L0 = HL + 12 * rnd
        for i in range(4):
            a(f"v_alignbit_b32 v{HS+8*rnd+i}, v{L0+4+i}, v{L0+i}, 16")
            a(f"v_alignbit_b32 v{HS+8*rnd+4+i}, v{L0+8+i}, v{L0+4+i}, 16")

def h_write(parts=(0, 1, 2)):
    a(f"s_lshr_b32 s{T0}, s{S_LW}, 1")
    a(f"s_mul_i32 s{T1}, s{T0}, {HCH}")
    a(f"s_add_u32 s{T1}, s{T1}, {L_HB + 32}")
    a(f"v_add_u32 v4, s{T1}, v{PF+2}")
    for rnd in range(2):
        if rnd not in parts: continue
        L0 = HL + 12 * rnd
        src = [L0, HS + 8 * rnd, L0 + 4, HS + 8 * rnd + 4]
        for e in range(4):
            a(f"ds_write_b128 v4, {vr(src[e],4)} offset:{e*HCOPY+1024*rnd}")
    if 2 not in parts: return
    Z = TP
    for i in range(4): a(f"v_mov_b32 v{Z+i}, 0")
    a(f"s_mul_i32 s{T1}, s{T0}, 4608")
    a(f"s_add_u32 s{T1}, s{T1}, {L_UB + 4096}")
    a("v_and_b32 v5, 31, v1")
    a(f"v_lshl_add_u32 v5, v5, 4, s{T1}")
    a(f"ds_write_b128 v5, {vr(Z,4)}")
    skip = a.newlabel("L_hf")
    a(f"s_bitcmp1_b32 s{S_LW}, 0")
    a(f"s_cbranch_scc1 {skip}")
    Q = Z + 4
    for i in range(12): a(f"v_mov_b32 v{Q+i}, 0")
    a(f"v_lshlrev_b32 v{Q+3}, 16, v{HL}")
    a(f"v_mov_b32 v{Q+7}, v{HL}")
    a(f"v_lshlrev_b32 v{Q+10}, 16, v{HL}")
    a(f"v_mov_b32 v{Q+11}, v{HS}")
    a("v_subrev_u32 v4, 32, v4")
    a("s_mov_b64 exec, 1")
    for e in range(4):
        a(f"ds_write_b128 v4, {vr(Z,4)} offset:{e*HCOPY}")
        a(f"ds_write_b128 v4, {vr(Z if e == 0 else Q+4*(e-1),4)} offset:{e*HCOPY+16}")
    a("s_mov_b64 exec, -1")
    a.label(skip)

UL = 48
def u_loads(vm):
    a(f"s_lshl_b32 s{T0}, s{S_CH}, 12")
    a("v_lshlrev_b32 v4, 4, v1")
    for q in range(4):
        vm.issue("U", f"buffer_load_dwordx4 {vr(UL+4*q,4)}, v4, {sr(R_WS,4)}, s{T0} offen offset:{1024*q} sc1")

def cold_touch(vm):
    if not OPT.touch: return
    a(f"s_mov_b32 s{R_SSM+2}, 8192")
    a(f"s_lshl_b32 s{T0}, s{S_LW}, 11")
    a(f"v_lshlrev_b32 v{VTO}, 7, v1")
    a("s_mov_b64 exec, 0xffff")
    vm.issue("T", f"buffer_load_dword v{VTD}, v{VTO}, {sr(R_SSM,4)}, s{T0} offen")
    a("s_mov_b64 exec, -1")
    a(f"s_mov_b32 s{R_SSM+2}, 4096")
    if OPT.w2warm:
        a(f"s_mul_i32 s{T0}, s2, 7168")
        a(f"s_mul_i32 s{T1}, s{S_LW}, 1792")
        a(f"s_add_u32 s{T0}, s{T0}, s{T1}")
        a("s_mov_b64 exec, 0x3fff")
        vm.issue("T", f"buffer_load_dword v{VTD}, v{VTO}, {sr(R_W2,4)}, s{T0} offen")
        a("s_mov_b64 exec, -1")

def w2_touch(vm):
    if not OPT.w2touch: return
    a(f"v_lshlrev_b32 v{VTO}, 10, v1")
    a(f"s_mul_i32 s{T0}, s{S_LW}, {448*1024}")
    a(f"s_lshl_b32 s{T1}, s{S_I}, 7")
    a(f"s_add_u32 s{T0}, s{T0}, s{T1}")
    a(f"v_add_u32 v{VTO}, s{T0}, v{VTO}")
    a(f"v_lshrrev_b32 v4, 4, v1")
    for rr in range(2):
        a(f"s_add_u32 s{T1}, s{S_ROT}, {4*rr}")
        a(f"v_add_u32 v5, s{T1}, v4")
        a("v_cmp_le_u32 vcc, 28, v5")
        a(f"s_lshl_b32 s{T1}, s{T1}, 14")
        a(f"v_mov_b32 v6, {(-448*1024) & 0xffffffff}")
        a("v_cndmask_b32 v5, 0, v6, vcc")
        a(f"v_add3_u32 v5, v5, v{VTO}, s{T1}")
        if rr: a("s_mov_b32 exec_hi, 0xffff")
        vm.issue("T", f"buffer_load_dword v{VTD}, v5, {sr(R_W2,4)}, 0 offen")
    a("s_mov_b64 exec, -1")

def l_main():
    vm = VM(a)
    a.label("L_lstart")
    a.c("==== L wave: placement-independent start (k/v tile, ssm rows) ====")
    pol = OPT.nt_w
    with capture() as pl:
        if not OPT.p_after: prep_loads(vm)
    k = next((i for i, ln in enumerate(pl) if ln.startswith("buffer_")), 0)
    for ln in pl[:k]: a(ln)
    a(f"s_lshl_b32 s{S_CH}, s{S_XCD}, 5")
    a(f"s_add_u32 s{S_CH}, s{S_CH}, s{S_J}")
    a(f"s_lshl_b32 s{T2}, s{S_CH}, 2")
    a(f"s_lshl_b32 s{S_CH}, s{S_CH}, 1")
    a(f"s_lshl_b32 s{T3}, s{S_CH}, 12")
    a("s_waitcnt lgkmcnt(0)")
    stamp("L", "first_ld")
    for ln in pl[k:]: a(ln)
    a(f"s_load_dword s{S_D}, {sr(S_EX,2)}, s{T2}")
    late_ptrs()
    a(f"s_add_u32 s{R_SSM}, s{R_SSM}, s{T3}")
    a(f"s_addc_u32 s{R_SSM+1}, s{R_SSM+1}, 0")
    if OPT.tlb:
        a("v_and_b32 v4, 1, v1")
        a(f"v_mul_u32_u24 v4, {512*3584 - 128}, v4")
        a("s_mov_b64 exec, 3")
        for r in (R_X, R_W1, R_W3): vm.issue("T", f"buffer_load_dword v{VTD}, v4, {sr(r,4)}, 0 offen")
        a("s_mov_b64 exec, -1")
    cold_touch(vm)
    a("v_lshrrev_b32 v4, 3, v1")
    a(f"s_lshl_b32 s{T1}, s{S_LW}, 3")
    a(f"v_add_u32 v4, s{T1}, v4")
    a("v_lshlrev_b32 v4, 10, v4")
    a("v_lshrrev_b32 v5, 4, v1")
    a(f"s_and_b32 s{T1}, s{S_LW}, 1")
    a(f"s_lshl_b32 s{T1}, s{T1}, 2")
    a(f"v_add_u32 v6, s{T1}, v5")
    a("v_and_b32 v7, 7, v1")
    a("v_xor_b32 v6, v6, v7")
    a(f"v_lshl_add_u32 v{VXO}, v6, 4, v4")
    for ii in range(1, 4): a(f"v_add_u32 v{VXO+ii}, {32768*ii}, v{VXO}")
    a(f"s_lshl_b32 s{T1}, s{S_LW}, 2")
    a(f"v_add_u32 v4, s{T1}, v5")
    a("v_mul_u32_u24 v4, 3584, v4")
    a("v_lshlrev_b32 v6, 2, v5")
    a("v_and_b32 v7, 15, v1")
    a("v_xor_b32 v6, v6, v7")
    a(f"v_lshl_add_u32 v{VWO}, v6, 4, v4")
    for ii in range(1, 4): a(f"v_add_u32 v{VWO+ii}, {16*3584*ii}, v{VWO}")
    a(f"s_mul_i32 s{T5}, s{S_LW}, 12288")
    barrier()
    decode(4)
    a(f"s_cmp_eq_u32 s{S_I}, 7")
    a("s_cbranch_scc1 L_lspare")
    a(f"s_lshl_b32 s{S_XB}, s{S_RB}, 17")
    a(f"s_lshl_b32 s{S_WB}, s{S_CB}, 8")
    a(f"s_and_b32 s{S_R1}, s{S_VX}, 6")
    a(f"s_lshl_b32 s{T0}, s{S_B}, 2")
    a(f"s_add_u32 s{S_R1}, s{S_R1}, s{T0}")
    if OPT.pairswap:
        a(f"s_add_u32 s{S_G}, s{S_RB}, s{S_I}")
        a(f"s_and_b32 s{S_G}, s{S_G}, 1")
    spare_q = list(vm.q)
    def chunk(c, fill=()):
        fill = list(fill)
        per = -(-len(fill) // 12)
        sl = (c % 3) * SLOT
        if OPT.pairswap:
            a(f"s_xor_b32 s{S_OX}, s{S_G}, {c}")
            a(f"s_add_u32 s{S_OX}, s{S_R1}, s{S_OX}")
        else:
            a(f"s_add_u32 s{S_OX}, s{S_R1}, {c}")
        a(f"s_and_b32 s{S_OX}, s{S_OX}, 7")
        a(f"s_mul_i32 s{S_OW}, s{S_OX}, {64*3584}")
        a(f"s_lshl_b32 s{S_OX}, s{S_OX}, 7")
        a(f"s_add_u32 s{S_OX}, s{S_OX}, s{S_XB}")
        a(f"s_add_u32 s{S_OW}, s{S_OW}, s{S_WB}")
        for ii in range(4):
            for part, (voff, rs, so) in enumerate(((VXO, R_X, S_OX), (VWO, R_W1, S_OW), (VWO, R_W3, S_OW))):
                a(f"s_add_u32 m0, s{S_LW1K}, {sl + part*16384 + ii*4096}")
                a("s_nop 0")
                vm.issue(f"c{c}", f"buffer_load_dwordx4 v{voff+ii}, {sr(rs,4)}, s{so} offen {pol} lds")
                for ln in fill[:per]: a(ln)
                fill = fill[per:]
    def B(c):
        barrier(); stamp("L", f"B{c}")
    if OPT.lprio: a(f"s_setprio {OPT.lprio}")
    stamp("L", "first_dma")
    chunk(0)
    stamp("L", "s_c0iss")
    if not OPT.p_after:
        vm.wait("P")
        stamp("L", "s_P")
        prep_compute(pk=True)
        stamp("L", "s_prep")
    chunk(1)
    stamp("L", "s_c1iss")
    decode2(); w2_setup()
    vm.wait("c0", "lgkmcnt(0)"); stamp("L", "c0"); B(-1)
    if not OPT.p_after: prep_store(vm)
    vm.issue("N", nonce_issue(PF + 4))
    chunk(2)
    if OPT.p_after: prep_loads(vm)
    vm.wait("c1"); B(0)
    cs_read()
    a("s_waitcnt lgkmcnt(0)")
    with capture() as pc: cs_sum()
    chunk(3, pc)
    vm.wait("c2")
    nonce_check(PF + 4)
    a(f"v_mov_b32 v4, {L_NONCE}")
    a(f"ds_write_b64 v4, {vr(PF+4,2)}")
    a("s_waitcnt lgkmcnt(0)"); B(1)
    if not OPT.p_after:
        fu_flag(vm); stamp("L", "fu_flag")
    cs_publish(vm)
    pc = []
    if OPT.p_after:
        vm.wait("P")
        with capture() as pc: prep_compute()
    half = len(pc) // 2
    chunk(4, pc[:half])
    vm.wait("c3"); B(2)
    chunk(5, pc[half:])
    vm.wait("c4", "lgkmcnt(0)"); cs_flag(vm); B(3)
    if OPT.p_after: prep_store(vm)
    chunk(6)
    ssm_loads(vm, 0); ssm_loads(vm, 1)
    cs_poll_addr()
    vm.wait("S" if OPT.p_after else "c5"); B(4)
    if OPT.p_after: fu_flag(vm)
    chunk(7)
    poll_issue(vm, PF + 8, PF + 6, "P2")
    fu_addr()
    spoll_issue(S_PB, T4, 32)
    h_shift(vm)
    B(5)
    poll_check(vm, PF + 8, PF + 6, "P2")
    stamp("L", "m_csseen")
    cs_gather(vm)
    a("s_waitcnt lgkmcnt(0)")
    spoll_test(S_PB, 32, 1)
    a(f"s_cselect_b32 s{T3}, 1, 0")
    a("s_cbranch_scc1 L_ulate")
    u_loads(VM(a))
    a.label("L_ulate")
    h_write((0,))
    vm.wait("c7"); B(6); stamp("L", "m_b6")
    a(f"s_mov_b32 s{S_KW}, s{S_ROT}")
    cs_tables(vm)
    h_write((1,))
    if OPT.ring_early:
        for s in range(6): w2_kstep(vm, s, "w0")
    a("s_waitcnt lgkmcnt(0)")
    stamp("L", "pre_b7")
    B(7)
    for s in range(6 if OPT.ring_early else 0, 12): w2_kstep(vm, s, "w0")
    stamp("L", "m_w2iss")
    h_write((2,))
    a("v_lshlrev_b32 v4, 4, v1")
    a(f"s_cmp_eq_u32 s{T3}, 0")
    a("s_cbranch_scc1 L_conv")
    spoll(S_PB, T4, 32, 1)
    u_loads(VM(a))
    a("s_waitcnt vmcnt(0)")
    a("s_branch L_conv")
    return spare_q

def spare(spare_q):
    vm = VM(a)
    stamp_on[0] = False
    a.label("L_cspare")
    a.c("==== spare work-group, C waves ====")
    XS, SU = 32, 16
    a("v_lshrrev_b32 v4, 3, v1")
    a(f"s_lshl_b32 s{T1}, s{S_TB}, 6")
    a(f"s_lshl_b32 s{T0}, s{S_WAVE}, 4")
    a(f"s_add_u32 s{T1}, s{T1}, s{T0}")
    a(f"v_add_u32 v5, s{T1}, v4")
    a("v_lshlrev_b32 v5, 10, v5")
    a("v_and_b32 v6, 7, v1")
    a("v_lshl_add_u32 v7, v6, 4, v5")
    a(f"s_mov_b32 s{T2}, 8192")
    for g in range(2):
        for kc in range(8):
            vm.issue(f"xs{g}", f"buffer_load_dwordx4 {vr(XS+32*g+4*kc,4)}, v7, {sr(R_X,4)}, {'s%d' % T2 if g else '0'} offen offset:{128*kc}")
    vm.issue("N", nonce_issue(12))
    a(f"s_mov_b32 s{S_ONES}, 0x3f803f80")
    a(f"s_lshl_b32 s{T2}, s{S_B}, 9")
    a(f"s_lshl_b32 s{T0}, s{T0}, 3")
    a(f"s_add_u32 s{T2}, s{T2}, s{T0}")
    a(f"s_add_u32 s{T2}, s{T2}, {L_STAT}")
    a("v_lshlrev_b32 v9, 3, v4")
    a(f"v_add_u32 v8, s{T2}, v9")
    a(f"s_lshl_b32 s{T1}, s{T1}, 3")
    a(f"s_add_u32 s{T1}, s{T1}, {WS_ST}")
    a(f"s_mov_b32 s{S_EX}, 0x01010101")
    a(f"s_mov_b32 s{S_EX+1}, 0x01010101")
    for g in range(2):
        for i in range(4): a(f"v_mov_b32 v{SU+i}, 0")
        vm.wait(f"xs{g}")
        for i in range(32):
            a(f"v_dot2c_f32_bf16 v{SU+(i&1)}, s{S_ONES}, v{XS+32*g+i}")
            a(f"v_dot2c_f32_bf16 v{SU+2+(i&1)}, v{XS+32*g+i}, v{XS+32*g+i}")
        a("s_nop 2")
        a(f"v_add_f32 v{SU}, v{SU}, v{SU+1}")
        a(f"v_add_f32 v{SU+2}, v{SU+2}, v{SU+3}")
        for dpp in ("quad_perm:[1,0,3,2]", "quad_perm:[2,3,0,1]", "row_half_mirror"):
            a("s_nop 0")
            a(f"v_add_f32_dpp v{SU}, v{SU}, v{SU} {dpp} row_mask:0xf bank_mask:0xf")
            a("s_nop 0")
            a(f"v_add_f32_dpp v{SU+2}, v{SU+2}, v{SU+2} {dpp} row_mask:0xf bank_mask:0xf")
        M = 20 + 2 * g
        a(f"v_mul_f32 v{M}, 0x3b000000, v{SU}")
        a(f"v_mul_f32 v6, 0x3b000000, v{SU+2}")
        a(f"v_fma_f32 v6, -v{M}, v{M}, v6")
        a("v_max_f32 v6, 0, v6")
        a("v_add_f32 v6, 0x3727c5ac, v6")
        a(f"v_rsq_f32 v{M+1}, v6")
        a(f"s_mov_b64 exec, {sr(S_EX,2)}")
        a(f"ds_write_b64 v8, {vr(M,2)} offset:{64*g}")
        vm.issue("st", f"buffer_store_dwordx2 {vr(M,2)}, v9, {sr(R_WS,4)}, s{T1} offen offset:{64*g} sc1")
        a("s_mov_b64 exec, -1")
    a(f"s_lshl_b32 s{T0}, s{S_TB}, 2")
    a(f"s_add_u32 s{T0}, s{T0}, s{S_WAVE}")
    a(f"s_lshl_b32 s{T0}, s{T0}, 3")
    a(f"s_add_u32 s{T0}, s{T0}, {WS_FST}")
    vm.waitall("lgkmcnt(0)")
    nonce_check(12)
    lds_add(L_SP3, 4, 5)
    flag_store(vm, 14, T0)
    lds_wait(L_SP3, 4, 4, 5)
    if OPT.sp_w2:
        if OPT.sp_delay: lds_wait(L_SP2, 4, 4, 5)
        a(f"s_and_b32 s{T0}, s{S_RB}, 3")
        a(f"s_mul_i32 s{T0}, s{T0}, {448*1024}")
        a("v_lshlrev_b32 v4, 7, v1")
        a(f"v_add_u32 v4, s{T0}, v4")
        a(f"s_mul_i32 s{T1}, s{S_VX}, 7")
        a(f"s_add_u32 s{T1}, s{T1}, s{S_WAVE}")
        a(f"s_mov_b32 s{T2}, 14")
        a.label("L_spw2")
        a(f"s_cmp_ge_u32 s{T1}, 56")
        a(f"s_cselect_b32 s{T0}, 56, 0")
        a(f"s_sub_u32 s{T1}, s{T1}, s{T0}")
        a(f"s_lshl_b32 s{T0}, s{T1}, 13")
        a(f"buffer_load_dword v25, v4, {sr(R_W2,4)}, s{T0} offen")
        a(f"s_add_u32 s{T1}, s{T1}, 4")
        a(f"s_sub_u32 s{T2}, s{T2}, 1")
        a(f"s_cmp_lg_u32 s{T2}, 0")
        a("s_cbranch_scc1 L_spw2")
    a("s_branch L_cE")
    a.label("L_lspare")
    vm = VM(a); vm.q = list(spare_q)
    decode2(); w2_setup()
    if OPT.p_after: prep_loads(vm)
    vm.issue("N", nonce_issue(PF + 4))
    ssm_loads(vm, 0); ssm_loads(vm, 1)
    vm.wait("P")
    prep_compute(pk=True)
    a("s_waitcnt lgkmcnt(0)")
    lds_add(L_SP1, 4, 5); lds_wait(L_SP1, 4, 4, 5)
    prep_store(vm)
    h_shift(vm); h_write()
    vm.wait("N"); nonce_check(PF + 4)
    vm.wait("S")
    lds_add(L_SP2, 4, 5); lds_wait(L_SP2, 4, 4, 5)
    fu_flag(vm)
    a(f"s_mov_b32 s{S_KW}, s{S_ROT}")
    for s in range(12): w2_kstep(vm, s, "w0")
    fu_addr()
    spoll(S_PB, T4, 32, 1, sleep=16)
    u_loads(vm)
    vm.waitall()
    stamp_on[0] = True

def l_conv():
    vm = VM(a)
    a.label("L_conv")
    a.c("==== L wave: long convolution ====")
    CA, CB, YA = 10, 11, 12
    FA = [64, 128]; FB = [96, 160]; ACC = 192
    a(f"s_lshr_b32 s{T0}, s{S_LW}, 1")
    a(f"s_mul_i32 s{T1}, s{T0}, 4608")
    a(f"s_add_u32 s{T1}, s{T1}, {L_UB}")
    a(f"v_add_u32 v14, s{T1}, v4")
    a("v_and_b32 v5, 15, v1")
    a("v_lshrrev_b32 v6, 4, v1")
    a("v_lshlrev_b32 v7, 1, v5")
    a("v_sub_u32 v7, v6, v7")
    a("v_add_u32 v7, 30, v7")
    a(f"v_lshl_add_u32 v{CB}, v7, 4, s{T1}")
    a("v_lshlrev_b32 v7, 2, v5")
    a("v_add_u32 v7, v7, v6")
    a("v_lshlrev_b32 v13, 3, v7")
    a(f"s_and_b32 s{T2}, s{S_LW}, 1")
    a(f"s_lshl_b32 s{T4}, s{T2}, 11")
    a(f"s_sub_u32 s{T1}, s{T1}, s{T4}")
    a(f"s_add_u32 s{T1}, s{T1}, {504 + 2048}")
    a(f"v_sub_u32 v{YA}, s{T1}, v13")
    a("v_add_u32 v5, 1, v5")
    a("v_and_b32 v7, 3, v5")
    a("v_sub_u32 v5, v5, v7")
    a("v_lshl_add_u32 v5, v6, 3, v5")
    a("v_lshlrev_b32 v5, 1, v5")
    a(f"v_mul_u32_u24 v7, {HCOPY}, v7")
    a(f"s_mul_i32 s{T1}, s{T0}, {HCH}")
    a(f"s_lshl_b32 s{T4}, s{T2}, 8")
    a(f"s_add_u32 s{T1}, s{T1}, s{T4}")
    a(f"s_add_u32 s{T1}, s{T1}, {L_HB}")
    a(f"v_add3_u32 v{CA}, v5, v7, s{T1}")
    a(f"v_add_u32 v{CB}, s{T4}, v{CB}")
    for r in range(ACC, ACC + 32): a(f"v_mov_b32 v{r}, 0")
    a(f"s_lshl_b32 s{T3}, s{S_LW}, 2")
    a(f"s_add_u32 s{T3}, s{T3}, {L_RING}")
    a("s_waitcnt vmcnt(24)")
    for q in range(4):
        a(f"ds_write_b128 v14, {vr(UL+4*q,4)} offset:{1024*q}")
    a("s_waitcnt lgkmcnt(0)")
    lds_add(L_ECNT, 4, 5)
    a("s_waitcnt vmcnt(0)")
    lds_add((T3,), 4, 5)
    stamp("L", "pre_E")
    lds_wait(L_ECNT, 8, 4, 5)
    stamp("L", "m_go")
    if OPT.cprio: a(f"s_setprio {OPT.cprio}")
    a(f"s_mov_b32 s{T2}, 0")
    def reads(b, extra):
        R = []
        for k in range(8):
            R.append(f"ds_read_b64 {vr(FA[b]+4*k,2)}, v{CA} offset:{512*k+extra}")
            R.append(f"ds_read_b64 {vr(FA[b]+4*k+2,2)}, v{CA} offset:{512*k+8+extra}")
            R.append(f"ds_read_b128 {vr(FB[b]+4*k,4)}, v{CB} offset:{512*(7-k)+extra}")
        return R
    for r in reads(0, 0): a(r)
    a(".p2align 3")
    a.label("L_conv_loop")
    for b in range(2):
        nxt = reads(b ^ 1, 64 * (b + 1))
        a("s_waitcnt lgkmcnt(0)")
        mf = [(n, s1) for s1 in range(8) for n in range(s1, 8)]
        for idx, (n, s1) in enumerate(mf):
            d = vr(ACC + 4 * n, 4)
            a(f"v_mfma_f32_16x16x32_bf16 {d}, {vr(FA[b]+4*s1,4)}, {vr(FB[b]+4*(n-s1),4)}, {d}")
            if idx < len(nxt): a(nxt[idx])
            if b == 1 and idx == len(mf) - 3:
                a(f"v_add_u32 v{CA}, 128, v{CA}")
                a(f"v_add_u32 v{CB}, 128, v{CB}")
                a(f"s_add_u32 s{T2}, s{T2}, 1")
                a(f"s_cmp_lt_u32 s{T2}, 2")
    a("s_cbranch_scc1 L_conv_loop")
    stamp("L", "conv_end")
    a(f"s_lshl_b32 s{T0}, s{S_LW}, 12")
    a(f"s_add_u32 s{T0}, s{T0}, {L_XCH}")
    a(f"v_lshl_add_u32 v14, v1, 4, s{T0}")
    a(f"s_xor_b32 s{T1}, s{S_LW}, 1")
    a(f"s_lshl_b32 s{T1}, s{T1}, 12")
    a(f"s_add_u32 s{T1}, s{T1}, {L_XCH}")
    a(f"v_lshl_add_u32 v15, v1, 4, s{T1}")
    a(f"v_add_u32 v13, s{T1}, v13")
    a(f"s_lshr_b32 s{T4}, s{S_LW}, 1")
    a(f"s_lshl_b32 s{T4}, s{T4}, 2")
    a(f"s_add_u32 s{T4}, s{T4}, {L_PAIR}")
    a(f"s_bitcmp1_b32 s{S_LW}, 0")
    a("s_waitcnt lgkmcnt(0)")
    a("s_cbranch_scc1 L_xch1")
    for ti in range(4): a(f"ds_write_b128 v14, {vr(ACC+16+4*ti,4)} offset:{1024*ti}")
    a("s_branch L_xch2")
    a.label("L_xch1")
    for ti in range(4): a(f"ds_write_b128 v14, {vr(ACC+4*ti,4)} offset:{1024*ti}")
    a("s_nop 1")
    for r in range(16): a(f"v_mov_b32 v{ACC+r}, v{ACC+16+r}")
    a.label("L_xch2")
    for ti in range(4):
        a(f"ds_read_b64 {vr(32+2*ti,2)}, v{YA} offset:{512*(3-ti)}")
    a(f"s_bitcmp1_b32 s{S_CH}, 0")
    a(f"s_cselect_b32 s{T3}, 0, 16")
    a(f"s_lshl_b32 s{T3}, s{S_D}, s{T3}")
    a(f"s_and_b32 s{T3}, s{T3}, 0xffff0000")
    a("s_waitcnt lgkmcnt(0)")
    lds_add((T4,), 4, 5)
    for ti in range(4):
        u = 32 + 2 * ti; t = 40 + 4 * ti; y = ACC + 4 * ti
        a(f"v_and_b32 v{t}, 0xffff0000, v{u+1}")
        a(f"v_lshlrev_b32 v{t+1}, 16, v{u+1}")
        a(f"v_and_b32 v{t+2}, 0xffff0000, v{u}")
        a(f"v_lshlrev_b32 v{t+3}, 16, v{u}")
        for r in range(4): a(f"v_fmac_f32 v{y+r}, s{T3}, v{t+r}")
    lds_wait((T4,), 2, 4, 5)
    stamp("L", "m_xch")
    for ti in range(4): a(f"ds_read_b128 {vr(40+4*ti,4)}, v15 offset:{1024*ti}")
    a(f"s_and_b32 s{T1}, s{S_LW}, 1")
    a(f"s_lshl_b32 s{T1}, s{T1}, 11")
    a(f"s_lshl_b32 s{T0}, s{S_CH}, 12")
    a(f"s_add_u32 s{T0}, s{T0}, s{T1}")
    a(f"s_add_u32 s{T0}, s{T0}, {WS_Y}")
    a("v_lshlrev_b32 v5, 4, v1")
    a("s_waitcnt lgkmcnt(0)")
    for ti in range(4):
        u = 32 + 2 * ti; t = 40 + 4 * ti; y = ACC + 4 * ti
        for r in range(4): a(f"v_add_f32 v{y+r}, v{y+r}, v{t+r}")
        a(f"v_cvt_pk_bf16_f32 v{u}, v{y}, v{y+1}")
        a(f"v_cvt_pk_bf16_f32 v{u+1}, v{y+2}, v{y+3}")
        a(f"ds_write_b64 v13, {vr(u,2)} offset:{512*ti}")
    a("s_waitcnt lgkmcnt(0)")
    a("ds_read_b128 v[40:43], v15")
    a("ds_read_b128 v[44:47], v15 offset:1024")
    a("s_waitcnt lgkmcnt(0)")
    a(f"buffer_store_dwordx4 v[40:43], v5, {sr(R_WS,4)}, s{T0} offen sc1")
    a(f"buffer_store_dwordx4 v[44:47], v5, {sr(R_WS,4)}, s{T0} offen offset:1024 sc1")
    if OPT.cprio: a("s_setprio 0")
    stamp("L", "m_yst")
    a(f"s_lshl_b32 s{T0}, s{S_XCD}, 10")
    a(f"s_lshl_b32 s{T2}, s{S_J}, 2")
    a(f"s_add_u32 s{T0}, s{T0}, s{T2}")
    a(f"s_add_u32 s{T0}, s{T0}, {WS_FY}")
    a("v_lshlrev_b32 v17, 7, v1")
    a(f"v_mov_b32 v16, s{S_NONCE}")
    a(f"v_mov_b32 v18, {L_YCNT}")
    a("v_mov_b32 v19, 1")
    vm.waitall()
    a("s_mov_b64 exec, 1")
    a("ds_add_rtn_u32 v19, v18, v19")
    a("s_waitcnt lgkmcnt(0)")
    a(f"v_readfirstlane_b32 s{T2}, v19")
    a("s_mov_b64 exec, 0xff")
    a(f"s_cmp_lg_u32 s{T2}, 3")
    a("s_cbranch_scc1 L_ynopub")
    a(f"buffer_store_dword v16, v17, {sr(R_WS,4)}, s{T0} offen sc1")
    a.label("L_ynopub")
    a("s_mov_b64 exec, -1")
    stamp("L", "y_flag")
    final_x_load(vm)
    a(f"s_lshl_b32 s{T4}, s{S_I}, 3")
    a(f"s_add_u32 s{T4}, s{T4}, s{S_VX}")
    a(f"s_lshl_b32 s{T4}, s{T4}, 7")
    a(f"s_add_u32 s{T4}, s{T4}, {WS_FY}")
    a("v_lshrrev_b32 v4, 3, v1")
    a("v_lshlrev_b32 v4, 12, v4")
    a("v_and_b32 v5, 7, v1")
    a("v_lshl_add_u32 v4, v5, 4, v4")
    a(f"s_lshl_b32 s{T2}, s{S_I}, 18")
    a(f"s_lshl_b32 s{T3}, s{S_LW}, 16")
    a(f"s_add_u32 s{T2}, s{T2}, s{T3}")
    a(f"s_lshl_b32 s{T3}, s{S_TB}, 7")
    a(f"s_add_u32 s{T2}, s{T2}, s{T3}")
    a(f"s_add_u32 s{T2}, s{T2}, {WS_Y}")
    a(f"s_add_u32 s{T3}, s{T2}, 32768")
    a(f"s_cmp_lg_u32 s{S_LW}, 0")
    a("s_cbranch_scc1 L_ywait")
    spoll(S_PB, T4, 32, 1)
    lds_wait(L_YCNT, 4, 6, 7)
    lds_add(L_YOK, 6, 7)
    a.label("L_ywait")
    lds_wait(L_YOK, 1, 6, 7)
    stamp("L", "y_seen")
    vm.issue("Y", f"buffer_load_dwordx4 v[40:43], v4, {sr(R_WS,4)}, s{T2} offen sc1")
    vm.issue("Y", f"buffer_load_dwordx4 v[44:47], v4, {sr(R_WS,4)}, s{T3} offen sc1")
    a("v_bfe_u32 v4, v1, 2, 2")
    a("v_lshlrev_b32 v4, 7, v4")
    a("v_lshrrev_b32 v5, 4, v1")
    a("v_lshl_add_u32 v4, v5, 5, v4")
    a("v_and_b32 v5, 3, v1")
    a("v_lshl_add_u32 v4, v5, 3, v4")
    a(f"s_lshl_b32 s{T0}, s{S_LW}, 11")
    a(f"s_add_u32 s{T0}, s{T0}, {L_YS}")
    a(f"v_add_u32 v4, s{T0}, v4")
    a("v_mul_u32_u24 v5, 144, v1")
    a(f"s_lshl_b32 s{T0}, s{S_LW}, 5")
    a(f"s_add_u32 s{T0}, s{T0}, {L_YT}")
    a(f"v_add_u32 v5, s{T0}, v5")
    a(f"s_lshl_b32 s{T0}, s{S_LW}, 11")
    a(f"s_add_u32 s{T0}, s{T0}, {L_YS}")
    a(f"v_lshl_add_u32 v14, v1, 4, s{T0}")
    vm.waitall()
    a("ds_write_b128 v14, v[40:43]")
    a("ds_write_b128 v14, v[44:47] offset:1024")
    a("s_waitcnt lgkmcnt(0)")
    for dd in range(4):
        a(f"ds_read_b64_tr_b16 {vr(48+2*dd,2)}, v4 offset:{512*dd}")
    a("s_waitcnt lgkmcnt(0)")
    a("ds_write_b128 v5, v[48:51]")
    a("ds_write_b128 v5, v[52:55] offset:16")
    stamp("L", "pre_final")

def build():
    prologue()
    c_start()
    c_g1()
    c_g2()
    q = l_main()
    spare(q)
    l_conv()
    final()
    a.label("L_code_end")
    hdr = open("recurrent_scan__ssm_conv_h3__glu_gated_swiglu__prompt.s.ref").read().split("; Override launch")[0]
    return f"""{hdr}; Generated by gen/gen.py (hand-written generator; one fused persistent kernel).
; @launch grid=(256,1,1) block=(512,1,1) lds={LDS_BYTES}
.amdgcn_target "amdgcn-amd-amdhsa--gfx950"
.text
.globl {NAME}
.p2align 8
.type {NAME},@function
{NAME}:
{a.text()}
.section .rodata,"a"
.p2align 6
.amdhsa_kernel {NAME}
  .amdhsa_next_free_vgpr 256
  .amdhsa_next_free_sgpr 102
  .amdhsa_accum_offset 256
  .amdhsa_group_segment_fixed_size 0
  .amdhsa_kernarg_size 104
  .amdhsa_user_sgpr_count 2
  .amdhsa_user_sgpr_kernarg_segment_ptr 1
  .amdhsa_system_sgpr_workgroup_id_x 1
  .amdhsa_float_denorm_mode_32 3
.end_amdhsa_kernel
"""

if __name__ == "__main__":
    out = sys.argv[1]
    for kv in sys.argv[2:]:
        k, v = kv.split("=")
        cur = getattr(OPT, k)
        setattr(OPT, k, type(cur)(int(v)) if isinstance(cur, (bool, int)) else v)
    s = build()
    open(out, "w").write(s)
    if OPT.prof:
        import json
        json.dump(nstamp, open(out + ".stamps.json", "w"))
```

```python
import sys
from asmlib import Asm, VM, vr, sr

NAME = "recurrent_scan__ssm_conv_h3__glu_gated_swiglu__prompt_kernel"

class Opt:
    prof = False
    x_bst = False
    nt_k = ""
    nt_v = ""
    nt_s = ""
    nt_w = ""
    code_pf = True
    prio = False
    cprio = 2
    gprio = 3
    x_st = False
    p_after = False
    tlb = False
    tlb2 = 0
    x_enc = ""
    x_delay = 0
    x_delay_end = 0
    pairswap = False
    sp_delay = True
    w2warm = False
    w2t_at = 4
    lprio = 0
    late_st = False
    kvtouch = False
    touch = True
    touch_at = 2
    w2touch = False
    ring_early = False
    sp_w2 = True
    rot1 = 8
    rot2 = 2
    ticket = True
    x_g2st = False
    x_hmode = 0
    x_hst = "sc1"
    x_mid = False
    h_ld = "sc1"
    nbk = 6
OPT = Opt()

WS_UT = 0
WS_Y = 2 << 20
WS_H = 4 << 20
WS_CS = 12 << 20
WS_ST = WS_CS + (256 << 10)
WS_FU = WS_ST + (16 << 10)
WS_FCS = WS_FU + (16 << 10)
WS_FST = WS_FCS + (16 << 10)
WS_FH = WS_FST + (16 << 10)
WS_FY = WS_FH + (16 << 10)
WS_TK = WS_FY + (16 << 10)
WS_PROF = 13 << 20
WS_SIZE = 16 << 20

SLOT = 49152
L_HB = 98304
HCOPY = 4160
HCH = 4 * HCOPY
L_UB = L_HB + 2 * HCH
L_YT = L_UB + 2 * 4608
L_XCH = L_YT
L_YS = L_HB
L_SCR = 147456
L_CSP = L_SCR + 8320
L_TAPS = L_CSP + 4096
L_STAT = L_TAPS + 1024
L_CS = L_STAT + 1024
L_NONCE = L_CS + 1024
L_YCNT = L_NONCE + 8
L_ECNT = L_NONCE + 12
L_RING = L_NONCE + 16
L_PAIR = L_NONCE + 32
L_YOK = L_NONCE + 40
L_SP1 = L_NONCE + 44
L_SP2 = L_NONCE + 48
L_SP3 = L_NONCE + 52
L_VID = L_NONCE + 56
L_STP = L_NONCE + 64
LDS_BYTES = 163840
assert L_XCH + 16384 <= L_TAPS and L_STP + 64 <= LDS_BYTES

S_WAVE, S_XCD, S_J, S_RB, S_I = 3, 4, 5, 6, 7
STAMP0 = 8
NSTAMP = 10
S_ROT, S_SPIN = 32, 33
S_B, S_CB = 34, 35
R_X, R_WS, R_OUT, R_W1, R_W3, R_K, R_V, R_SH, R_SSM, R_DBG, R_WT, R_W2 = 36, 40, 44, 48, 52, 56, 60, 64, 68, 72, 76, 28
S_PB = 48
S_PC = 56
S_TB, S_LW = 80, 81
S_NONCE = 82
S_D = 84
T0, T1, T2, T3, T4, T5 = 85, 86, 87, 88, 89, 90
S_LW1K = 91
S_OX, S_OW = 92, 93
S_CH = 94
S_ONES = 95
S_R1 = 95
S_VX, S_VJ = 0, 1
S_XB, S_WB = 77, 78
S_G = 76
S_EX = 96
S_ST0 = 98
S_RT0 = 100
SPIN_MAX = 0x40000
NLOG2E = 0xbfb8aa3b
NLN2 = 0xbf317218

a = Asm()
nstamp = {}

class capture:
    def __enter__(self):
        self.saved = a.L; a.L = []; return a.L
    def __exit__(self, *e):
        a.L = self.saved

stamp_on = [True]
def stamp(role, name):
    if OPT.x_enc == f"{role}:{name}" and stamp_on[0]:
        a(f"s_memrealtime {sr(8,2)}")
    if not OPT.prof or not stamp_on[0]: return
    if role == "L" and OPT.x_bst != name.startswith("B"): return
    if role == "L" and name.startswith("s_") and not OPT.x_st: return
    if role == "L" and OPT.x_st and not name.startswith(("s_", "first", "c0", "fu_")): return
    if role == "L" and name.startswith("m_") and not OPT.x_mid: return
    if role == "L" and OPT.x_mid and name in ("first_ld", "first_dma", "c0", "fu_flag", "m_csseen", "m_b6", "m_w2iss", "m_useen"): return
    if role == "C" and OPT.x_g2st and not name.startswith(("k", "h_", "g2", "E")): return
    if role == "C" and not OPT.x_g2st and name.startswith("k"): return
    k = nstamp.setdefault(role, [])
    idx = len(k)
    assert idx < NSTAMP, "too many stamps"
    k.append(name)
    a(f"s_memtime {sr(STAMP0 + 2 * idx, 2)}")

def barrier():
    a("s_barrier")

def read_nonce(vtmp):
    a(f"v_mov_b32 v{vtmp+2}, {L_NONCE}")
    a(f"ds_read_b64 {vr(vtmp,2)}, v{vtmp+2}")
    a("s_waitcnt lgkmcnt(0)")
    a(f"v_readfirstlane_b32 s{S_NONCE}, v{vtmp}")
    a(f"v_readfirstlane_b32 s{S_NONCE+1}, v{vtmp+1}")

def flag_store(vm, vtmp, s_off, tag="flag"):
    a(f"v_mov_b32 v{vtmp}, s{S_NONCE}")
    a(f"v_mov_b32 v{vtmp+1}, s{S_NONCE+1}")
    a("s_mov_b64 exec, 1")
    vm.issue(tag, f"buffer_store_dwordx2 {vr(vtmp,2)}, off, {sr(R_WS,4)}, s{s_off} sc1")
    a("s_mov_b64 exec, -1")

def poll_issue(vm, vdst, voff, tag):
    vm.issue(tag, f"buffer_load_dwordx2 {vr(vdst,2)}, v{voff}, {sr(R_WS,4)}, 0 offen sc1")

def poll_check(vm, vdst, voff, tag, sleep=2):
    ok = a.newlabel("L_pok"); again = a.newlabel("L_pagain")
    vm.wait(tag)
    a(f"v_cmp_ne_u64 vcc, {sr(S_NONCE,2)}, {vr(vdst,2)}")
    a(f"s_cbranch_vccz {ok}")
    a(f"s_mov_b32 s{S_SPIN}, {SPIN_MAX}")
    a.label(again)
    a(f"s_sub_u32 s{S_SPIN}, s{S_SPIN}, 1")
    a(f"s_cbranch_scc1 {ok}")
    a(f"s_sleep {sleep}")
    a(f"buffer_load_dwordx2 {vr(vdst,2)}, v{voff}, {sr(R_WS,4)}, 0 offen sc1")
    a("s_waitcnt vmcnt(0)")
    a(f"v_cmp_ne_u64 vcc, {sr(S_NONCE,2)}, {vr(vdst,2)}")
    a(f"s_cbranch_vccnz {again}")
    a.label(ok)

def spoll_issue(pb, s_off, nd):
    a(f"s_load_dwordx16 {sr(pb,16)}, {sr(R_WS,2)}, s{s_off} glc")
    if nd > 16:
        a(f"s_add_u32 s{T0}, s{s_off}, 64")
        a(f"s_load_dwordx16 {sr(pb+16,16)}, {sr(R_WS,2)}, s{T0} glc")

def spoll_test(pb, nd, words):
    ref = S_NONCE if words == 2 else S_EX
    for p in range(nd // 2):
        a(f"s_xor_b64 {sr(pb+2*p,2)}, {sr(pb+2*p,2)}, {sr(ref,2)}")
        if p: a(f"s_or_b64 {sr(pb,2)}, {sr(pb,2)}, {sr(pb+2*p,2)}")

def spoll(pb, s_off, n, words, sleep=4):
    ok = a.newlabel("L_sok"); again = a.newlabel("L_sagain")
    nd = n * words
    a(f"s_mov_b32 s{S_SPIN}, {SPIN_MAX}")
    a.label(again)
    spoll_issue(pb, s_off, nd)
    a(f"s_sub_u32 s{S_SPIN}, s{S_SPIN}, 1")
    a(f"s_cbranch_scc1 {ok}")
    a("s_waitcnt lgkmcnt(0)")
    spoll_test(pb, nd, words)
    a(f"s_cbranch_scc0 {ok}")
    a(f"s_sleep {sleep}")
    a(f"s_branch {again}")
    a.label(ok)

def lds_add(addr, v0_, v1_):
    a(f"v_mov_b32 v{v0_}, {addr}" if isinstance(addr, int) else f"v_mov_b32 v{v0_}, s{addr[0]}")
    a(f"v_mov_b32 v{v1_}, 1")
    a("s_mov_b64 exec, 1")
    a(f"ds_add_u32 v{v0_}, v{v1_}")
    a("s_mov_b64 exec, -1")

def lds_wait(addr, val, v0_, v1_):
    ok = a.newlabel("L_lok"); again = a.newlabel("L_lagain")
    a(f"v_mov_b32 v{v0_}, {addr}" if isinstance(addr, int) else f"v_mov_b32 v{v0_}, s{addr[0]}")
    a.label(again)
    a(f"ds_read_b32 v{v1_}, v{v0_}")
    a("s_waitcnt lgkmcnt(0)")
    a(f"v_cmp_eq_u32 vcc, {val}, v{v1_}")
    a(f"s_cbranch_vccnz {ok}")
    a("s_sleep 1")
    a(f"s_branch {again}")
    a.label(ok)

def unpack(dst, src):
    a(f"v_lshlrev_b32 v{dst}, 16, v{src}")
    a(f"v_and_b32 v{dst+1}, 0xffff0000, v{src}")

FIRST_A = ((R_WS, 96), (R_K, 8), (R_V, 16), (R_SH, 24), (R_SSM, 32), (R_DBG, 88), (S_EX, 40))
LATE_A = ((R_X, 0), (R_W1, 56), (R_W3, 64), (R_W2, 72), (R_OUT, 80))
FIRST_B = ((R_WS, 96), (R_X, 0), (R_W1, 56), (R_W3, 64), (R_SSM, 32), (R_DBG, 88), (S_EX, 40))
LATE_B = ((R_K, 8), (R_V, 16), (R_SH, 24), (R_W2, 72), (R_OUT, 80))
def prologue():
    a("s_cmp_ge_u32 s2, 256")
    a("s_cbranch_scc1 L_end")
    for r, off in (FIRST_B if OPT.p_after else FIRST_A):
        a(f"s_load_dwordx2 {sr(r,2)}, s[0:1], {off}")
    if OPT.x_enc:
        a(f"s_memrealtime {sr(S_RT0,2)}")
        a(f"s_memrealtime {sr(8,2)}")
    if OPT.prof:
        a(f"s_memtime {sr(S_ST0,2)}")
        a(f"s_memrealtime {sr(S_RT0,2)}")
    for _ in range(OPT.x_delay): a("s_sleep 125")
    a("v_lshrrev_b32 v2, 6, v0")
    a("v_and_b32 v1, 63, v0")
    a(f"s_and_b32 s{S_XCD}, s2, 7")
    a(f"v_readfirstlane_b32 s{S_WAVE}, v2")
    a(f"s_lshr_b32 s{S_J}, s2, 3")
    if OPT.code_pf:
        skip = a.newlabel("L_nopf")
        a(f"s_cmp_lg_u32 s{S_WAVE}, 2")
        a(f"s_cbranch_scc1 {skip}")
        a(f"s_getpc_b64 {sr(T3,2)}")
        a.label("L_pcref")
        a(f"s_add_u32 s{T0}, s{S_J}, s2")
        a(f"s_and_b32 s{T0}, s{T0}, 3")
        a(f"v_lshl_add_u32 v2, s{T0}, 6, v1")
        a("v_lshlrev_b32 v2, 7, v2")
        a("v_min_u32 v2, L_code_end-L_pcref-4, v2")
        a(f"global_load_dword v24, v2, {sr(T3,2)}")
        a.label(skip)
    a(f"s_and_b32 s{S_LW}, s{S_WAVE}, 3")
    a(f"s_lshl_b32 s{S_LW1K}, s{S_LW}, 10")
    for r, size in ((R_WS, WS_SIZE), (R_K, 2 << 20), (R_V, 2 << 20), (R_SH, 4096), (R_SSM, 4096), (R_DBG, 256),
                    (R_X, 2 << 20), (R_W1, 512 * 3584), (R_W3, 512 * 3584), (R_W2, 1792 * 1024), (R_OUT, 2 << 20)):
        a(f"s_mov_b32 s{r+2}, {size}")
        a(f"s_mov_b32 s{r+3}, 0x20000")
    a(f"s_cmp_ge_u32 s{S_WAVE}, 4")
    a("s_cbranch_scc1 L_lstart")

def late_ptrs():
    for r, off in (LATE_B if OPT.p_after else LATE_A):
        a(f"s_load_dwordx2 {sr(r,2)}, s[0:1], {off}")

def decode(vt):
    a(f"v_mov_b32 v{vt}, {L_VID}")
    a(f"ds_read_b32 v{vt}, v{vt}")
    a("s_waitcnt lgkmcnt(0)")
    a(f"v_readfirstlane_b32 s{S_VJ}, v{vt}")
    a(f"s_and_b32 s{S_VX}, s{S_VJ}, 7")
    a(f"s_lshr_b32 s{S_VJ}, s{S_VJ}, 3")
    a(f"s_and_b32 s{S_I}, s{S_VJ}, 7")
    a(f"s_and_b32 s{S_B}, s{S_VX}, 1")
    a(f"s_lshr_b32 s{S_VJ}, s{S_VJ}, 3")
    a(f"s_and_b32 s{S_RB}, s{S_VX}, 6")
    a(f"s_lshl_b32 s{S_RB}, s{S_RB}, 1")
    a(f"s_add_u32 s{S_RB}, s{S_RB}, s{S_VJ}")
    a(f"s_mul_i32 s{S_CB}, s{S_B}, 7")
    a(f"s_add_u32 s{S_CB}, s{S_CB}, s{S_I}")

def decode2():
    a(f"s_lshl_b32 s{S_TB}, s{S_RB}, 1")
    a(f"s_add_u32 s{S_TB}, s{S_TB}, s{S_B}")
    a(f"s_mul_i32 s{S_ROT}, s{S_I}, 7")
    a(f"s_lshr_b32 s{S_ROT}, s{S_ROT}, 1")
    a(f"s_mul_i32 s{T2}, s{S_VJ}, 7")
    a(f"s_add_u32 s{S_ROT}, s{S_ROT}, s{T2}")
    a(f"s_mul_i32 s{T2}, s{S_VX}, 3")
    a(f"s_add_u32 s{S_ROT}, s{S_ROT}, s{T2}")
    for _ in range(2):
        a(f"s_cmp_ge_u32 s{S_ROT}, 28")
        a(f"s_cselect_b32 s{T2}, 28, 0")
        a(f"s_sub_u32 s{S_ROT}, s{S_ROT}, s{T2}")

def nonce_issue(vt):
    return f"buffer_load_dwordx2 {vr(vt,2)}, off, {sr(R_DBG,4)}, 0 sc1"

def nonce_check(vt):
    ok = a.newlabel("L_nok"); again = a.newlabel("L_nagain")
    a(f"s_mov_b32 s{S_SPIN}, {SPIN_MAX}")
    a.label(again)
    a(f"v_cmp_gt_i32 vcc, 0, v{vt+1}")
    a(f"s_cbranch_vccnz {ok}")
    a(nonce_issue(vt))
    a(f"s_sub_u32 s{S_SPIN}, s{S_SPIN}, 1")
    a("s_waitcnt vmcnt(0)")
    a(f"s_cbranch_scc0 {again}")
    a.label(ok)
    a(f"v_readfirstlane_b32 s{S_NONCE}, v{vt}")
    a(f"v_readfirstlane_b32 s{S_NONCE+1}, v{vt+1}")

def start_jobs():
    n1 = a.newlabel("L_sj1"); n2 = a.newlabel("L_sj2")
    a(f"s_cmp_lg_u32 s{S_WAVE}, 0")
    a(f"s_cbranch_scc1 {n1}")
    if OPT.ticket:
        a(f"s_getreg_b32 s{T1}, hwreg(HW_REG_XCC_ID)")
        a(f"s_and_b32 s{T1}, s{T1}, 7")
        a(f"s_lshl_b32 s{T2}, s{T1}, 7")
        a(f"s_add_u32 s{T2}, s{T2}, {WS_TK}")
        a("v_mov_b32 v7, 1")
        a("s_waitcnt lgkmcnt(0)")
        a("s_mov_b64 exec, 1")
        a(f"buffer_atomic_add v7, off, {sr(R_WS,4)}, s{T2} sc0 sc1")
        a("s_mov_b64 exec, -1")
    a(f"v_mov_b32 v6, {L_NONCE}")
    a("v_mov_b32 v4, 0")
    a("v_mov_b32 v5, 0")
    for o in (8, 16, 24, 32, 40, 48): a(f"ds_write_b64 v6, v[4:5] offset:{o}")
    a(f"s_branch {n2}")
    a.label(n1)
    a(f"s_cmp_lg_u32 s{S_WAVE}, 1")
    a(f"s_cbranch_scc1 {n2}")
    a("s_cmp_lg_u32 s2, 0")
    a(f"s_cbranch_scc1 {n2}")
    a(f"s_memrealtime {sr(T1,2)}")
    a("s_waitcnt lgkmcnt(0)")
    a(f"s_or_b32 s{T2}, s{T2}, 0x80000000")
    a(f"v_mov_b32 v4, s{T1}")
    a(f"v_mov_b32 v5, s{T2}")
    a("s_mov_b64 exec, 1")
    a(f"buffer_store_dwordx2 v[4:5], off, {sr(R_DBG,4)}, 0 sc1")
    a("s_mov_b64 exec, -1")
    a.label(n2)

def ticket_done():
    n1 = a.newlabel("L_td")
    a(f"s_cmp_lg_u32 s{S_WAVE}, 0")
    a(f"s_cbranch_scc1 {n1}")
    if OPT.ticket:
        a("s_waitcnt vmcnt(0)")
        a("v_and_b32 v7, 31, v7")
        a(f"v_lshl_add_u32 v7, v7, 3, s{T1}")
    else:
        a("v_mov_b32 v7, s2")
    a("s_mov_b64 exec, 1")
    a(f"ds_write_b32 v6, v7 offset:{L_VID - L_NONCE}")
    a("s_mov_b64 exec, -1")
    a.label(n1)
assert T1 % 2 == 0 and T3 % 2 == 0

ACC1 = 128
def acc1(gu, m, n): return ACC1 + 16 * (4 * n + 2 * m + gu)
def abuf(b, m, gu): return 64 + 16 * b + 4 * (2 * m + gu)
def bbuf(b, n): return 96 + 8 * b + 4 * n
VA = 10
VB = 12

def c_g1_reads(ks, b):
    tr = lambda m, gu, jj: f"ds_read_b64_tr_b16 {vr(abuf(b,m,gu)+2*jj,2)}, v{VA+m} offset:{16384+gu*16384+(16*ks+4*jj)*256}"
    bb = lambda n: f"ds_read_b128 {vr(bbuf(b,n),4)}, v{VB+ks} offset:{4096*n}"
    return [[bb(0), tr(0,0,0), tr(0,0,1)], [tr(0,1,0), tr(0,1,1), tr(1,0,0)], [tr(1,0,1), tr(1,1,0), tr(1,1,1)], [bb(1)]]

def c_start():
    a.c("==== C wave: set-up ====")
    start_jobs()
    late_ptrs()
    a("v_lshrrev_b32 v3, 5, v1")
    a("v_and_b32 v2, 31, v1")
    a(f"s_and_b32 s{T0}, s{S_WAVE}, 1")
    a(f"s_lshr_b32 s{T4}, s{S_WAVE}, 1")
    a("v_bfe_u32 v4, v1, 1, 3")
    a(f"s_lshl_b32 s{T2}, s{T0}, 13")
    a(f"v_lshl_add_u32 v5, v2, 7, s{T2}")
    for ks in range(4):
        a(f"v_add_u32 v8, {2*ks}, v3")
        a("v_xor_b32 v8, v8, v4")
        a(f"v_lshl_add_u32 v{VB+ks}, v8, 4, v5")
    a("v_bfe_u32 v4, v1, 2, 2")
    a("v_lshl_add_u32 v5, v3, 3, v4")
    a("v_lshlrev_b32 v5, 8, v5")
    a("v_bfe_u32 v8, v1, 4, 1")
    a("v_lshl_add_u32 v5, v8, 5, v5")
    a("v_and_b32 v8, 3, v1")
    a("v_lshl_add_u32 v5, v8, 3, v5")
    a(f"s_lshl_b32 s{T2}, s{T4}, 1")
    for m in range(2):
        a(f"s_add_u32 s{T3}, s{T2}, {m}")
        a(f"v_xor_b32 v8, s{T3}, v4")
        a(f"v_lshl_add_u32 v{VA+m}, v8, 6, v5")
    if OPT.tlb2:
        skip = a.newlabel("L_notlb")
        a(f"s_cmp_lg_u32 s{S_WAVE}, 3")
        a(f"s_cbranch_scc1 {skip}")
        if OPT.tlb2 == 16:
            a(f"s_and_b32 s{T2}, s{S_J}, 3")
            a("v_and_b32 v8, 15, v1")
            a(f"v_lshl_add_u32 v8, v8, 2, s{T2}")
            a("v_lshlrev_b32 v8, 16, v8")
            a(f"v_lshl_add_u32 v9, v1, 2, s{T2}")
            a("v_lshlrev_b32 v9, 16, v9")
            a("s_waitcnt lgkmcnt(0)")
            a("s_mov_b64 exec, 0xff")
            for r in (R_X, R_W1, R_W3, R_W2, R_OUT): a(f"buffer_load_dword v25, v8, {sr(r,4)}, 0 offen")
            a("s_mov_b64 exec, -1")
            a(f"buffer_load_dword v25, v9, {sr(R_WS,4)}, 0 offen")
        else:
            a("v_lshlrev_b32 v8, 20, v1")
            a("s_waitcnt lgkmcnt(0)")
            a("s_mov_b64 exec, 3")
            for r in (R_X, R_W1, R_W3, R_W2, R_OUT): a(f"buffer_load_dword v25, v8, {sr(r,4)}, 0 offen")
            a("s_mov_b64 exec, 0x3fff")
            a(f"buffer_load_dword v25, v8, {sr(R_WS,4)}, 0 offen")
            a("s_mov_b64 exec, -1")
        a.label(skip)
    for r in range(ACC1, 256, 2):
        a(f"v_pk_mov_b32 {vr(r,2)}, 0, 0")
    ticket_done()
    a("s_waitcnt lgkmcnt(0)")
    barrier()
    stamp("C", "V")
    decode(4); decode2()
    a(f"s_cmp_eq_u32 s{S_I}, 7")
    a("s_cbranch_scc1 L_cspare")
    a(f"s_lshr_b32 s{T1}, s{S_WAVE}, 1")
    a(f"s_mov_b32 s{T4}, 0")
    a(f"s_mov_b32 s{T5}, 0")
    a(f"s_mov_b32 s{S_OX}, {(-2*SLOT) & 0xffffffff}")
    a(f"s_mov_b32 s{S_OW}, {SLOT}")
    barrier()

def c_g1():
    a.c("==== C wave: GEMM1 ====")
    stamp("C", "g1_start")
    for grp in c_g1_reads(0, 0):
        for r in grp: a(r)
    a(".p2align 3")
    a.label("L_cg1")
    for ks in range(4):
        b = ks & 1
        nxt = c_g1_reads((ks + 1) & 3, b ^ 1)
        a("s_waitcnt lgkmcnt(0)")
        i = 0
        for n in range(2):
            for m in range(2):
                for gu in range(2):
                    d = vr(acc1(gu, m, n), 16)
                    a(f"v_mfma_f32_32x32x16_bf16 {d}, {vr(abuf(b,m,gu),4)}, {vr(bbuf(b,n),4)}, {d}")
                    if ks == 3 and i == 0:
                        barrier()
                    if i < 4:
                        for r in nxt[i]: a(r)
                    if ks == 2 and i == 4:
                        a(f"s_add_u32 s{T5}, s{T5}, 1")
                        a(f"s_cmp_eq_u32 s{T5}, 3")
                        a(f"s_cselect_b32 s{T3}, s{S_OX}, s{S_OW}")
                        a(f"s_cselect_b32 s{T5}, 0, s{T5}")
                    if ks == 2 and i == 5:
                        for k in range(3): a(f"v_add_u32 v{VA+k}, s{T3}, v{VA+k}")
                    if ks == 2 and i == 6:
                        for k in range(3, 6): a(f"v_add_u32 v{VA+k}, s{T3}, v{VA+k}")
                    if ks == 3 and i == 6:
                        a(f"s_add_u32 s{T4}, s{T4}, 1")
                        a(f"s_cmp_lt_u32 s{T4}, 8")
                    i += 1
    a("s_cbranch_scc1 L_cg1")
    stamp("C", "g1_end")
    a.c("---- GEMM1 epilogue ----")
    if OPT.prio: a("s_setprio 3")
    CS = 32
    ST = 16
    a(f"s_lshl_b32 s{T2}, s{T0}, 9")
    a(f"s_add_u32 s{T2}, s{T2}, {L_STAT}")
    a(f"v_lshl_add_u32 v4, v2, 3, s{T2}")
    a(f"s_lshl_b32 s{T2}, s{T1}, 8")
    a(f"s_add_u32 s{T2}, s{T2}, {L_CS}")
    a(f"v_lshl_add_u32 v5, v3, 4, s{T2}")
    a("s_waitcnt vmcnt(0) lgkmcnt(0)")
    a(f"ds_read_b64 {vr(ST,2)}, v4")
    a(f"ds_read_b64 {vr(ST+2,2)}, v4 offset:256")
    for m in range(2):
        for gu in range(2):
            for j in range(4):
                a(f"ds_read_b128 {vr(CS+16*(2*m+gu)+4*j,4)}, v5 offset:{gu*512+m*128+j*32}")
    a(f"s_lshl_b32 s{T2}, s{S_RB}, 2")
    a(f"s_lshl_b32 s{T3}, s{T0}, 1")
    a(f"s_add_u32 s{T2}, s{T2}, s{T3}")
    a(f"s_mul_i32 s{T2}, s{T2}, 112")
    a(f"s_lshl_b32 s{T3}, s{S_CB}, 3")
    a(f"s_add_u32 s{T2}, s{T2}, s{T3}")
    a(f"s_lshl_b32 s{T3}, s{T1}, 2")
    a(f"s_add_u32 s{T2}, s{T2}, s{T3}")
    a(f"s_lshl_b32 s{T2}, s{T2}, 10")
    a(f"s_add_u32 s{T2}, s{T2}, {WS_H}")
    a(f"s_add_u32 s{T3}, s{T2}, {112*1024}")
    a("v_lshlrev_b32 v6, 4, v1")
    read_nonce(20)
    a(f"v_mul_f32 v24, 0x{NLOG2E:x}, v{ST+1}")
    a(f"v_mul_f32 v26, 0x{NLOG2E:x}, v{ST+3}")
    E = 96; O = 112
    blk = 0
    late = []
    for n in range(2):
        st = vr(ST + 2 * n, 2)
        for m in range(2):
            for hb in range(2):
                A = acc1(0, m, n) + 8 * hb; B = acc1(1, m, n) + 8 * hb
                CG = CS + 16 * (2 * m) + 8 * hb; CU = CS + 16 * (2 * m + 1) + 8 * hb
                e = E + 8 * (blk & 1); o = O + 4 * (blk & 3)
                if OPT.late_st: o = B
                for p in range(4):
                    a(f"v_pk_fma_f32 {vr(A+2*p,2)}, {vr(CG+2*p,2)}, {st}, {vr(A+2*p,2)} op_sel_hi:[1,0,1] neg_lo:[0,1,0] neg_hi:[0,1,0]")
                for p in range(4):
                    a(f"v_pk_mul_f32 {vr(A+2*p,2)}, {vr(A+2*p,2)}, {vr(24+2*n,2)} op_sel_hi:[1,0]")
                for p in range(4):
                    a(f"v_exp_f32 v{e+2*p}, v{A+2*p}")
                    a(f"v_exp_f32 v{e+2*p+1}, v{A+2*p+1}")
                    a(f"v_pk_fma_f32 {vr(B+2*p,2)}, {vr(CU+2*p,2)}, {st}, {vr(B+2*p,2)} op_sel_hi:[1,0,1] neg_lo:[0,1,0] neg_hi:[0,1,0]")
                for p in range(4):
                    a(f"v_pk_add_f32 {vr(e+2*p,2)}, {vr(e+2*p,2)}, 1.0 op_sel_hi:[1,0]")
                for p in range(4):
                    a(f"v_rcp_f32 v{e+2*p}, v{e+2*p}")
                    a(f"v_rcp_f32 v{e+2*p+1}, v{e+2*p+1}")
                    a(f"v_pk_mul_f32 {vr(A+2*p,2)}, {vr(A+2*p,2)}, {vr(B+2*p,2)}")
                for p in range(4):
                    a(f"v_pk_mul_f32 {vr(A+2*p,2)}, {vr(A+2*p,2)}, {vr(e+2*p,2)}")
                for p in range(4):
                    a(f"v_cvt_pk_bf16_f32 v{o+p}, v{A+2*p}, v{A+2*p+1}")
                st_ = f"buffer_store_dwordx4 {vr(o,4)}, v6, {sr(R_WS,4)}, s{T2+n} offen offset:{(2*m+hb)*1024} {OPT.x_hst}"
                if OPT.late_st: late.append(st_)
                else: a(st_)
                blk += 1
    for st_ in late: a(st_)
    if OPT.prio: a("s_setprio 0")

W2O = 15
S_KW = S_OX
S_KH = S_OW
def w2_setup():
    a("v_lshrrev_b32 v4, 3, v1")
    a("v_bfe_u32 v5, v1, 4, 1")
    a("v_lshlrev_b32 v5, 2, v5")
    a("v_and_b32 v6, 7, v1")
    a("v_xor_b32 v5, v5, v6")
    a("v_lshlrev_b32 v4, 10, v4")
    a(f"v_lshl_add_u32 v{W2O}, v5, 4, v4")
    a(f"s_mul_i32 s{T0}, s{S_LW}, {448*1024}")
    a(f"s_lshl_b32 s{T1}, s{S_I}, 7")
    a(f"s_add_u32 s{T0}, s{T0}, s{T1}")
    a(f"v_add_u32 v{W2O}, s{T0}, v{W2O}")

def kidx_init(reg, s0):
    a(f"s_add_u32 s{reg}, s{S_ROT}, {s0}")
    a(f"s_cmp_ge_u32 s{reg}, 28")
    a(f"s_cselect_b32 s{T0}, 28, 0")
    a(f"s_sub_u32 s{reg}, s{reg}, s{T0}")
def kidx_next(reg):
    a(f"s_add_u32 s{reg}, s{reg}, 1")
    a(f"s_cmp_eq_u32 s{reg}, 28")
    a(f"s_cselect_b32 s{reg}, 0, s{reg}")

def ring_off(slot):
    return (slot // 6) * SLOT + (slot % 6) * 2048

def w2_kstep(vm, s, tag):
    a(f"s_add_u32 m0, s{T5}, {ring_off(s % 12)}")
    a(f"s_lshl_b32 s{T1}, s{S_KW}, 14")
    vm.issue(tag, f"buffer_load_dwordx4 v{W2O}, {sr(R_W2,4)}, s{T1} offen {OPT.nt_w} lds")
    a(f"s_add_u32 m0, s{T5}, {ring_off(s % 12) + 1024}")
    a(f"s_add_u32 s{T1}, s{T1}, 8192")
    vm.issue(tag, f"buffer_load_dwordx4 v{W2O}, {sr(R_W2,4)}, s{T1} offen {OPT.nt_w} lds")
    kidx_next(S_KW)

ACC2 = 192
AR = 64
HR = 16
VX = 64
def c_g2():
    vm = VM(a)
    a.label("L_cE")
    a.c("==== C wave: GEMM2 ====")
    NBK = OPT.nbk
    assert HR + 8 * NBK <= AR
    VT = 10
    a("v_lshrrev_b32 v3, 5, v1")
    a("v_bfe_u32 v5, v1, 2, 2")
    a("v_lshl_add_u32 v7, v3, 2, v5")
    a("v_lshlrev_b32 v7, 7, v7")
    a("v_bfe_u32 v8, v1, 4, 1")
    a("v_lshl_add_u32 v7, v8, 5, v7")
    a("v_and_b32 v8, 3, v1")
    a("v_lshl_add_u32 v7, v8, 3, v7")
    a(f"s_mul_i32 s{T5}, s{S_LW}, 12288")
    a(f"v_add_u32 v7, s{T5}, v7")
    a("v_lshrrev_b32 v5, 1, v5")
    a(f"v_lshl_add_u32 v{VT}, v5, 6, v7")
    a("v_xor_b32 v5, 1, v5")
    a(f"v_lshl_add_u32 v{VT+1}, v5, 6, v7")
    if OPT.gprio: a(f"s_setprio {OPT.gprio}")
    lds_add(L_ECNT, 12, 13)
    stamp("C", "E")
    def treads(s, dst):
        return [f"ds_read_b64_tr_b16 {vr(dst+4*m+2*jj,2)}, v{VT+m} offset:{ring_off(s % 12) + 8*jj*128}" for m in range(2) for jj in range(2)]
    w2_setup()
    kidx_init(S_KW, 12)
    a(f"s_and_b32 s{T0}, s{S_WAVE}, 1")
    a(f"s_lshl_b32 s{T4}, s{S_RB}, 1")
    a(f"s_add_u32 s{T4}, s{T4}, s{T0}")
    a(f"s_lshl_b32 s{T4}, s{T4}, 1")
    a(f"s_add_u32 s{T4}, s{T4}, s{S_B}")
    a(f"s_lshl_b32 s{T4}, s{T4}, 4")
    a(f"s_lshl_b32 s{T3}, s{S_I}, 1")
    a(f"s_add_u32 s{T4}, s{T4}, s{T3}")
    a(f"s_lshr_b32 s{T3}, s{S_WAVE}, 1")
    a(f"s_add_u32 s{T4}, s{T4}, s{T3}")
    a(f"s_lshl_b32 s{T4}, s{T4}, 3")
    a(f"s_add_u32 s{T4}, s{T4}, {WS_FH}")
    a(f"s_lshl_b32 s{T2}, s{S_TB}, 1")
    a(f"s_add_u32 s{T2}, s{T2}, s{T3}")
    a(f"s_lshl_b32 s{T2}, s{T2}, 7")
    a(f"s_mul_i32 s{T3}, s{T0}, 56")
    a(f"s_add_u32 s{T2}, s{T2}, s{T3}")
    a(f"s_add_u32 s{S_CH}, s{T2}, {WS_FH}")
    a(f"s_lshl_b32 s{T3}, s{S_LW}, 2")
    a(f"s_add_u32 s{T3}, s{T3}, {L_RING}")
    slow = a.newlabel("L_cslow"); join = a.newlabel("L_cjoin")
    a(f"v_mov_b32 v12, s{T3}")
    a("ds_read_b32 v13, v12")
    a("s_waitcnt lgkmcnt(0)")
    a("v_cmp_eq_u32 vcc, 1, v13")
    a(f"s_cbranch_vccz {slow}")
    for s in range(12):
        for r in treads(s, AR + 8 * s): a(r)
    a("s_waitcnt lgkmcnt(0)")
    for s in range(12, 16): w2_kstep(VM(a), s, "wa")
    a("s_waitcnt vmcnt(8)")
    flag_store(VM(a), 12, T4)
    a(f"s_branch {join}")
    a.label(slow)
    a("s_waitcnt vmcnt(0)")
    flag_store(VM(a), 12, T4)
    lds_wait((T3,), 1, 14, 4)
    for s in range(12):
        for r in treads(s, AR + 8 * s): a(r)
    a("s_waitcnt lgkmcnt(0)")
    for s in range(12, 16): w2_kstep(VM(a), s, "wa")
    a.label(join)
    vm.q.extend(["wa"] * 8)
    stamp("C", "h_flag")
    for s in range(16, 24): w2_kstep(vm, s, "wb")
    vm.wait("wa")
    for s in range(12, 16):
        for r in treads(s, AR + 8 * s): a(r)
    a(f"s_mul_i32 s{T2}, s{S_TB}, 224")
    a(f"s_mul_i32 s{T3}, s{S_LW}, 28")
    a(f"s_add_u32 s{T2}, s{T2}, s{T3}")
    a(f"s_lshl_b32 s{T2}, s{T2}, 10")
    a(f"s_add_u32 s{T2}, s{T2}, {WS_H}")
    a("v_lshlrev_b32 v6, 4, v1")
    a(f"v_add_u32 v7, {112*1024}, v6")
    a(f"s_mov_b32 s{S_KH}, s{S_ROT}")
    a("s_waitcnt lgkmcnt(0)")
    for s in range(24, 28): w2_kstep(vm, s, "wc")
    spoll(S_PC, S_CH, 7, 2)
    stamp("C", "h_seen")
    def hload(s):
        a(f"s_lshl_b32 s{T4}, s{S_KH}, 10")
        a(f"s_add_u32 s{T4}, s{T4}, s{T2}")
        if OPT.x_hmode == 1: a(f"s_and_b32 s{T4}, s{T4}, 0x43ffff")
        for n in range(2):
            vm.issue(f"h{s}", f"buffer_load_dwordx4 {vr(HR+8*(s%NBK)+4*n,4)}, v{6+n}, {sr(R_WS,4)}, s{T4} offen {OPT.h_ld}")
        kidx_next(S_KH)
    for s in range(NBK): hload(s)
    if OPT.gprio: a("s_setprio 0")
    stamp("C", "g2_start")
    for s in range(28):
        A = AR + 8 * (s % 16)
        vm.wait(f"h{s}", "lgkmcnt(0)" if s >= 16 else "")
        i = 0
        for n in range(2):
            for m in range(2):
                d = vr(ACC2 + 16 * (2 * n + m), 16)
                a(f"v_mfma_f32_32x32x16_bf16 {d}, {vr(A+4*m,4)}, {vr(HR+8*(s%NBK)+4*n,4)}, {'0' if s == 0 else d}")
                if i == 0 and 15 <= s < 27:
                    for r in treads(s + 1, AR + 8 * ((s + 1) % 16)): a(r)
                if i == 1 and s >= 1 and s - 1 + NBK < 28: hload(s - 1 + NBK)
                i += 1
        if s == 21: final_x_load(vm)
        if s in (0, 3, 7, 14, 21): stamp("C", f"k{s}")
    stamp("C", "g2_end")
    a("v_and_b32 v4, 31, v1")
    a("v_mul_u32_u24 v4, 272, v4")
    a("v_lshl_add_u32 v4, v3, 4, v4")
    a(f"v_add_u32 v4, s{T5}, v4")
    a("s_nop 7")
    for n in range(2):
        for m in range(2):
            for j in range(4):
                a(f"ds_write_b128 v4, {vr(ACC2+16*(2*n+m)+4*j,4)} offset:{n*SLOT+m*128+j*32}")
    vm.waitall("lgkmcnt(0)")
    a("s_branch L_final")

def final_x_load(vm):
    a("v_lshrrev_b32 v8, 3, v0")
    a(f"s_lshl_b32 s{T3}, s{S_TB}, 6")
    a(f"v_add_u32 v8, s{T3}, v8")
    a("v_lshlrev_b32 v8, 10, v8")
    a("v_and_b32 v9, 7, v0")
    a("v_lshl_add_u32 v9, v9, 4, v8")
    a(f"s_lshl_b32 s{T3}, s{S_I}, 7")
    a(f"v_add_u32 v9, s{T3}, v9")
    vm.issue("x", f"buffer_load_dwordx4 {vr(VX,4)}, v9, {sr(R_X,4)}, 0 offen")

def final():
    a.label("L_final")
    a.c("==== final epilogue (all waves) ====")
    P, Y, ST, XF, YF, XN = 16, 48, 52, 56, 72, 80
    a("v_lshrrev_b32 v4, 3, v0")
    a("v_and_b32 v5, 7, v0")
    a("v_and_b32 v6, 31, v4")
    a("v_mul_u32_u24 v6, 272, v6")
    a("v_lshl_add_u32 v6, v5, 5, v6")
    a("v_lshrrev_b32 v7, 5, v4")
    a(f"v_mul_u32_u24 v7, {SLOT}, v7")
    a("v_add_u32 v6, v6, v7")
    a("v_mul_u32_u24 v7, 144, v4")
    a("v_lshl_add_u32 v7, v5, 4, v7")
    a(f"v_add_u32 v7, {L_YT}, v7")
    a(f"s_lshl_b32 s{T0}, s{S_B}, 9")
    a(f"s_add_u32 s{T0}, s{T0}, {L_STAT}")
    a(f"v_lshl_add_u32 v8, v4, 3, s{T0}")
    a(f"ds_read_b64 {vr(ST,2)}, v8")
    for p in range(4): unpack(XF + 2 * p, VX + p)
    a("s_waitcnt lgkmcnt(0)")
    a(f"v_mul_f32 v{ST+2}, 0x{NLN2:x}, v{ST+1}")
    a(f"v_mov_b32 v90, v{ST+1}")
    a(f"v_mul_f32 v88, v{ST}, v{ST+2}")
    barrier()
    a(f"ds_read_b128 {vr(Y,4)}, v7")
    for w in range(4):
        a(f"ds_read_b128 {vr(P+8*w,4)}, v6 offset:{w*12288}")
        a(f"ds_read_b128 {vr(P+8*w+4,4)}, v6 offset:{w*12288+16}")
    for p in range(4):
        a(f"v_pk_fma_f32 {vr(XN+2*p,2)}, {vr(XF+2*p,2)}, {vr(ST+2,2)}, v[88:89] op_sel_hi:[1,0,0] neg_lo:[0,0,1] neg_hi:[0,0,1]")
    a("s_waitcnt lgkmcnt(8)")
    for p in range(4): unpack(YF + 2 * p, Y + p)
    for p in range(4):
        a(f"v_pk_mul_f32 {vr(XN+2*p,2)}, {vr(XN+2*p,2)}, {vr(YF+2*p,2)}")
    a("s_waitcnt lgkmcnt(4)")
    for p in range(4): a(f"v_pk_add_f32 {vr(P+2*p,2)}, {vr(P+2*p,2)}, {vr(P+8+2*p,2)}")
    a("s_waitcnt lgkmcnt(0)")
    for p in range(4): a(f"v_pk_add_f32 {vr(P+16+2*p,2)}, {vr(P+16+2*p,2)}, {vr(P+24+2*p,2)}")
    for p in range(4): a(f"v_pk_add_f32 {vr(P+2*p,2)}, {vr(P+2*p,2)}, {vr(P+16+2*p,2)}")
    for p in range(4): a(f"v_pk_mul_f32 {vr(P+2*p,2)}, {vr(P+2*p,2)}, v[90:91] op_sel_hi:[1,0]")
    P1 = P + 8
    for p in range(4):
        a(f"v_exp_f32 v{P1+2*p}, v{P+2*p}")
        a(f"v_exp_f32 v{P1+2*p+1}, v{P+2*p+1}")
        a(f"v_pk_mul_f32 {vr(XN+2*p,2)}, {vr(XN+2*p,2)}, {vr(P+2*p,2)}")
    for p in range(4): a(f"v_pk_add_f32 {vr(P1+2*p,2)}, {vr(P1+2*p,2)}, 1.0 op_sel_hi:[1,0]")
    for p in range(8): a(f"v_rcp_f32 v{P1+p}, v{P1+p}")
    for p in range(4):
        a(f"v_pk_fma_f32 {vr(XF+2*p,2)}, {vr(XN+2*p,2)}, {vr(P1+2*p,2)}, {vr(XF+2*p,2)}")
    for p in range(4):
        a(f"v_cvt_pk_bf16_f32 v{Y+p}, v{XF+2*p}, v{XF+2*p+1}")
    for _ in range(OPT.x_delay_end): a("s_sleep 125")
    a(f"buffer_store_dwordx4 {vr(Y,4)}, v9, {sr(R_OUT,4)}, 0 offen")
    if OPT.x_enc:
        if OPT.x_enc == "end": a(f"s_memrealtime {sr(8,2)}")
        a(f"s_memrealtime {sr(10,2)}")
        a("s_waitcnt lgkmcnt(0)")
        a(f"s_sub_u32 s8, s8, s{S_RT0}")
        a("s_add_u32 s8, s8, s10")
        a.label("L_enc")
        a(f"s_memrealtime {sr(10,2)}")
        a("s_waitcnt lgkmcnt(0)")
        a("s_sub_u32 s12, s10, s8")
        a("s_cmp_lt_i32 s12, 0")
        a("s_cbranch_scc1 L_enc")
    if OPT.prof:
        a(f"s_memtime {sr(R_K,2)}")
        a(f"s_memrealtime {sr(T1,2)}")
        a("s_waitcnt lgkmcnt(0)")
        a(f"s_lshl_b32 s{T3}, s{S_VJ}, 3")
        a(f"s_add_u32 s{T3}, s{T3}, s{S_I}")
        a(f"s_lshl_b32 s{T3}, s{T3}, 3")
        a(f"s_add_u32 s{T3}, s{T3}, s{S_VX}")
        a(f"s_lshl_b32 s{T3}, s{T3}, 3")
        a(f"s_add_u32 s{T3}, s{T3}, s{S_WAVE}")
        a(f"s_lshl_b32 s{T3}, s{T3}, 7")
        a(f"s_add_u32 s{T3}, s{T3}, {WS_PROF}")
        for i in range(NSTAMP):
            a(f"s_sub_u32 s{T4}, s{STAMP0+2*i}, s{S_ST0}")
            a(f"v_mov_b32 v{16+i}, s{T4}")
        a(f"s_sub_u32 s{T4}, s{R_K}, s{S_ST0}")
        a(f"v_mov_b32 v28, s{T4}")
        a(f"v_mov_b32 v29, s{S_RT0}")
        a(f"v_mov_b32 v30, s{T1}")
        a("v_mov_b32 v31, 0")
        a("s_mov_b64 exec, 1")
        for i in range(4):
            a(f"buffer_store_dwordx4 {vr(16+4*i,4)}, off, {sr(R_WS,4)}, s{T3} offset:{16*i}")
    a.label("L_end")
    a("s_endpgm")

VXO = 16
VWO = 20
VTO = 24
VTD = 25
VPO = 26
KR = 48
VR_ = 68
TP = 76
TF = 92
KF = 124
A0 = 132
A1 = 140
HL = 148
HS = 172
PF = 188
GA = 208

def prep_loads(vm):
    a("v_lshrrev_b32 v4, 3, v1")
    a(f"s_lshl_b32 s{T0}, s{S_J}, 6")
    a(f"s_lshl_b32 s{T1}, s{S_LW}, 4")
    a(f"s_add_u32 s{T0}, s{T0}, s{T1}")
    a(f"s_sub_u32 s{T0}, s{T0}, 3")
    a(f"v_lshl_add_u32 v4, v4, 1, s{T0}")
    a("v_lshlrev_b32 v4, 10, v4")
    a("v_and_b32 v5, 7, v1")
    a("v_lshl_add_u32 v4, v5, 4, v4")
    a(f"s_lshl_b32 s{T0}, s{S_XCD}, 7")
    a(f"v_add_u32 v4, s{T0}, v4")
    for i in range(5):
        vm.issue("P", f"buffer_load_dwordx4 {vr(KR+4*i,4)}, v4, {sr(R_K,4)}, 0 offen {OPT.nt_k}")
        if i >= 3:
            vm.issue("P", f"buffer_load_dwordx4 {vr(VR_+4*(i-3),4)}, v4, {sr(R_V,4)}, 0 offen {OPT.nt_v}")
        if i < 4: a("v_add_u32 v4, 1024, v4")
    a(f"s_mov_b32 m0, {L_TAPS}")
    a("v_lshlrev_b32 v4, 4, v1")
    a(f"s_lshl_b32 s{T0}, s{S_XCD}, 9")
    vm.issue("P", f"buffer_load_dwordx4 v4, {sr(R_SH,4)}, s{T0} offen lds")

def prep_compute(pk=False):
    a("v_and_b32 v5, 7, v1")
    a("v_lshlrev_b32 v4, 6, v5")
    a(f"v_add_u32 v6, {L_TAPS}, v4")
    for q in range(4):
        a(f"ds_read_b128 {vr(TP+4*q,4)}, v6 offset:{16*q}")
    a("v_mul_u32_u24 v7, 1040, v5")
    a("v_lshrrev_b32 v4, 3, v1")
    a(f"s_lshl_b32 s{T0}, s{S_LW}, 5")
    a(f"s_sub_u32 s{T0}, {L_SCR + 124}, s{T0}")
    a("v_lshlrev_b32 v4, 2, v4")
    a("v_sub_u32 v7, v7, v4")
    a(f"v_add_u32 v7, s{T0}, v7")
    a("s_waitcnt lgkmcnt(0)")
    for dd in range(8):
        a(f"v_lshlrev_b32 v{TF+dd}, 16, v{TP+2*dd}")
        a(f"v_and_b32 v{TF+8+dd}, 0xffff0000, v{TP+2*dd}")
        a(f"v_lshlrev_b32 v{TF+16+dd}, 16, v{TP+2*dd+1}")
        a(f"v_and_b32 v{TF+24+dd}, 0xffff0000, v{TP+2*dd+1}")
    for i in range(5):
        for p in range(4): unpack(KF + 2 * p, KR + 4 * i + p)
        for tt, acc in ((0, A0), (1, A1)):
            j = 3 + tt - i
            if j < 0 or j > 3: continue
            if pk:
                for p in range(4):
                    if j == 3: a(f"v_pk_mul_f32 {vr(acc+2*p,2)}, {vr(KF+2*p,2)}, {vr(TF+8*j+2*p,2)}")
                    else: a(f"v_pk_fma_f32 {vr(acc+2*p,2)}, {vr(KF+2*p,2)}, {vr(TF+8*j+2*p,2)}, {vr(acc+2*p,2)}")
                continue
            for p in range(8):
                a(f"v_{'mul' if j == 3 else 'fmac'}_f32 v{acc+p}, v{KF+p}, v{TF+8*j+p}")
    for tt, acc in ((0, A0), (1, A1)):
        for p in range(4): unpack(KF + 2 * p, VR_ + 4 * tt + p)
        if pk:
            for p in range(4): a(f"v_pk_mul_f32 {vr(acc+2*p,2)}, {vr(acc+2*p,2)}, {vr(KF+2*p,2)}")
        else:
            for p in range(8): a(f"v_mul_f32 v{acc+p}, v{acc+p}, v{KF+p}")
    for dd in range(8): a(f"v_cvt_pk_bf16_f32 v{KF+dd}, v{A1+dd}, v{A0+dd}")
    for dd in range(8): a(f"ds_write_b32 v7, v{KF+dd} offset:{128*dd}")

def prep_store(vm):
    a(f"s_mul_i32 s{T0}, s{S_LW}, {2*1040}")
    a(f"s_add_u32 s{T0}, s{T0}, {L_SCR}")
    a(f"v_lshl_add_u32 v4, v1, 4, s{T0}")
    a(f"ds_read_b128 {vr(KR,4)}, v4")
    a(f"ds_read_b128 {vr(KR+4,4)}, v4 offset:1040")
    a("v_lshrrev_b32 v4, 3, v1")
    a("v_lshlrev_b32 v4, 12, v4")
    a("v_and_b32 v5, 7, v1")
    a("v_lshl_add_u32 v4, v5, 4, v4")
    a(f"s_lshl_b32 s{T0}, s{S_XCD}, 18")
    a(f"s_lshl_b32 s{T1}, s{S_LW}, 16")
    a(f"s_add_u32 s{T0}, s{T0}, s{T1}")
    a(f"s_lshl_b32 s{T1}, s{S_J}, 7")
    a(f"s_sub_u32 s{T1}, {WS_UT + 4096 - 128}, s{T1}")
    a(f"s_add_u32 s{T0}, s{T0}, s{T1}")
    a(f"s_add_u32 s{T1}, s{T0}, 32768")
    a("s_waitcnt lgkmcnt(0)")
    vm.issue("S", f"buffer_store_dwordx4 {vr(KR,4)}, v4, {sr(R_WS,4)}, s{T0} offen sc1")
    vm.issue("S", f"buffer_store_dwordx4 {vr(KR+4,4)}, v4, {sr(R_WS,4)}, s{T1} offen sc1")

def fu_flag(vm):
    a(f"s_lshl_b32 s{T0}, s{S_XCD}, 2")
    a(f"s_add_u32 s{T0}, s{T0}, s{S_LW}")
    a(f"s_lshl_b32 s{T0}, s{T0}, 5")
    a(f"s_add_u32 s{T0}, s{T0}, s{S_J}")
    a(f"s_lshl_b32 s{T0}, s{T0}, 2")
    a(f"s_add_u32 s{T0}, s{T0}, {WS_FU}")
    a(f"v_mov_b32 v{PF}, s{S_NONCE}")
    a("s_mov_b64 exec, 1")
    vm.issue("F", f"buffer_store_dword v{PF}, off, {sr(R_WS,4)}, s{T0} sc1")
    a("s_mov_b64 exec, -1")

def fu_addr():
    a(f"s_lshl_b32 s{T4}, s{S_XCD}, 2")
    a(f"s_add_u32 s{T4}, s{T4}, s{S_LW}")
    a(f"s_lshl_b32 s{T4}, s{T4}, 7")
    a(f"s_add_u32 s{T4}, s{T4}, {WS_FU}")
    a(f"s_mov_b32 s{S_EX}, s{S_NONCE}")
    a(f"s_mov_b32 s{S_EX+1}, s{S_NONCE}")

CSR = 28
def cs_read():
    a(f"s_bfe_u32 s{T0}, s{S_RB}, 0x10001")
    if OPT.pairswap: a(f"s_xor_b32 s{T0}, s{T0}, s{S_G}")
    a(f"s_and_b32 s{T1}, s{S_RB}, 1")
    a(f"s_mul_i32 s{T0}, s{T0}, {SLOT}")
    a(f"s_lshl_b32 s{T1}, s{T1}, 13")
    a(f"s_add_u32 s{T0}, s{T0}, s{T1}")
    a(f"s_add_u32 s{T0}, s{T0}, s{S_LW1K}")
    a("v_lshrrev_b32 v5, 4, v1")
    a("v_lshlrev_b32 v6, 2, v5")
    a("v_and_b32 v7, 15, v1")
    a("v_xor_b32 v6, v6, v7")
    a("v_lshlrev_b32 v6, 4, v6")
    a("v_lshl_add_u32 v6, v5, 8, v6")
    a(f"v_add_u32 v6, s{T0}, v6")
    for mat in range(2):
        for ii in range(2):
            a(f"ds_read_b128 {vr(CSR+8*mat+4*ii,4)}, v6 offset:{16384*(mat+1)+4096*ii}")

def cs_sum():
    G, U, KT = GA, GA + 8, KF
    a("v_bfe_u32 v8, v1, 4, 1")
    a("v_lshlrev_b32 v8, 4, v8")
    a("v_lshl_add_u32 v8, v7, 5, v8")
    a("v_lshrrev_b32 v5, 5, v1")
    a("v_lshl_add_u32 v8, v5, 9, v8")
    a(f"s_add_u32 s{T0}, s{S_LW1K}, {L_CSP}")
    a(f"v_add_u32 v8, s{T0}, v8")
    for mat, acc in ((0, G), (1, U)):
        for p in range(4):
            unpack(acc + 2 * p, CSR + 8 * mat + p)
            unpack(KT + 2 * p, CSR + 8 * mat + 4 + p)
        for p in range(8): a(f"v_add_f32 v{acc+p}, v{acc+p}, v{KT+p}")
    a("s_nop 0")
    for j in range(8): a(f"v_permlane32_swap_b32 v{G+j}, v{U+j}")
    for p in range(8): a(f"v_add_f32 v{G+p}, v{G+p}, v{U+p}")
    a("s_nop 0")
    for j in range(4): a(f"v_permlane16_swap_b32 v{G+j}, v{G+4+j}")
    for p in range(4): a(f"v_add_f32 v{G+p}, v{G+p}, v{G+4+p}")
    a(f"ds_write_b128 v8, {vr(G,4)}")

def cs_publish(vm):
    a(f"s_lshl_b32 s{T0}, s{S_LW}, 8")
    a(f"s_add_u32 s{T0}, s{T0}, {L_CSP}")
    a(f"v_lshlrev_b32 v{PF+7}, 2, v1")
    a(f"v_add_u32 v4, s{T0}, v{PF+7}")
    for w in range(4): a(f"ds_read_b32 v{GA+w}, v4 offset:{1024*w}")
    a(f"s_lshl_b32 s{T2}, s{S_B}, 3")
    a(f"s_add_u32 s{T2}, s{T2}, s{S_I}")
    a(f"s_lshl_b32 s{T2}, s{T2}, 2")
    a(f"s_add_u32 s{T2}, s{T2}, s{S_LW}")
    a(f"s_lshl_b32 s{T2}, s{T2}, 4")
    a(f"s_add_u32 s{T2}, s{T2}, s{S_RB}")
    a(f"s_lshl_b32 s{T3}, s{T2}, 8")
    a(f"s_add_u32 s{T3}, s{T3}, {WS_CS}")
    a(f"s_lshl_b32 s{T4}, s{T2}, 3")
    a(f"s_add_u32 s{T4}, s{T4}, {WS_FCS}")
    a("s_waitcnt lgkmcnt(0)")
    a(f"v_add_f32 v{GA}, v{GA}, v{GA+1}")
    a(f"v_add_f32 v{GA+2}, v{GA+2}, v{GA+3}")
    a(f"v_add_f32 v{GA}, v{GA}, v{GA+2}")
    vm.issue("S1", f"buffer_store_dword v{GA}, v{PF+7}, {sr(R_WS,4)}, s{T3} offen sc1")

def cs_flag(vm):
    vm.wait("S1")
    flag_store(vm, PF, T4)

def cs_poll_addr():
    a(f"s_lshl_b32 s{T2}, s{S_B}, 3")
    a(f"s_add_u32 s{T2}, s{T2}, s{S_I}")
    a(f"s_lshl_b32 s{T2}, s{T2}, 2")
    a(f"s_add_u32 s{T2}, s{T2}, s{S_LW}")
    a(f"s_lshl_b32 s{T3}, s{T2}, 7")
    a(f"s_add_u32 s{T3}, s{T3}, {WS_FCS}")
    a(f"v_lshl_add_u32 v5, v1, 3, s{T3}")
    a(f"s_lshl_b32 s{T3}, s{S_RB}, 6")
    a(f"s_lshl_b32 s{T0}, s{S_LW}, 4")
    a(f"s_add_u32 s{T3}, s{T3}, s{T0}")
    a(f"s_add_u32 s{T3}, s{T3}, {WS_FST}")
    a("v_and_b32 v4, 1, v1")
    a(f"v_lshl_add_u32 v4, v4, 3, s{T3}")
    a("v_cmp_gt_u32 vcc, 16, v1")
    a(f"s_lshl_b32 s{T2}, s{T2}, 12")
    a(f"s_add_u32 s{T2}, s{T2}, {WS_CS}")
    a(f"v_cndmask_b32 v{PF+6}, v4, v5, vcc")

def cs_gather(vm):
    a("v_lshlrev_b32 v4, 4, v1")
    for q in range(4):
        vm.issue("Cs", f"buffer_load_dwordx4 {vr(GA+4*q,4)}, v4, {sr(R_WS,4)}, s{T2} offen offset:{1024*q} sc1")
    a(f"s_lshl_b32 s{T0}, s{S_RB}, 10")
    a(f"s_lshl_b32 s{T1}, s{S_LW}, 8")
    a(f"s_add_u32 s{T0}, s{T0}, s{T1}")
    a(f"s_add_u32 s{T0}, s{T0}, {WS_ST}")
    a("v_and_b32 v2, 31, v1")
    a("v_lshlrev_b32 v2, 3, v2")
    vm.issue("Cs", f"buffer_load_dwordx2 {vr(PF+12,2)}, v2, {sr(R_WS,4)}, s{T0} offen sc1")

def cs_tables(vm):
    a(f"s_lshl_b32 s{T0}, s{S_LW}, 8")
    a(f"s_add_u32 s{T1}, s{T0}, {L_STAT}")
    a(f"v_add_u32 v2, s{T1}, v2")
    a("v_and_b32 v4, 15, v1")
    a("v_lshlrev_b32 v4, 4, v4")
    a("v_lshrrev_b32 v5, 4, v1")
    a("v_lshl_add_u32 v4, v5, 2, v4")
    a(f"s_add_u32 s{T1}, s{T0}, {L_CS}")
    a(f"v_add_u32 v4, s{T1}, v4")
    vm.wait("Cs")
    a(f"ds_write_b64 v2, {vr(PF+12,2)}")
    for j in range(4): a(f"v_add_f32 v{GA+j}, v{GA+j}, v{GA+4+j}")
    for j in range(4): a(f"v_add_f32 v{GA+8+j}, v{GA+8+j}, v{GA+12+j}")
    for j in range(4): a(f"v_add_f32 v{GA+j}, v{GA+j}, v{GA+8+j}")
    a("s_nop 1")
    a(f"v_permlane32_swap_b32 v{GA}, v{GA+2}")
    a(f"v_permlane32_swap_b32 v{GA+1}, v{GA+3}")
    a(f"v_add_f32 v{GA}, v{GA}, v{GA+2}")
    a(f"v_add_f32 v{GA+1}, v{GA+1}, v{GA+3}")
    a("s_nop 1")
    a(f"v_permlane16_swap_b32 v{GA}, v{GA+1}")
    a(f"v_add_f32 v{GA}, v{GA}, v{GA+1}")
    a(f"ds_write_b32 v4, v{GA}")

def ssm_loads(vm, rnd):
    if rnd == 0:
        a(f"s_lshr_b32 s{T0}, s{S_LW}, 1")
        a(f"s_add_u32 s{S_CH}, s{S_CH}, s{T0}")
        a(f"s_lshl_b32 s{T0}, s{T0}, 12")
        a(f"s_add_u32 s{R_SSM}, s{R_SSM}, s{T0}")
        a(f"s_addc_u32 s{R_SSM+1}, s{R_SSM+1}, 0")
        a(f"s_and_b32 s{T0}, s{S_LW}, 1")
        a(f"s_lshl_b32 s{T0}, s{T0}, 11")
        a(f"v_lshl_add_u32 v{PF+2}, v1, 4, s{T0}")
    for q in range(3):
        vm.issue("H", f"buffer_load_dwordx4 {vr(HL+12*rnd+4*q,4)}, v{PF+2}, {sr(R_SSM,4)}, 0 offen offset:{1024*rnd+4*q} {OPT.nt_s}")

def h_shift(vm):
    vm.wait("H")
    for rnd in range(2):
        L0 = HL + 12 * rnd
        for i in range(4):
            a(f"v_alignbit_b32 v{HS+8*rnd+i}, v{L0+4+i}, v{L0+i}, 16")
            a(f"v_alignbit_b32 v{HS+8*rnd+4+i}, v{L0+8+i}, v{L0+4+i}, 16")

def h_write(parts=(0, 1, 2)):
    a(f"s_lshr_b32 s{T0}, s{S_LW}, 1")
    a(f"s_mul_i32 s{T1}, s{T0}, {HCH}")
    a(f"s_add_u32 s{T1}, s{T1}, {L_HB + 32}")
    a(f"v_add_u32 v4, s{T1}, v{PF+2}")
    for rnd in range(2):
        if rnd not in parts: continue
        L0 = HL + 12 * rnd
        src = [L0, HS + 8 * rnd, L0 + 4, HS + 8 * rnd + 4]
        for e in range(4):
            a(f"ds_write_b128 v4, {vr(src[e],4)} offset:{e*HCOPY+1024*rnd}")
    if 2 not in parts: return
    Z = TP
    for i in range(4): a(f"v_mov_b32 v{Z+i}, 0")
    a(f"s_mul_i32 s{T1}, s{T0}, 4608")
    a(f"s_add_u32 s{T1}, s{T1}, {L_UB + 4096}")
    a("v_and_b32 v5, 31, v1")
    a(f"v_lshl_add_u32 v5, v5, 4, s{T1}")
    a(f"ds_write_b128 v5, {vr(Z,4)}")
    skip = a.newlabel("L_hf")
    a(f"s_bitcmp1_b32 s{S_LW}, 0")
    a(f"s_cbranch_scc1 {skip}")
    Q = Z + 4
    for i in range(12): a(f"v_mov_b32 v{Q+i}, 0")
    a(f"v_lshlrev_b32 v{Q+3}, 16, v{HL}")
    a(f"v_mov_b32 v{Q+7}, v{HL}")
    a(f"v_lshlrev_b32 v{Q+10}, 16, v{HL}")
    a(f"v_mov_b32 v{Q+11}, v{HS}")
    a("v_subrev_u32 v4, 32, v4")
    a("s_mov_b64 exec, 1")
    for e in range(4):
        a(f"ds_write_b128 v4, {vr(Z,4)} offset:{e*HCOPY}")
        a(f"ds_write_b128 v4, {vr(Z if e == 0 else Q+4*(e-1),4)} offset:{e*HCOPY+16}")
    a("s_mov_b64 exec, -1")
    a.label(skip)

UL = 48
def u_loads(vm):
    a(f"s_lshl_b32 s{T0}, s{S_CH}, 12")
    a("v_lshlrev_b32 v4, 4, v1")
    for q in range(4):
        vm.issue("U", f"buffer_load_dwordx4 {vr(UL+4*q,4)}, v4, {sr(R_WS,4)}, s{T0} offen offset:{1024*q} sc1")

def cold_touch(vm):
    if not OPT.touch: return
    a(f"s_mov_b32 s{R_SSM+2}, 8192")
    a(f"s_lshl_b32 s{T0}, s{S_LW}, 11")
    a(f"v_lshlrev_b32 v{VTO}, 7, v1")
    a("s_mov_b64 exec, 0xffff")
    vm.issue("T", f"buffer_load_dword v{VTD}, v{VTO}, {sr(R_SSM,4)}, s{T0} offen")
    a("s_mov_b64 exec, -1")
    a(f"s_mov_b32 s{R_SSM+2}, 4096")
    if OPT.w2warm:
        a(f"s_mul_i32 s{T0}, s2, 7168")
        a(f"s_mul_i32 s{T1}, s{S_LW}, 1792")
        a(f"s_add_u32 s{T0}, s{T0}, s{T1}")
        a("s_mov_b64 exec, 0x3fff")
        vm.issue("T", f"buffer_load_dword v{VTD}, v{VTO}, {sr(R_W2,4)}, s{T0} offen")
        a("s_mov_b64 exec, -1")

def w2_touch(vm):
    if not OPT.w2touch: return
    a(f"v_lshlrev_b32 v{VTO}, 10, v1")
    a(f"s_mul_i32 s{T0}, s{S_LW}, {448*1024}")
    a(f"s_lshl_b32 s{T1}, s{S_I}, 7")
    a(f"s_add_u32 s{T0}, s{T0}, s{T1}")
    a(f"v_add_u32 v{VTO}, s{T0}, v{VTO}")
    a(f"v_lshrrev_b32 v4, 4, v1")
    for rr in range(2):
        a(f"s_add_u32 s{T1}, s{S_ROT}, {4*rr}")
        a(f"v_add_u32 v5, s{T1}, v4")
        a("v_cmp_le_u32 vcc, 28, v5")
        a(f"s_lshl_b32 s{T1}, s{T1}, 14")
        a(f"v_mov_b32 v6, {(-448*1024) & 0xffffffff}")
        a("v_cndmask_b32 v5, 0, v6, vcc")
        a(f"v_add3_u32 v5, v5, v{VTO}, s{T1}")
        if rr: a("s_mov_b32 exec_hi, 0xffff")
        vm.issue("T", f"buffer_load_dword v{VTD}, v5, {sr(R_W2,4)}, 0 offen")
    a("s_mov_b64 exec, -1")

def l_main():
    vm = VM(a)
    a.label("L_lstart")
    a.c("==== L wave: placement-independent start (k/v tile, ssm rows) ====")
    pol = OPT.nt_w
    with capture() as pl:
        if not OPT.p_after: prep_loads(vm)
    k = next((i for i, ln in enumerate(pl) if ln.startswith("buffer_")), 0)
    for ln in pl[:k]: a(ln)
    a(f"s_lshl_b32 s{S_CH}, s{S_XCD}, 5")
    a(f"s_add_u32 s{S_CH}, s{S_CH}, s{S_J}")
    a(f"s_lshl_b32 s{T2}, s{S_CH}, 2")
    a(f"s_lshl_b32 s{S_CH}, s{S_CH}, 1")
    a(f"s_lshl_b32 s{T3}, s{S_CH}, 12")
    a("s_waitcnt lgkmcnt(0)")
    stamp("L", "first_ld")
    for ln in pl[k:]: a(ln)
    a(f"s_load_dword s{S_D}, {sr(S_EX,2)}, s{T2}")
    late_ptrs()
    a(f"s_add_u32 s{R_SSM}, s{R_SSM}, s{T3}")
    a(f"s_addc_u32 s{R_SSM+1}, s{R_SSM+1}, 0")
    if OPT.tlb:
        a("v_and_b32 v4, 1, v1")
        a(f"v_mul_u32_u24 v4, {512*3584 - 128}, v4")
        a("s_mov_b64 exec, 3")
        for r in (R_X, R_W1, R_W3): vm.issue("T", f"buffer_load_dword v{VTD}, v4, {sr(r,4)}, 0 offen")
        a("s_mov_b64 exec, -1")
    cold_touch(vm)
    a("v_lshrrev_b32 v4, 3, v1")
    a(f"s_lshl_b32 s{T1}, s{S_LW}, 3")
    a(f"v_add_u32 v4, s{T1}, v4")
    a("v_lshlrev_b32 v4, 10, v4")
    a("v_lshrrev_b32 v5, 4, v1")
    a(f"s_and_b32 s{T1}, s{S_LW}, 1")
    a(f"s_lshl_b32 s{T1}, s{T1}, 2")
    a(f"v_add_u32 v6, s{T1}, v5")
    a("v_and_b32 v7, 7, v1")
    a("v_xor_b32 v6, v6, v7")
    a(f"v_lshl_add_u32 v{VXO}, v6, 4, v4")
    for ii in range(1, 4): a(f"v_add_u32 v{VXO+ii}, {32768*ii}, v{VXO}")
    a(f"s_lshl_b32 s{T1}, s{S_LW}, 2")
    a(f"v_add_u32 v4, s{T1}, v5")
    a("v_mul_u32_u24 v4, 3584, v4")
    a("v_lshlrev_b32 v6, 2, v5")
    a("v_and_b32 v7, 15, v1")
    a("v_xor_b32 v6, v6, v7")
    a(f"v_lshl_add_u32 v{VWO}, v6, 4, v4")
    for ii in range(1, 4): a(f"v_add_u32 v{VWO+ii}, {16*3584*ii}, v{VWO}")
    a(f"s_mul_i32 s{T5}, s{S_LW}, 12288")
    barrier()
    decode(4)
    a(f"s_cmp_eq_u32 s{S_I}, 7")
    a("s_cbranch_scc1 L_lspare")
    a(f"s_lshl_b32 s{S_XB}, s{S_RB}, 17")
    a(f"s_lshl_b32 s{S_WB}, s{S_CB}, 8")
    a(f"s_and_b32 s{S_R1}, s{S_VX}, 6")
    a(f"s_lshl_b32 s{T0}, s{S_B}, 2")
    a(f"s_add_u32 s{S_R1}, s{S_R1}, s{T0}")
    if OPT.pairswap:
        a(f"s_add_u32 s{S_G}, s{S_RB}, s{S_I}")
        a(f"s_and_b32 s{S_G}, s{S_G}, 1")
    spare_q = list(vm.q)
    def chunk(c, fill=()):
        fill = list(fill)
        per = -(-len(fill) // 12)
        sl = (c % 3) * SLOT
        if OPT.pairswap:
            a(f"s_xor_b32 s{S_OX}, s{S_G}, {c}")
            a(f"s_add_u32 s{S_OX}, s{S_R1}, s{S_OX}")
        else:
            a(f"s_add_u32 s{S_OX}, s{S_R1}, {c}")
        a(f"s_and_b32 s{S_OX}, s{S_OX}, 7")
        a(f"s_mul_i32 s{S_OW}, s{S_OX}, {64*3584}")
        a(f"s_lshl_b32 s{S_OX}, s{S_OX}, 7")
        a(f"s_add_u32 s{S_OX}, s{S_OX}, s{S_XB}")
        a(f"s_add_u32 s{S_OW}, s{S_OW}, s{S_WB}")
        for ii in range(4):
            for part, (voff, rs, so) in enumerate(((VXO, R_X, S_OX), (VWO, R_W1, S_OW), (VWO, R_W3, S_OW))):
                a(f"s_add_u32 m0, s{S_LW1K}, {sl + part*16384 + ii*4096}")
                a("s_nop 0")
                vm.issue(f"c{c}", f"buffer_load_dwordx4 v{voff+ii}, {sr(rs,4)}, s{so} offen {pol} lds")
                for ln in fill[:per]: a(ln)
                fill = fill[per:]
    def B(c):
        barrier(); stamp("L", f"B{c}")
    if OPT.lprio: a(f"s_setprio {OPT.lprio}")
    stamp("L", "first_dma")
    chunk(0)
    stamp("L", "s_c0iss")
    if not OPT.p_after:
        vm.wait("P")
        stamp("L", "s_P")
        prep_compute(pk=True)
        stamp("L", "s_prep")
    chunk(1)
    stamp("L", "s_c1iss")
    decode2(); w2_setup()
    vm.wait("c0", "lgkmcnt(0)"); stamp("L", "c0"); B(-1)
    if not OPT.p_after: prep_store(vm)
    vm.issue("N", nonce_issue(PF + 4))
    chunk(2)
    if OPT.p_after: prep_loads(vm)
    vm.wait("c1"); B(0)
    cs_read()
    a("s_waitcnt lgkmcnt(0)")
    with capture() as pc: cs_sum()
    chunk(3, pc)
    vm.wait("c2")
    nonce_check(PF + 4)
    a(f"v_mov_b32 v4, {L_NONCE}")
    a(f"ds_write_b64 v4, {vr(PF+4,2)}")
    a("s_waitcnt lgkmcnt(0)"); B(1)
    if not OPT.p_after:
        fu_flag(vm); stamp("L", "fu_flag")
    cs_publish(vm)
    pc = []
    if OPT.p_after:
        vm.wait("P")
        with capture() as pc: prep_compute()
    half = len(pc) // 2
    chunk(4, pc[:half])
    vm.wait("c3"); B(2)
    chunk(5, pc[half:])
    vm.wait("c4", "lgkmcnt(0)"); cs_flag(vm); B(3)
    if OPT.p_after: prep_store(vm)
    chunk(6)
    ssm_loads(vm, 0); ssm_loads(vm, 1)
    cs_poll_addr()
    vm.wait("S" if OPT.p_after else "c5"); B(4)
    if OPT.p_after: fu_flag(vm)
    chunk(7)
    poll_issue(vm, PF + 8, PF + 6, "P2")
    fu_addr()
    spoll_issue(S_PB, T4, 32)
    h_shift(vm)
    B(5)
    poll_check(vm, PF + 8, PF + 6, "P2")
    stamp("L", "m_csseen")
    cs_gather(vm)
    a("s_waitcnt lgkmcnt(0)")
    spoll_test(S_PB, 32, 1)
    a(f"s_cselect_b32 s{T3}, 1, 0")
    a("s_cbranch_scc1 L_ulate")
    u_loads(VM(a))
    a.label("L_ulate")
    h_write((0,))
    vm.wait("c7"); B(6); stamp("L", "m_b6")
    a(f"s_mov_b32 s{S_KW}, s{S_ROT}")
    cs_tables(vm)
    h_write((1,))
    if OPT.ring_early:
        for s in range(6): w2_kstep(vm, s, "w0")
    a("s_waitcnt lgkmcnt(0)")
    stamp("L", "pre_b7")
    B(7)
    for s in range(6 if OPT.ring_early else 0, 12): w2_kstep(vm, s, "w0")
    stamp("L", "m_w2iss")
    h_write((2,))
    a("v_lshlrev_b32 v4, 4, v1")
    a(f"s_cmp_eq_u32 s{T3}, 0")
    a("s_cbranch_scc1 L_conv")
    spoll(S_PB, T4, 32, 1)
    u_loads(VM(a))
    a("s_waitcnt vmcnt(0)")
    a("s_branch L_conv")
    return spare_q

def spare(spare_q):
    vm = VM(a)
    stamp_on[0] = False
    a.label("L_cspare")
    a.c("==== spare work-group, C waves ====")
    XS, SU = 32, 16
    a("v_lshrrev_b32 v4, 3, v1")
    a(f"s_lshl_b32 s{T1}, s{S_TB}, 6")
    a(f"s_lshl_b32 s{T0}, s{S_WAVE}, 4")
    a(f"s_add_u32 s{T1}, s{T1}, s{T0}")
    a(f"v_add_u32 v5, s{T1}, v4")
    a("v_lshlrev_b32 v5, 10, v5")
    a("v_and_b32 v6, 7, v1")
    a("v_lshl_add_u32 v7, v6, 4, v5")
    a(f"s_mov_b32 s{T2}, 8192")
    for g in range(2):
        for kc in range(8):
            vm.issue(f"xs{g}", f"buffer_load_dwordx4 {vr(XS+32*g+4*kc,4)}, v7, {sr(R_X,4)}, {'s%d' % T2 if g else '0'} offen offset:{128*kc}")
    vm.issue("N", nonce_issue(12))
    a(f"s_mov_b32 s{S_ONES}, 0x3f803f80")
    a(f"s_lshl_b32 s{T2}, s{S_B}, 9")
    a(f"s_lshl_b32 s{T0}, s{T0}, 3")
    a(f"s_add_u32 s{T2}, s{T2}, s{T0}")
    a(f"s_add_u32 s{T2}, s{T2}, {L_STAT}")
    a("v_lshlrev_b32 v9, 3, v4")
    a(f"v_add_u32 v8, s{T2}, v9")
    a(f"s_lshl_b32 s{T1}, s{T1}, 3")
    a(f"s_add_u32 s{T1}, s{T1}, {WS_ST}")
    a(f"s_mov_b32 s{S_EX}, 0x01010101")
    a(f"s_mov_b32 s{S_EX+1}, 0x01010101")
    for g in range(2):
        for i in range(4): a(f"v_mov_b32 v{SU+i}, 0")
        vm.wait(f"xs{g}")
        for i in range(32):
            a(f"v_dot2c_f32_bf16 v{SU+(i&1)}, s{S_ONES}, v{XS+32*g+i}")
            a(f"v_dot2c_f32_bf16 v{SU+2+(i&1)}, v{XS+32*g+i}, v{XS+32*g+i}")
        a("s_nop 2")
        a(f"v_add_f32 v{SU}, v{SU}, v{SU+1}")
        a(f"v_add_f32 v{SU+2}, v{SU+2}, v{SU+3}")
        for dpp in ("quad_perm:[1,0,3,2]", "quad_perm:[2,3,0,1]", "row_half_mirror"):
            a("s_nop 0")
            a(f"v_add_f32_dpp v{SU}, v{SU}, v{SU} {dpp} row_mask:0xf bank_mask:0xf")
            a("s_nop 0")
            a(f"v_add_f32_dpp v{SU+2}, v{SU+2}, v{SU+2} {dpp} row_mask:0xf bank_mask:0xf")
        M = 20 + 2 * g
        a(f"v_mul_f32 v{M}, 0x3b000000, v{SU}")
        a(f"v_mul_f32 v6, 0x3b000000, v{SU+2}")
        a(f"v_fma_f32 v6, -v{M}, v{M}, v6")
        a("v_max_f32 v6, 0, v6")
        a("v_add_f32 v6, 0x3727c5ac, v6")
        a(f"v_rsq_f32 v{M+1}, v6")
        a(f"s_mov_b64 exec, {sr(S_EX,2)}")
        a(f"ds_write_b64 v8, {vr(M,2)} offset:{64*g}")
        vm.issue("st", f"buffer_store_dwordx2 {vr(M,2)}, v9, {sr(R_WS,4)}, s{T1} offen offset:{64*g} sc1")
        a("s_mov_b64 exec, -1")
    a(f"s_lshl_b32 s{T0}, s{S_TB}, 2")
    a(f"s_add_u32 s{T0}, s{T0}, s{S_WAVE}")
    a(f"s_lshl_b32 s{T0}, s{T0}, 3")
    a(f"s_add_u32 s{T0}, s{T0}, {WS_FST}")
    vm.waitall("lgkmcnt(0)")
    nonce_check(12)
    lds_add(L_SP3, 4, 5)
    flag_store(vm, 14, T0)
    lds_wait(L_SP3, 4, 4, 5)
    if OPT.sp_w2:
        if OPT.sp_delay: lds_wait(L_SP2, 4, 4, 5)
        a(f"s_and_b32 s{T0}, s{S_RB}, 3")
        a(f"s_mul_i32 s{T0}, s{T0}, {448*1024}")
        a("v_lshlrev_b32 v4, 7, v1")
        a(f"v_add_u32 v4, s{T0}, v4")
        a(f"s_mul_i32 s{T1}, s{S_VX}, 7")
        a(f"s_add_u32 s{T1}, s{T1}, s{S_WAVE}")
        a(f"s_mov_b32 s{T2}, 14")
        a.label("L_spw2")
        a(f"s_cmp_ge_u32 s{T1}, 56")
        a(f"s_cselect_b32 s{T0}, 56, 0")
        a(f"s_sub_u32 s{T1}, s{T1}, s{T0}")
        a(f"s_lshl_b32 s{T0}, s{T1}, 13")
        a(f"buffer_load_dword v25, v4, {sr(R_W2,4)}, s{T0} offen")
        a(f"s_add_u32 s{T1}, s{T1}, 4")
        a(f"s_sub_u32 s{T2}, s{T2}, 1")
        a(f"s_cmp_lg_u32 s{T2}, 0")
        a("s_cbranch_scc1 L_spw2")
    a("s_branch L_cE")
    a.label("L_lspare")
    vm = VM(a); vm.q = list(spare_q)
    decode2(); w2_setup()
    if OPT.p_after: prep_loads(vm)
    vm.issue("N", nonce_issue(PF + 4))
    ssm_loads(vm, 0); ssm_loads(vm, 1)
    vm.wait("P")
    prep_compute(pk=True)
    a("s_waitcnt lgkmcnt(0)")
    lds_add(L_SP1, 4, 5); lds_wait(L_SP1, 4, 4, 5)
    prep_store(vm)
    h_shift(vm); h_write()
    vm.wait("N"); nonce_check(PF + 4)
    vm.wait("S")
    lds_add(L_SP2, 4, 5); lds_wait(L_SP2, 4, 4, 5)
    fu_flag(vm)
    a(f"s_mov_b32 s{S_KW}, s{S_ROT}")
    for s in range(12): w2_kstep(vm, s, "w0")
    fu_addr()
    spoll(S_PB, T4, 32, 1, sleep=16)
    u_loads(vm)
    vm.waitall()
    stamp_on[0] = True

def l_conv():
    vm = VM(a)
    a.label("L_conv")
    a.c("==== L wave: long convolution ====")
    CA, CB, YA = 10, 11, 12
    FA = [64, 128]; FB = [96, 160]; ACC = 192
    a(f"s_lshr_b32 s{T0}, s{S_LW}, 1")
    a(f"s_mul_i32 s{T1}, s{T0}, 4608")
    a(f"s_add_u32 s{T1}, s{T1}, {L_UB}")
    a(f"v_add_u32 v14, s{T1}, v4")
    a("v_and_b32 v5, 15, v1")
    a("v_lshrrev_b32 v6, 4, v1")
    a("v_lshlrev_b32 v7, 1, v5")
    a("v_sub_u32 v7, v6, v7")
    a("v_add_u32 v7, 30, v7")
    a(f"v_lshl_add_u32 v{CB}, v7, 4, s{T1}")
    a("v_lshlrev_b32 v7, 2, v5")
    a("v_add_u32 v7, v7, v6")
    a("v_lshlrev_b32 v13, 3, v7")
    a(f"s_and_b32 s{T2}, s{S_LW}, 1")
    a(f"s_lshl_b32 s{T4}, s{T2}, 11")
    a(f"s_sub_u32 s{T1}, s{T1}, s{T4}")
    a(f"s_add_u32 s{T1}, s{T1}, {504 + 2048}")
    a(f"v_sub_u32 v{YA}, s{T1}, v13")
    a("v_add_u32 v5, 1, v5")
    a("v_and_b32 v7, 3, v5")
    a("v_sub_u32 v5, v5, v7")
    a("v_lshl_add_u32 v5, v6, 3, v5")
    a("v_lshlrev_b32 v5, 1, v5")
    a(f"v_mul_u32_u24 v7, {HCOPY}, v7")
    a(f"s_mul_i32 s{T1}, s{T0}, {HCH}")
    a(f"s_lshl_b32 s{T4}, s{T2}, 8")
    a(f"s_add_u32 s{T1}, s{T1}, s{T4}")
    a(f"s_add_u32 s{T1}, s{T1}, {L_HB}")
    a(f"v_add3_u32 v{CA}, v5, v7, s{T1}")
    a(f"v_add_u32 v{CB}, s{T4}, v{CB}")
    for r in range(ACC, ACC + 32): a(f"v_mov_b32 v{r}, 0")
    a(f"s_lshl_b32 s{T3}, s{S_LW}, 2")
    a(f"s_add_u32 s{T3}, s{T3}, {L_RING}")
    a("s_waitcnt vmcnt(24)")
    for q in range(4):
        a(f"ds_write_b128 v14, {vr(UL+4*q,4)} offset:{1024*q}")
    a("s_waitcnt lgkmcnt(0)")
    lds_add(L_ECNT, 4, 5)
    a("s_waitcnt vmcnt(0)")
    lds_add((T3,), 4, 5)
    stamp("L", "pre_E")
    lds_wait(L_ECNT, 8, 4, 5)
    stamp("L", "m_go")
    if OPT.cprio: a(f"s_setprio {OPT.cprio}")
    a(f"s_mov_b32 s{T2}, 0")
    def reads(b, extra):
        R = []
        for k in range(8):
            R.append(f"ds_read_b64 {vr(FA[b]+4*k,2)}, v{CA} offset:{512*k+extra}")
            R.append(f"ds_read_b64 {vr(FA[b]+4*k+2,2)}, v{CA} offset:{512*k+8+extra}")
            R.append(f"ds_read_b128 {vr(FB[b]+4*k,4)}, v{CB} offset:{512*(7-k)+extra}")
        return R
    for r in reads(0, 0): a(r)
    a(".p2align 3")
    a.label("L_conv_loop")
    for b in range(2):
        nxt = reads(b ^ 1, 64 * (b + 1))
        a("s_waitcnt lgkmcnt(0)")
        mf = [(n, s1) for s1 in range(8) for n in range(s1, 8)]
        for idx, (n, s1) in enumerate(mf):
            d = vr(ACC + 4 * n, 4)
            a(f"v_mfma_f32_16x16x32_bf16 {d}, {vr(FA[b]+4*s1,4)}, {vr(FB[b]+4*(n-s1),4)}, {d}")
            if idx < len(nxt): a(nxt[idx])
            if b == 1 and idx == len(mf) - 3:
                a(f"v_add_u32 v{CA}, 128, v{CA}")
                a(f"v_add_u32 v{CB}, 128, v{CB}")
                a(f"s_add_u32 s{T2}, s{T2}, 1")
                a(f"s_cmp_lt_u32 s{T2}, 2")
    a("s_cbranch_scc1 L_conv_loop")
    stamp("L", "conv_end")
    a(f"s_lshl_b32 s{T0}, s{S_LW}, 12")
    a(f"s_add_u32 s{T0}, s{T0}, {L_XCH}")
    a(f"v_lshl_add_u32 v14, v1, 4, s{T0}")
    a(f"s_xor_b32 s{T1}, s{S_LW}, 1")
    a(f"s_lshl_b32 s{T1}, s{T1}, 12")
    a(f"s_add_u32 s{T1}, s{T1}, {L_XCH}")
    a(f"v_lshl_add_u32 v15, v1, 4, s{T1}")
    a(f"v_add_u32 v13, s{T1}, v13")
    a(f"s_lshr_b32 s{T4}, s{S_LW}, 1")
    a(f"s_lshl_b32 s{T4}, s{T4}, 2")
    a(f"s_add_u32 s{T4}, s{T4}, {L_PAIR}")
    a(f"s_bitcmp1_b32 s{S_LW}, 0")
    a("s_waitcnt lgkmcnt(0)")
    a("s_cbranch_scc1 L_xch1")
    for ti in range(4): a(f"ds_write_b128 v14, {vr(ACC+16+4*ti,4)} offset:{1024*ti}")
    a("s_branch L_xch2")
    a.label("L_xch1")
    for ti in range(4): a(f"ds_write_b128 v14, {vr(ACC+4*ti,4)} offset:{1024*ti}")
    a("s_nop 1")
    for r in range(16): a(f"v_mov_b32 v{ACC+r}, v{ACC+16+r}")
    a.label("L_xch2")
    for ti in range(4):
        a(f"ds_read_b64 {vr(32+2*ti,2)}, v{YA} offset:{512*(3-ti)}")
    a(f"s_bitcmp1_b32 s{S_CH}, 0")
    a(f"s_cselect_b32 s{T3}, 0, 16")
    a(f"s_lshl_b32 s{T3}, s{S_D}, s{T3}")
    a(f"s_and_b32 s{T3}, s{T3}, 0xffff0000")
    a("s_waitcnt lgkmcnt(0)")
    lds_add((T4,), 4, 5)
    for ti in range(4):
        u = 32 + 2 * ti; t = 40 + 4 * ti; y = ACC + 4 * ti
        a(f"v_and_b32 v{t}, 0xffff0000, v{u+1}")
        a(f"v_lshlrev_b32 v{t+1}, 16, v{u+1}")
        a(f"v_and_b32 v{t+2}, 0xffff0000, v{u}")
        a(f"v_lshlrev_b32 v{t+3}, 16, v{u}")
        for r in range(4): a(f"v_fmac_f32 v{y+r}, s{T3}, v{t+r}")
    lds_wait((T4,), 2, 4, 5)
    stamp("L", "m_xch")
    for ti in range(4): a(f"ds_read_b128 {vr(40+4*ti,4)}, v15 offset:{1024*ti}")
    a(f"s_and_b32 s{T1}, s{S_LW}, 1")
    a(f"s_lshl_b32 s{T1}, s{T1}, 11")
    a(f"s_lshl_b32 s{T0}, s{S_CH}, 12")
    a(f"s_add_u32 s{T0}, s{T0}, s{T1}")
    a(f"s_add_u32 s{T0}, s{T0}, {WS_Y}")
    a("v_lshlrev_b32 v5, 4, v1")
    a("s_waitcnt lgkmcnt(0)")
    for ti in range(4):
        u = 32 + 2 * ti; t = 40 + 4 * ti; y = ACC + 4 * ti
        for r in range(4): a(f"v_add_f32 v{y+r}, v{y+r}, v{t+r}")
        a(f"v_cvt_pk_bf16_f32 v{u}, v{y}, v{y+1}")
        a(f"v_cvt_pk_bf16_f32 v{u+1}, v{y+2}, v{y+3}")
        a(f"ds_write_b64 v13, {vr(u,2)} offset:{512*ti}")
    a("s_waitcnt lgkmcnt(0)")
    a("ds_read_b128 v[40:43], v15")
    a("ds_read_b128 v[44:47], v15 offset:1024")
    a("s_waitcnt lgkmcnt(0)")
    a(f"buffer_store_dwordx4 v[40:43], v5, {sr(R_WS,4)}, s{T0} offen sc1")
    a(f"buffer_store_dwordx4 v[44:47], v5, {sr(R_WS,4)}, s{T0} offen offset:1024 sc1")
    if OPT.cprio: a("s_setprio 0")
    stamp("L", "m_yst")
    a(f"s_lshl_b32 s{T0}, s{S_XCD}, 10")
    a(f"s_lshl_b32 s{T2}, s{S_J}, 2")
    a(f"s_add_u32 s{T0}, s{T0}, s{T2}")
    a(f"s_add_u32 s{T0}, s{T0}, {WS_FY}")
    a("v_lshlrev_b32 v17, 7, v1")
    a(f"v_mov_b32 v16, s{S_NONCE}")
    a(f"v_mov_b32 v18, {L_YCNT}")
    a("v_mov_b32 v19, 1")
    vm.waitall()
    a("s_mov_b64 exec, 1")
    a("ds_add_rtn_u32 v19, v18, v19")
    a("s_waitcnt lgkmcnt(0)")
    a(f"v_readfirstlane_b32 s{T2}, v19")
    a("s_mov_b64 exec, 0xff")
    a(f"s_cmp_lg_u32 s{T2}, 3")
    a("s_cbranch_scc1 L_ynopub")
    a(f"buffer_store_dword v16, v17, {sr(R_WS,4)}, s{T0} offen sc1")
    a.label("L_ynopub")
    a("s_mov_b64 exec, -1")
    stamp("L", "y_flag")
    final_x_load(vm)
    a(f"s_lshl_b32 s{T4}, s{S_I}, 3")
    a(f"s_add_u32 s{T4}, s{T4}, s{S_VX}")
    a(f"s_lshl_b32 s{T4}, s{T4}, 7")
    a(f"s_add_u32 s{T4}, s{T4}, {WS_FY}")
    a("v_lshrrev_b32 v4, 3, v1")
    a("v_lshlrev_b32 v4, 12, v4")
    a("v_and_b32 v5, 7, v1")
    a("v_lshl_add_u32 v4, v5, 4, v4")
    a(f"s_lshl_b32 s{T2}, s{S_I}, 18")
    a(f"s_lshl_b32 s{T3}, s{S_LW}, 16")
    a(f"s_add_u32 s{T2}, s{T2}, s{T3}")
    a(f"s_lshl_b32 s{T3}, s{S_TB}, 7")
    a(f"s_add_u32 s{T2}, s{T2}, s{T3}")
    a(f"s_add_u32 s{T2}, s{T2}, {WS_Y}")
    a(f"s_add_u32 s{T3}, s{T2}, 32768")
    a(f"s_cmp_lg_u32 s{S_LW}, 0")
    a("s_cbranch_scc1 L_ywait")
    spoll(S_PB, T4, 32, 1)
    lds_wait(L_YCNT, 4, 6, 7)
    lds_add(L_YOK, 6, 7)
    a.label("L_ywait")
    lds_wait(L_YOK, 1, 6, 7)
    stamp("L", "y_seen")
    vm.issue("Y", f"buffer_load_dwordx4 v[40:43], v4, {sr(R_WS,4)}, s{T2} offen sc1")
    vm.issue("Y", f"buffer_load_dwordx4 v[44:47], v4, {sr(R_WS,4)}, s{T3} offen sc1")
    a("v_bfe_u32 v4, v1, 2, 2")
    a("v_lshlrev_b32 v4, 7, v4")
    a("v_lshrrev_b32 v5, 4, v1")
    a("v_lshl_add_u32 v4, v5, 5, v4")
    a("v_and_b32 v5, 3, v1")
    a("v_lshl_add_u32 v4, v5, 3, v4")
    a(f"s_lshl_b32 s{T0}, s{S_LW}, 11")
    a(f"s_add_u32 s{T0}, s{T0}, {L_YS}")
    a(f"v_add_u32 v4, s{T0}, v4")
    a("v_mul_u32_u24 v5, 144, v1")
    a(f"s_lshl_b32 s{T0}, s{S_LW}, 5")
    a(f"s_add_u32 s{T0}, s{T0}, {L_YT}")
    a(f"v_add_u32 v5, s{T0}, v5")
    a(f"s_lshl_b32 s{T0}, s{S_LW}, 11")
    a(f"s_add_u32 s{T0}, s{T0}, {L_YS}")
    a(f"v_lshl_add_u32 v14, v1, 4, s{T0}")
    vm.waitall()
    a("ds_write_b128 v14, v[40:43]")
    a("ds_write_b128 v14, v[44:47] offset:1024")
    a("s_waitcnt lgkmcnt(0)")
    for dd in range(4):
        a(f"ds_read_b64_tr_b16 {vr(48+2*dd,2)}, v4 offset:{512*dd}")
    a("s_waitcnt lgkmcnt(0)")
    a("ds_write_b128 v5, v[48:51]")
    a("ds_write_b128 v5, v[52:55] offset:16")
    stamp("L", "pre_final")

def build():
    prologue()
    c_start()
    c_g1()
    c_g2()
    q = l_main()
    spare(q)
    l_conv()
    final()
    a.label("L_code_end")
    hdr = open("recurrent_scan__ssm_conv_h3__glu_gated_swiglu__prompt.s.ref").read().split("; Override launch")[0]
    return f"""{hdr}; Generated by gen/gen.py (hand-written generator; one fused persistent kernel).
; @launch grid=(256,1,1) block=(512,1,1) lds={LDS_BYTES}
.amdgcn_target "amdgcn-amd-amdhsa--gfx950"
.text
.globl {NAME}
.p2align 8
.type {NAME},@function
{NAME}:
{a.text()}
.section .rodata,"a"
.p2align 6
.amdhsa_kernel {NAME}
  .amdhsa_next_free_vgpr 256
  .amdhsa_next_free_sgpr 102
  .amdhsa_accum_offset 256
  .amdhsa_group_segment_fixed_size 0
  .amdhsa_kernarg_size 104
  .amdhsa_user_sgpr_count 2
  .amdhsa_user_sgpr_kernarg_segment_ptr 1
  .amdhsa_system_sgpr_workgroup_id_x 1
  .amdhsa_float_denorm_mode_32 3
.end_amdhsa_kernel
"""

if __name__ == "__main__":
    out = sys.argv[1]
    for kv in sys.argv[2:]:
        k, v = kv.split("=")
        cur = getattr(OPT, k)
        setattr(OPT, k, type(cur)(int(v)) if isinstance(cur, (bool, int)) else v)
    s = build()
    open(out, "w").write(s)
    if OPT.prof:
        import json
        json.dump(nstamp, open(out + ".stamps.json", "w"))
```
